```python
import torch

def _softmax(x, axis=-1):
    return torch.softmax(x, dim=axis)
def _gelu(x):
    return torch.nn.functional.gelu(x, approximate="tanh")
def _silu(x):
    return torch.nn.functional.silu(x)
def _sigmoid(x):
    return torch.sigmoid(x)
def _layernorm(x, axis=-1, eps=1e-5):
    m = x.mean(dim=axis, keepdim=True)
    v = x.var(dim=axis, keepdim=True, unbiased=False)
    return (x - m) / torch.sqrt(v + eps)
def _scatter_add(tgt, idx, src, axis=0):
    return tgt.clone().index_add_(axis, idx, src)
def _segment_sum(src, seg, n):
    out = torch.zeros((n,) + src.shape[1:], dtype=src.dtype)
    return out.index_add_(0, seg, src)
def _pad(x, pw):
    flat = tuple(v for pair in reversed(pw) for v in pair)
    return torch.nn.functional.pad(x, flat)

kernel_name = 'gather_scatter__edge_featured_mpnn_mpnn__graph'

def setup_inputs():

    _w = (lambda a: (lambda t: t.to(torch.bfloat16) if t.is_floating_point() else t)(torch.as_tensor(a)))
    N, deg, D, De = 25000, 16, 128, max(0, 1)
    E = N * deg
    H = 2 * D
    return {
        "x": _w((lambda *s: torch.randn(*s, dtype=torch.bfloat16) * 0.05)(N, D)),
        "e_attr": _w((lambda *s: torch.randn(*s, dtype=torch.bfloat16) * 1.6)(E, De)),
        "src": _w((lambda lo, hi, *s: torch.randint(lo, hi, s))(0, N, E).to(torch.int64)),
        "dst": _w((lambda lo, hi, *s: torch.randint(lo, hi, s))(0, N, E).to(torch.int64)),
        "w1": _w((lambda *s: torch.randn(*s, dtype=torch.bfloat16) * 1.6)(2 * D + De, H) * (1.0 / (2 * D + De) ** 0.5)),
        "b1": _w((lambda *s: torch.randn(*s, dtype=torch.bfloat16) * 1.6)(H) * 0.01),
        "w2": _w((lambda *s: torch.randn(*s, dtype=torch.bfloat16) * 0.05)(H, D) * (1.0 / H ** 0.5)),
        "b2": _w((lambda *s: torch.randn(*s, dtype=torch.bfloat16) * 0.05)(D) * 0.01),
    }

def reference(x, e_attr, src, dst, w1, b1, w2, b2):
    N, D = x.shape
    h_src = x[src]
    h_dst = x[dst]
    m_in = torch.concatenate([h_src, h_dst, e_attr], axis=-1)
    h = _silu(m_in @ w1 + b1)
    msg = h @ w2 + b2
    return _segment_sum(msg, dst, N)
```

```python
import sys

N = 25000; E = 400000
NB = 98
CH = 1564
CHS = 12544
PS = N * 256
P_OFF = 0
REC_OFF = 2 * PS
TAB_OFF = REC_OFF + 256 * CHS
W2F_OFF = TAB_OFF + 256 * 1024
PMAX_OFF = W2F_OFF + 65536
SCR_OFF = 0x1000000
SCR_STRIDE = 104448
WS_USED = SCR_OFF + 256 * SCR_STRIDE
NLOG2E = 0xbfb8aa3b
NLN2 = 0xbf317218
BOUND = 0x42dc0000

STAMP_OFF = 0x3000000
OPT = dict(U=4, stamps=False)


class A:
    def __init__(self):
        self.l = []

    def __call__(self, s):
        for x in s.strip("\n").split("\n"):
            x = x.rstrip()
            if not x.strip():
                continue
            if x.strip().endswith(":") and not x.strip().startswith(";"):
                self.l.append(x.strip())
            else:
                self.l.append("    " + x.strip())

    def text(self):
        return "\n".join(self.l) + "\n"


def srd(a, d, lo, hi, size, stride=0):
    a(f"s_mov_b32 s{d}, s{lo}")
    if stride:
        a(f"s_and_b32 s{d+1}, s{hi}, 0xffff")
        a(f"s_or_b32 s{d+1}, s{d+1}, {stride << 16:#x}")
    else:
        a(f"s_mov_b32 s{d+1}, s{hi}")
    a(f"s_mov_b32 s{d+2}, {size}")
    a(f"s_mov_b32 s{d+3}, 0x00020000")


def wave_scan(a, regs):
    steps = ["row_shr:1 row_mask:0xf", "row_shr:2 row_mask:0xf", "row_shr:4 row_mask:0xf", "row_shr:8 row_mask:0xf",
             "row_bcast:15 row_mask:0xa", "row_bcast:31 row_mask:0xc"]
    for st in steps:
        a("s_nop 1" if len(regs) == 1 else "s_nop 0")
        for r in regs:
            a(f"v_add_u32_dpp v{r}, v{r}, v{r} {st} bank_mask:0xf")


def row_max(a, r):
    for sh in (1, 2, 4, 8):
        a("s_nop 1")
        a(f"v_max_f32_dpp v{r}, v{r}, v{r} row_shr:{sh} row_mask:0xf bank_mask:0xf")


def common_ids(a):
    a("""
    v_lshrrev_b32 v1, 6, v0
    v_and_b32 v2, 15, v0               ; l16
    v_readfirstlane_b32 s3, v1         ; wave
    v_and_b32 v1, 63, v0               ; lane
    v_lshrrev_b32 v3, 4, v1            ; g
    """)


def dma_w_setup(a, vdst, vt, s0, s1):
    a(f"""
    s_and_b32 s{s0}, s3, 1
    s_lshl_b32 s{s0}, s{s0}, 1
    s_and_b32 s{s1}, s3, 2
    s_lshl_b32 s{s1}, s{s1}, 2
    s_or_b32 s{s0}, s{s0}, s{s1}
    s_and_b32 s{s1}, s3, 4
    s_or_b32 s{s0}, s{s0}, s{s1}
    s_and_b32 s{s1}, s3, 8
    s_lshl_b32 s{s1}, s{s1}, 3
    s_or_b32 s{s0}, s{s0}, s{s1}         ; k0
    s_lshl_b32 s{s0}, s{s0}, 9           ; k0*512
    s_and_b32 s{s1}, s3, 3
    s_lshl_b32 s{s1}, s{s1}, 6           ; (w&3)<<1 <<5
    v_lshrrev_b32 v{vt}, 5, v1           ; L>>5
    v_mul_u32_u24 v{vt}, 544, v{vt}      ; (L>>5)*512 + (L>>5)<<5
    v_and_b32 v{vdst}, 31, v1
    v_lshlrev_b32 v{vdst}, 4, v{vdst}    ; j*16
    v_xor_b32 v{vdst}, v{vt}, v{vdst}
    v_xor_b32 v{vdst}, s{s1}, v{vdst}
    """)


def dma_w_issue(a, vsrc, srdw, s0, s1, goff, wb):
    for i in range(4):
        a(f"s_add_u32 m0, s{s0}, {wb + i * 8192}")
        a(f"s_add_u32 s{s1}, s{s0}, {goff + i * 8192}")
        a(f"buffer_load_dwordx4 v{vsrc}, s[{srdw}:{srdw+3}], s{s1} offen lds")


def gemm_baddr(a, vb, vt, st, wb):
    a(f"""
    v_lshrrev_b32 v{vt}, 2, v2           ; r
    v_mul_u32_u24 v{vb}, 544, v{vt}      ; r*512 + r*32
    v_lshl_add_u32 v{vb}, v3, 12, v{vb}  ; + g*8*512
    v_and_b32 v{vt}, 1, v3
    v_lshl_add_u32 v{vb}, v{vt}, 7, v{vb} ; + (g&1)<<2<<5
    v_and_b32 v{vt}, 3, v2
    v_lshl_add_u32 v{vb}, v{vt}, 3, v{vb} ; + c*8
    s_and_b32 s{st}, s3, 1
    s_lshl_b32 s{st}, s{st}, 8
    s_add_u32 s{st}, s{st}, {wb}
    v_add_u32 v{vb}, s{st}, v{vb}
    """)


def gemm16(a, vA, vB, vAcc, vb, vt):
    def reads(t):
        base = vB + 16 * (t & 1)
        if t == 0:
            ad = vb
        else:
            a(f"v_xor_b32 v{vt + (t & 1)}, {t << 5}, v{vb}")
            ad = vt + (t & 1)
        for ks in range(4):
            for h in range(2):
                r = base + 4 * ks + 2 * h
                a(f"ds_read_b64_tr_b16 v[{r}:{r+1}], v{ad} offset:{ks * 16384 + h * 2048}")
    reads(0)
    for t in range(8):
        if t < 7:
            reads(t + 1)
        base = vB + 16 * (t & 1)
        acc = vAcc + 4 * t
        for ks in range(4):
            rem = (8 if t < 7 else 0) + (3 - ks) * 2
            a(f"s_waitcnt lgkmcnt({rem})")
            c = "0" if ks == 0 else f"v[{acc}:{acc+3}]"
            a(f"v_mfma_f32_16x16x32_bf16 v[{acc}:{acc+3}], v[{vA+4*ks}:{vA+4*ks+3}], v[{base+4*ks}:{base+4*ks+3}], {c}")


K1_HIST = 0
K1_START = K1_HIST + 1024
K1_PM = K1_START + 1024
K1_STAGE = K1_PM + 256
K1_WB = 15360
assert K1_STAGE + CHS <= K1_WB
K1_LDS = K1_WB + 65536


def gen_k1():
    a = A()
    vA, vB, vAcc, vT = 20, 36, 68, 100
    sX, sW1, sDST, sSRC, sE, sW2, sWS = 36, 40, 44, 48, 52, 56, 60
    a("""
    s_cmp_ge_u32 s2, 256
    s_cbranch_scc1 K1_END
    s_load_dwordx16 s[4:19], s[0:1], 0
    s_load_dwordx2 s[22:23], s[0:1], 80
    """)
    common_ids(a)
    a(f"""
    v_mov_b32 v4, 0
    v_lshlrev_b32 v5, 2, v0
    v_cmp_gt_u32 vcc, 256, v0
    s_mov_b64 exec, vcc
    ds_write_b32 v5, v4 offset:{K1_HIST}
    ds_write_b32 v4, v4 offset:{K1_PM}
    s_mov_b64 exec, -1
    """)
    dma_w_setup(a, 4, 5, 24, 25)
    a("s_waitcnt lgkmcnt(0)")
    srd(a, sW1, 12, 13, 257 * 512)
    srd(a, sX, 4, 5, N * 256)
    dma_w_issue(a, 4, sW1, 24, 25, 0, K1_WB)
    a(f"""
    s_mul_i32 s26, s2, {NB}              ; first row of bucket
    s_lshr_b32 s27, s3, 1
    s_lshl_b32 s27, s27, 4               ; rt*16
    s_add_u32 s28, s26, s27
    v_add_u32 v5, s28, v2
    v_lshlrev_b32 v5, 8, v5
    v_lshl_add_u32 v5, v3, 4, v5
    """)
    a("s_cmp_ge_u32 s3, 14")
    a("s_cbranch_scc1 K1_NOA")
    for ks in range(4):
        a(f"buffer_load_dwordx4 v[{vA+4*ks}:{vA+4*ks+3}], v5, s[{sX}:{sX+3}], 0 offen offset:{64*ks}")
    a("K1_NOA:")
    srd(a, sDST, 10, 11, E * 4)
    srd(a, sSRC, 8, 9, E * 4)
    srd(a, sE, 6, 7, E * 2)
    srd(a, sWS, 22, 23, SCR_OFF)
    a(f"""
    s_mul_i32 s29, s2, {CH}
    s_sub_u32 s30, {E}, s29
    s_min_u32 s30, s30, {CH}
    s_lshr_b32 s30, s30, 1
    v_lshl_add_u32 v6, v0, 1, s29        ; first edge index
    v_lshlrev_b32 v7, 1, v6
    v_lshlrev_b32 v6, 2, v6
    v_cmp_gt_u32 s[32:33], s30, v0
    s_mov_b64 exec, s[32:33]
    buffer_load_dword v10, v7, s[{sE}:{sE+3}], 0 offen
    buffer_load_dwordx2 v[8:9], v6, s[{sSRC}:{sSRC+3}], 0 offen
    buffer_load_dwordx2 v[6:7], v6, s[{sDST}:{sDST+3}], 0 offen
    s_mov_b64 exec, -1
    """)
    srd(a, sW2, 16, 17, 65536)
    a(f"""
    s_cmp_lg_u32 s3, 15
    s_cbranch_scc1 K1_NOW2
    s_lshr_b32 s24, s2, 2                ; F = G>>6
    s_and_b32 s25, s2, 3                 ; g' = (G&63)>>4
    s_and_b32 s31, s24, 7                ; ks
    s_lshl_b32 s31, s31, 2
    s_add_u32 s31, s31, s25
    s_lshr_b32 s25, s31, 4               ; s
    s_and_b32 s31, s31, 15               ; l'
    s_lshl_b32 s25, s25, 7
    s_add_u32 s31, s31, s25              ; h0 = 128s + l'
    s_lshl_b32 s31, s31, 8               ; *256 bytes
    s_lshr_b32 s25, s24, 4               ; cp
    s_lshl_b32 s25, s25, 5
    s_bfe_u32 s24, s24, 0x10003          ; a
    s_lshl_b32 s24, s24, 2
    s_add_u32 s24, s24, s25              ; 32cp + 4a
    v_lshrrev_b32 v11, 2, v2
    v_lshlrev_b32 v11, 3, v11            ; 8*(m>>2)
    v_and_b32 v12, 3, v2
    v_add3_u32 v11, v11, v12, s24        ; col
    v_lshlrev_b32 v11, 1, v11
    s_mov_b64 exec, 0xffff
    """)
    for t in range(8):
        so = 31
        if t:
            a("s_add_u32 s31, s31, 4096")
        r = vA + (t >> 1)
        op = "buffer_load_short_d16_hi" if t & 1 else "buffer_load_ushort"
        if t & 1:
            a(f"buffer_load_ushort v{vA+4+(t>>1)}, v11, s[{sW2}:{sW2+3}], s31 offen")
        else:
            a(f"buffer_load_ushort v{r}, v11, s[{sW2}:{sW2+3}], s31 offen")
    a(f"""
    s_waitcnt vmcnt(0)
    v_lshl_or_b32 v{vA}, v{vA+4}, 16, v{vA}
    v_lshl_or_b32 v{vA+1}, v{vA+5}, 16, v{vA+1}
    v_lshl_or_b32 v{vA+2}, v{vA+6}, 16, v{vA+2}
    v_lshl_or_b32 v{vA+3}, v{vA+7}, 16, v{vA+3}
    s_lshl_b32 s24, s2, 8
    s_add_u32 s24, s24, {W2F_OFF}
    v_lshlrev_b32 v11, 4, v2
    buffer_store_dwordx4 v[{vA}:{vA+3}], v11, s[{sWS}:{sWS+3}], s24 offen
    s_mov_b64 exec, -1
K1_NOW2:
    """)
    gemm_baddr(a, 17, 18, 24, K1_WB)
    a(f"""
    s_mov_b32 s34, {NLOG2E:#x}
    s_mov_b32 s35, {NLOG2E:#x}
    s_mov_b32 s64, 42800
    s_mov_b32 s65, 0x07060100
    s_mov_b32 s66, 0x07060302
    s_waitcnt vmcnt(0) lgkmcnt(0)
    s_barrier
    """)
    a(f"""
    s_mov_b64 exec, s[32:33]
    v_mul_u32_u24 v11, s64, v6
    v_mul_u32_u24 v12, s64, v7
    v_lshrrev_b32 v11, 22, v11           ; bucket
    v_lshrrev_b32 v12, 22, v12
    v_mul_u32_u24 v13, {NB}, v11
    v_mul_u32_u24 v14, {NB}, v12
    v_sub_u32 v13, v6, v13               ; dloc
    v_sub_u32 v14, v7, v14
    v_lshlrev_b32 v11, 2, v11
    v_lshlrev_b32 v12, 2, v12
    v_lshlrev_b32 v15, 16, v10
    v_and_b32 v16, 0xffff0000, v10
    v_lshl_or_b32 v15, v13, 2, v15       ; e<<16 | dloc*4
    v_lshl_or_b32 v16, v14, 2, v16
    v_mov_b32 v10, 1
    ds_add_rtn_u32 v13, v11, v10 offset:{K1_HIST}
    ds_add_rtn_u32 v14, v12, v10 offset:{K1_HIST}
    s_mov_b64 exec, -1
    v_mov_b32 v19, 0
    s_cmp_ge_u32 s3, 14
    s_cbranch_scc1 K1_NOGEMM
    """)
    gemm16(a, vA, vB, vAcc, 17, 4)
    a(f"""
    s_sub_u32 s24, {N}, s26
    s_min_u32 s24, s24, {NB}
    v_lshl_add_u32 v4, v3, 2, s27
    v_add_u32 v5, s26, v4
    v_lshlrev_b32 v5, 8, v5
    v_lshl_add_u32 v5, v2, 4, v5
    s_and_b32 s25, s3, 1
    s_mul_i32 s25, s25, {PS}
    s_nop 1
    """)
    for r in range(0, 32, 2):
        a(f"v_pk_fma_f32 v[{vAcc+r}:{vAcc+r+1}], v[{vAcc+r}:{vAcc+r+1}], s[34:35], 0")
    for r in range(0, 32, 2):
        a(f"v_max3_f32 v19, |v{vAcc+r}|, |v{vAcc+r+1}|, v19")
    vL = vB
    for t in range(4):
        for ip in range(2):
            a(f"v_cvt_pk_bf16_f32 v{vL+2*t+ip}, v{vAcc+4*t+2*ip}, v{vAcc+4*t+2*ip+1}")
    for r in range(16, 32):
        a(f"v_add_u32 v{vAcc+r}, 0x8000, v{vAcc+r}")
    for i in range(4):
        for t in range(4):
            h = vAcc + 16 + 4 * t + i
            a(f"v_sub_u32_sdwa v{h}, v{h}, v{vL+2*t+(i>>1)} clamp dst_sel:DWORD dst_unused:UNUSED_PAD src0_sel:DWORD src1_sel:WORD_{i&1}")
        for t in range(4):
            h = vAcc + 16 + 4 * t + i
            a(f"v_perm_b32 v{vT+4*i+t}, v{h}, v{vL+2*t+(i>>1)}, s{65+(i&1)}")
        a(f"v_cmp_gt_i32 vcc, s24, v4")
        a(f"s_mov_b64 exec, vcc")
        a(f"buffer_store_dwordx4 v[{vT+4*i}:{vT+4*i+3}], v5, s[{sWS}:{sWS+3}], s25 offen offset:{256*i}")
        a(f"s_mov_b64 exec, -1")
        if i < 3:
            a("s_sub_u32 s24, s24, 1")
    row_max(a, 19)
    a(f"""
    v_mov_b32 v4, 0
    s_mov_b32 exec_lo, 0x80008000
    s_mov_b32 exec_hi, 0x80008000
    ds_max_u32 v4, v19 offset:{K1_PM}
    s_mov_b64 exec, -1
K1_NOGEMM:
    s_waitcnt lgkmcnt(0)
    s_barrier
    """)
    a(f"""
    v_lshlrev_b32 v4, 4, v1
    ds_read_b128 v[20:23], v4 offset:{K1_HIST}
    v_mov_b32 v5, 0
    ds_read_b32 v19, v5 offset:{K1_PM}
    s_waitcnt lgkmcnt(0)
    v_add_u32 v25, v20, v21              ; p2
    v_add_u32 v26, v25, v22              ; p3
    v_add_u32 v27, v26, v23              ; tot
    v_mov_b32 v28, v27
    """)
    wave_scan(a, [28])
    a(f"""
    v_sub_u32 v28, v28, v27              ; base
    v_add_u32 v29, v28, v20
    v_add_u32 v30, v28, v25
    v_add_u32 v31, v28, v26
    v_lshlrev_b32 v32, 3, v28
    v_lshlrev_b32 v33, 3, v29
    v_lshlrev_b32 v34, 3, v30
    v_lshlrev_b32 v35, 3, v31
    ds_write_b128 v4, v[32:35] offset:{K1_START}
    s_cmp_lg_u32 s3, 0
    s_cbranch_scc1 K1_NOTAB
    v_lshl_or_b32 v28, v20, 16, v28
    v_lshl_or_b32 v29, v21, 16, v29
    v_lshl_or_b32 v30, v22, 16, v30
    v_lshl_or_b32 v31, v23, 16, v31
    s_lshl_b32 s24, s2, 10
    s_add_u32 s24, s24, {TAB_OFF}
    buffer_store_dwordx4 v[28:31], v4, s[{sWS}:{sWS+3}], s24 offen
    s_lshl_b32 s24, s2, 2
    s_add_u32 s24, s24, {PMAX_OFF}
    s_mov_b64 exec, 1
    buffer_store_dword v19, v5, s[{sWS}:{sWS+3}], s24 offen
    s_mov_b64 exec, -1
K1_NOTAB:
    s_waitcnt lgkmcnt(0)
    s_mov_b64 exec, s[32:33]
    ds_read_b32 v11, v11 offset:{K1_START}
    ds_read_b32 v12, v12 offset:{K1_START}
    v_mov_b32 v36, v8
    v_mov_b32 v37, v15
    v_mov_b32 v38, v9
    v_mov_b32 v39, v16
    s_waitcnt lgkmcnt(0)
    v_lshl_add_u32 v11, v13, 3, v11
    v_lshl_add_u32 v12, v14, 3, v12
    ds_write_b64 v11, v[36:37] offset:{K1_STAGE}
    ds_write_b64 v12, v[38:39] offset:{K1_STAGE}
    s_mov_b64 exec, -1
    s_waitcnt lgkmcnt(0)
    s_barrier
    v_lshlrev_b32 v4, 4, v0
    v_cmp_gt_u32 vcc, {CHS // 16}, v0
    s_mov_b64 exec, vcc
    s_cbranch_execz K1_END
    ds_read_b128 v[20:23], v4 offset:{K1_STAGE}
    s_mul_i32 s24, s2, {CHS}
    s_add_u32 s24, s24, {REC_OFF}
    s_waitcnt lgkmcnt(0)
    buffer_store_dwordx4 v[20:23], v4, s[{sWS}:{sWS+3}], s24 offen
K1_END:
    s_endpgm
    """)
    return a.text(), 116, 72


ROWS = 1040
CNT = 0
SABS = CNT + 512
POS = SABS + 512
DEGT = POS + 512
INFO = DEGT + 512
MISC = INFO + 1600
WT = MISC + 64
LIST = WT + 1024
LISTCAP = 6144
QH = (LIST + LISTCAP * 8 + 128 + 255) // 256 * 256
K2_LDS = QH + 100 * ROWS
assert K2_LDS <= 163840
assert MISC % 16 == 0 and INFO % 16 == 0 and WT % 16 == 0


def gen_k2():
    U = OPT["U"]
    a = A()
    vA, vB, vAcc = 20, 36, 68
    vRec, vRank, vPos = 100, 112, 118
    vB1 = 10
    sX, sW1, sB1, sWS, sP, sOUT, sB2, sSCR = 36, 40, 44, 48, 52, 56, 60, 64
    sWG, sWAVE = 2, 3
    sROW0 = 26
    sBATCH = 68; sNBATCH = 69; sRECB = 70
    a("""
    s_cmp_ge_u32 s2, 256
    s_cbranch_scc1 K2_END
    s_load_dwordx16 s[4:19], s[0:1], 0
    s_load_dwordx2 s[20:21], s[0:1], 64
    s_load_dwordx2 s[22:23], s[0:1], 80
    """)
    common_ids(a)
    a(f"""
    v_mov_b32 v4, 0
    v_lshlrev_b32 v5, 2, v0
    v_cmp_gt_u32 vcc, 512, v0
    s_mov_b64 exec, vcc
    ds_write_b32 v5, v4 offset:{CNT}
    s_mov_b64 exec, 3
    v_mov_b32 v6, {LIST}
    v_mov_b32 v7, 0
    v_mul_u32_u24 v8, {ROWS}, v1
    v_add_u32 v8, {QH + 98 * ROWS}, v8
    v_mov_b32 v9, 0
    v_lshlrev_b32 v5, 4, v1
    ds_write_b128 v5, v[6:9] offset:{INFO + 98 * 16}
    v_mov_b32 v10, 0
    v_mov_b32 v11, 0
    v_mov_b32 v12, 0
    v_mov_b32 v13, 0
    ds_write_b128 v4, v[10:13] offset:{MISC}
    v_mov_b32 v14, 16
    ds_write_b32 v4, v14 offset:{MISC + 16}
    s_mov_b64 exec, -1
    """)
    dma_w_setup(a, 4, 5, 24, 25)
    a(f"""
    v_lshrrev_b32 v6, 2, v0              ; cell
    v_lshlrev_b32 v7, 10, v6
    s_lshl_b32 s30, s2, 2
    s_add_u32 s30, s30, {TAB_OFF}
    s_waitcnt lgkmcnt(0)
    """)
    srd(a, sWS, 22, 23, SCR_OFF)
    a(f"buffer_load_dword v124, v7, s[{sWS}:{sWS+3}], s30 offen")
    srd(a, sW1, 12, 13, 257 * 512)
    srd(a, sX, 4, 5, N * 256)
    srd(a, sB1, 14, 15, 512)
    dma_w_issue(a, 4, sW1, 24, 25, 128 * 512, QH)
    a(f"""
    s_mul_i32 s{sROW0}, s2, {NB}
    s_lshr_b32 s27, s3, 1
    s_lshl_b32 s27, s27, 4               ; rt*16
    s_add_u32 s28, s{sROW0}, s27
    v_add_u32 v5, s28, v2
    v_lshlrev_b32 v5, 8, v5
    v_lshl_add_u32 v5, v3, 4, v5
    v_mul_u32_u24 v125, {CHS}, v6
    v_and_b32 v126, 3, v0
    v_lshlrev_b32 v126, 1, v126            ; slot0 = 2j
    s_cmp_ge_u32 s3, 14
    s_cbranch_scc1 K2_AUXLD
    """)
    for ks in range(4):
        a(f"buffer_load_dwordx4 v[{vA+4*ks}:{vA+4*ks+3}], v5, s[{sX}:{sX+3}], 0 offen offset:{64*ks}")
    a(f"""
    s_and_b32 s24, s3, 1
    s_lshl_b32 s24, s24, 8
    v_lshlrev_b32 v5, 1, v2
    """)
    for t in range(8):
        a(f"buffer_load_ushort v{vB1+t}, v5, s[{sB1}:{sB1+3}], s24 offen offset:{32*t}")
    a(f"""
    s_waitcnt vmcnt(16)
    s_branch K2_RECLD
K2_AUXLD:
    v_subrev_u32 v5, 896, v0             ; 0..127
    v_lshlrev_b32 v8, 2, v5
    v_lshlrev_b32 v9, 3, v5
    s_mov_b32 s24, {256 * 512}
    s_mov_b32 s25, {PMAX_OFF}
    buffer_load_dword v{vA}, v8, s[{sW1}:{sW1+3}], s24 offen
    buffer_load_dwordx2 v[{vA+2}:{vA+3}], v9, s[{sWS}:{sWS+3}], s25 offen
    s_waitcnt vmcnt(6)
K2_RECLD:
    v_and_b32 v7, 0xffff, v124            ; start
    v_lshrrev_b32 v124, 16, v124           ; cnt
    v_add_u32 v7, v7, v126
    v_lshl_add_u32 v125, v7, 3, v125
    s_mov_b32 s{sRECB}, {REC_OFF}
    s_mov_b32 s{sBATCH}, 0
    v_mov_b32 v4, 0
    v_sub_u32 v127, v124, v126
    """)

    def rec_loads():
        for m in range(3):
            a(f"v_cmp_lt_i32 vcc, {8*m}, v127")
            a("s_mov_b64 exec, vcc")
            a(f"buffer_load_dwordx4 v[{vRec+4*m}:{vRec+4*m+3}], v125, s[{sWS}:{sWS+3}], s{sRECB} offen offset:{64*m}")
        a("s_mov_b64 exec, -1")
    rec_loads()
    gemm_baddr(a, 18, 19, 24, QH)
    a(f"""
    s_mov_b32 s34, {NLOG2E:#x}
    s_mov_b32 s35, {NLOG2E:#x}
    s_waitcnt vmcnt(3) lgkmcnt(0)
    s_barrier
    v_cmp_lt_u32 vcc, 24, v124
    s_mov_b64 exec, vcc
    ds_max_u32 v4, v124 offset:{MISC + 12}
    s_mov_b64 exec, -1
    s_cmp_ge_u32 s3, 14
    s_cbranch_scc1 K2_AUX
    """)
    gemm16(a, vA, vB, vAcc, 18, 8)
    for t in range(8):
        a(f"v_lshlrev_b32 v{vB1+t}, 16, v{vB1+t}")
    for t in range(0, 8, 2):
        a(f"v_pk_mul_f32 v[{vB1+t}:{vB1+t+1}], v[{vB1+t}:{vB1+t+1}], s[34:35]")
    a(f"""
    s_branch K2_HIST
K2_AUX:
    v_lshlrev_b32 v{vA+4}, 16, v{vA}
    v_and_b32 v{vA+5}, 0xffff0000, v{vA}
    v_pk_mul_f32 v[{vA+4}:{vA+5}], v[{vA+4}:{vA+5}], s[34:35]
    v_lshlrev_b32 v8, 1, v5              ; h
    v_and_b32 v9, 15, v8
    v_lshlrev_b32 v9, 4, v9              ; l*16
    v_bfe_u32 v10, v8, 4, 2
    v_lshl_add_u32 v9, v10, 2, v9        ; + (t&3)*4
    v_lshrrev_b32 v10, 6, v8             ; s*2 + (t>>2)
    v_lshl_add_u32 v9, v10, 8, v9
    ds_write_b32 v9, v{vA+4} offset:{WT}
    ds_write_b32 v9, v{vA+5} offset:{WT + 16}
    v_max3_f32 v10, |v{vA+4}|, |v{vA+5}|, 0
    v_max_f32 v11, v{vA+2}, v{vA+3}
    """)
    row_max(a, 10)
    row_max(a, 11)
    a(f"""
    s_mov_b32 exec_lo, 0x80008000
    s_mov_b32 exec_hi, 0x80008000
    ds_max_u32 v4, v10 offset:{MISC + 8}
    ds_max_u32 v4, v11 offset:{MISC}
    s_mov_b64 exec, -1
K2_HIST:
    """)
    a(f"""
K2_BATCH:
    v_mov_b32 v9, 1
    s_waitcnt vmcnt(0)
    """)
    for k in range(6):
        m, o = k >> 1, k & 1
        r1 = vRec + 4 * m + 2 * o + 1
        a(f"v_cmp_lt_i32 vcc, {8*m+o}, v127")
        a("s_mov_b64 exec, vcc")
        if k in (2, 4):
            a("s_cbranch_execz K2_HISTDONE")
        a(f"v_and_b32 v{vPos+k}, 0xffff, v{r1}")
        a(f"v_and_b32 v8, 0x7fff0000, v{r1}")
        a(f"ds_add_rtn_u32 v{vRank+k}, v{vPos+k}, v9")
        a(f"ds_add_f32 v{vPos+k}, v8 offset:{SABS - CNT}")
    a(f"""
K2_HISTDONE:
    s_mov_b64 exec, -1
    v_lshlrev_b32 v8, 2, v1
    s_waitcnt lgkmcnt(0)
    s_barrier
    ds_read_b32 v20, v8
    ds_read_b32 v21, v8 offset:256
    ds_read_b32 v30, v8 offset:{SABS - CNT}
    ds_read_b32 v31, v8 offset:{SABS - CNT + 256}
    v_sub_u32 v24, 127, v1
    v_sub_u32 v25, 63, v1
    s_waitcnt lgkmcnt(2)
    v_mov_b32 v22, v20
    v_mov_b32 v23, v21
    v_lshl_or_b32 v24, v20, 7, v24       ; key0
    v_lshl_or_b32 v25, v21, 7, v25       ; key1
    v_cmp_gt_u32 vcc, {NB - 64}, v1
    """)
    wave_scan(a, [22, 23])
    a(f"""
    v_cndmask_b32 v25, 0, v25, vcc
    v_readlane_b32 s24, v22, 63
    v_sub_u32 v22, v22, v20
    v_sub_u32 v23, v23, v21
    v_add_u32 v23, s24, v23
    v_mov_b32 v9, {LIST}
    v_lshl_add_u32 v22, v22, 3, v9
    v_lshl_add_u32 v23, v23, 3, v9
    ds_write_b32 v8, v22 offset:{POS - CNT}
    ds_write_b32 v8, v23 offset:{POS - CNT + 256}
    s_cmp_lg_u32 s3, 0
    s_cbranch_scc1 K2_NODEG
    ds_add_u32 v8, v20 offset:{DEGT - CNT}
    ds_add_u32 v8, v21 offset:{DEGT - CNT + 256}
K2_NODEG:
    """)
    for i in range(7):
        a(f"s_add_u32 s25, s3, {16 * (i & 3)}")
        a(f"v_readlane_b32 s{72+i}, v{24 + (i >> 2)}, s25")
    a("s_waitcnt lgkmcnt(0)")
    for k in range(6):
        m, o = k >> 1, k & 1
        a(f"v_cmp_lt_i32 vcc, {8*m+o}, v127")
        a("s_mov_b64 exec, vcc")
        if k in (2, 4):
            a("s_cbranch_execz K2_POSDONE")
        a(f"ds_read_b32 v{vPos+k}, v{vPos+k} offset:{POS - CNT}")
    a("""
K2_POSDONE:
    s_mov_b64 exec, -1
    """)
    for i in range(7):
        a(f"v_cmp_lt_u32 s[80:81], s{72+i}, v24")
        a(f"v_cmp_lt_u32 s[82:83], s{72+i}, v25")
        a(f"s_add_u32 m0, s3, {16 * (i & 3)}")
        a("s_bcnt1_i32_b64 s80, s[80:81]")
        a("s_bcnt1_i32_b64 s82, s[82:83]")
        a("s_add_u32 s80, s80, s82")
        a(f"v_writelane_b32 v{32 + (i >> 2)}, s80, m0")
    a(f"""
    v_cmp_eq_u32 s[80:81], s3, v2
    v_cmp_gt_u32 vcc, {NB - 64}, v1
    v_mov_b32 v9, {INFO}
    v_lshl_add_u32 v32, v32, 4, v9
    v_lshl_add_u32 v33, v33, 4, v9
    s_and_b64 s[82:83], s[80:81], vcc
    v_mov_b32 v36, v22
    v_mov_b32 v37, v20
    v_mul_u32_u24 v38, {ROWS}, v1
    v_add_u32 v38, {QH}, v38
    v_mov_b32 v39, v30
    v_mov_b32 v40, v23
    v_mov_b32 v41, v21
    v_add_u32 v42, {64 * ROWS}, v38
    v_mov_b32 v43, v31
    s_mov_b64 exec, s[80:81]
    ds_write_b128 v32, v[36:39]
    s_mov_b64 exec, s[82:83]
    ds_write_b128 v33, v[40:43]
    s_mov_b64 exec, -1
    s_waitcnt lgkmcnt(2)
    """)
    for k in range(6):
        m, o = k >> 1, k & 1
        r0 = vRec + 4 * m + 2 * o
        a(f"v_cmp_lt_i32 vcc, {8*m+o}, v127")
        a("s_mov_b64 exec, vcc")
        if k in (2, 4):
            a("s_cbranch_execz K2_SCATDONE")
        a(f"v_lshl_add_u32 v{vPos+k}, v{vRank+k}, 3, v{vPos+k}")
        a(f"v_and_b32 v{r0+1}, 0xffff0000, v{r0+1}")
        a(f"ds_write_b64 v{vPos+k}, v[{r0}:{r0+1}]")
    a(f"""
K2_SCATDONE:
    s_mov_b64 exec, -1
    s_cmp_lg_u32 s{sBATCH}, 0
    s_cbranch_scc1 K2_NOQ
    s_cmp_ge_u32 s3, 14
    s_cbranch_scc1 K2_NOQ
    ; Q' epilogue
    v_lshl_add_u32 v8, v3, 2, s27
    v_mul_u32_u24 v9, {ROWS}, v8
    v_lshl_add_u32 v9, v2, 4, v9
    s_and_b32 s24, s3, 1
    s_lshl_b32 s24, s24, 9
    s_add_u32 s24, s24, {QH}
    v_add_u32 v9, s24, v9
    v_mov_b32 v19, 0
    """)
    for i in range(4):
        o = 36 + 8 * i
        for t in range(8):
            a(f"v_fma_f32 v{o+t}, v{vAcc+4*t+i}, s34, v{vB1+t}")
        for t in range(0, 8, 2):
            a(f"v_max3_f32 v19, |v{o+t}|, |v{o+t+1}|, v19")
        a(f"v_cmp_gt_i32 vcc, {NB - i}, v8")
        a("s_mov_b64 exec, vcc")
        a(f"ds_write_b128 v9, v[{o}:{o+3}] offset:{i*ROWS}")
        a(f"ds_write_b128 v9, v[{o+4}:{o+7}] offset:{i*ROWS+256}")
        a("s_mov_b64 exec, -1")
    row_max(a, 19)
    a(f"""
    v_mov_b32 v4, 0
    s_mov_b32 exec_lo, 0x80008000
    s_mov_b32 exec_hi, 0x80008000
    ds_max_u32 v4, v19 offset:{MISC + 4}
    s_mov_b64 exec, -1
K2_NOQ:
    """)
    vPair = 4
    vE = vPair + 2 * U
    vAddr, vDeg, vH, vL16, vK1, vWM, vG16, vWT = vE + 2, vE + 3, vE + 4, vE + 5, vE + 6, vE + 7, vE + 8, vE + 9
    assert vWT < 26 or U > 4
    vI = 100
    keep = [26, 27, 28, 29]
    if U > 4:
        vAddr, vDeg, vH, vL16, vK1, vWM, vG16, vWT = 104, 105, 106, 107, 108, 109, 110, 111
        assert vE + 1 < 26
    vQ, vW, vT, vX, vN, vD = 32, 40, 48, 56, 64, 72
    vP = 80 if U <= 4 else 112 - 0
    if U > 4:
        raise SystemExit("U>4 register map not done")
    sQ, sS, sD0, sD3, sSafe, sSl, sSEL, sONE = 72, 73, 74, 75, 76, 77, 78, 80
    srd(a, sP, 22, 23, N, stride=256)
    a(f"""
    v_mov_b32 v{vI}, {MISC}
    s_waitcnt lgkmcnt(0)
    s_barrier
    ds_read_b128 v[{vI}:{vI+3}], v{vI}
    v_lshlrev_b32 v{vL16}, 4, v2
    v_mov_b32 v{vG16}, {INFO}
    v_lshl_add_u32 v{vG16}, v3, 4, v{vG16}
    v_add_u32 v{vWT}, {WT}, v{vL16}
    """)
    for j in range(U):
        a(f"v_mov_b32 v{vPair+2*j+1}, v{vL16}")
    a(f"""
    s_mov_b32 s{sSEL}, 0x00003f80
    s_mov_b32 s{sQ}, s3
    s_waitcnt lgkmcnt(0)
    v_readfirstlane_b32 s24, v{vI+3}
    v_add_f32 v{vK1}, v{vI}, v{vI+1}
    v_add_f32 v{vK1}, 1.0, v{vK1}
    v_mov_b32 v{vWM}, v{vI+2}
    s_add_u32 s24, s24, 23
    s_mul_i32 s24, s24, 2731
    s_lshr_b32 s{sNBATCH}, s24, 16
    s_cmp_le_u32 s{sNBATCH}, 1
    s_cbranch_scc1 K2_ITEM
    v_mov_b32 v{vK1}, 0x7f800000         ; several batches: every item takes the plain path
K2_ITEM:
    s_cmp_ge_u32 s{sQ}, 50
    s_cbranch_scc1 K2_DONE
    s_cmp_ge_u32 s{sQ}, 25
    s_cselect_b32 s24, 25, 0
    s_cselect_b32 s25, 512, 0
    s_cselect_b32 s{sSl}, {PS}, 0
    s_sub_u32 s24, s{sQ}, s24
    s_lshl_b32 s24, s24, 6
    v_add_u32 v{vI}, s24, v{vG16}
    ds_read_b128 v[{vI}:{vI+3}], v{vI}
    v_add_u32 v{vH}, s25, v{vWT}
    ds_read_b128 v[{vW}:{vW+3}], v{vH}
    ds_read_b128 v[{vW+4}:{vW+7}], v{vH} offset:256
    s_mov_b32 s{sP+2}, {N}
    s_waitcnt lgkmcnt(2)
    v_mov_b32 v{vAddr}, v{vI}
    """)
    for j in range(U):
        a(f"ds_read_b32 v{vPair+2*j}, v{vI} offset:{8*j}")
    a(f"""
    v_mov_b32 v{vDeg}, v{vI+1}
    v_add3_u32 v{vH}, v{vI+2}, s25, v{vL16}
    v_readlane_b32 s{sD0}, v{vI+1}, 0
    v_readlane_b32 s{sD3}, v{vI+1}, 48
    ds_read_b32 v{vE}, v{vI} offset:4
    ds_read_b128 v[{vQ}:{vQ+3}], v{vH}
    ds_read_b128 v[{vQ+4}:{vQ+7}], v{vH} offset:256
    v_cvt_f32_u32 v{vI}, v{vI+1}
    v_mul_f32 v{vI+3}, v{vWM}, v{vI+3}
    v_fma_f32 v{vI}, v{vI}, v{vK1}, v{vI+3}
    """)
    for j in range(U):
        a(f"s_waitcnt lgkmcnt({U + 2 - j})")
        a(f"buffer_load_dwordx4 v[{vP+4*j}:{vP+4*j+3}], v[{vPair+2*j}:{vPair+2*j+1}], s[{sP}:{sP+3}], s{sSl} idxen offen")
    a(f"""
    ds_read_b32 v{vPair}, v{vAddr} offset:{8*U}
    v_cmp_nge_f32 vcc, {BOUND:#x}, v{vI}
    s_min_u32 s{sD0}, s{sD0}, {LISTCAP}
    s_sub_u32 s24, s{sD0}, {U}
    s_min_i32 s{sSafe}, s24, s{sD3}
    s_cmp_gt_i32 s24, 0
    s_cselect_b32 s{sP+2}, {N}, 0
    s_mov_b32 s{sS}, 0
    s_cbranch_vccnz K2_P_START
    s_cmp_lg_u32 s{sD3}, 0
    s_cbranch_scc1 K2_F_FIRST
    """)
    for r in range(8):
        a(f"v_mov_b32 v{vN+r}, 0")
        a(f"v_mov_b32 v{vD+r}, 1.0")
    a(f"""
    s_cmp_eq_u32 s{sD0}, 0
    s_cbranch_scc1 K2_F_FLUSH
    v_cmpx_lt_u32 vcc, 0, v{vDeg}
    """)

    def step(j, mode):
        P = vP + 4 * j
        T = vN if mode == "first" else vT
        eh = j & 1
        jn = (j + 1) % U
        osel = "op_sel_hi:[1,0,1]" if eh == 0 else "op_sel:[0,1,0] op_sel_hi:[1,1,1]"
        a("s_waitcnt lgkmcnt(0)")
        for r in range(0, 8, 2):
            a(f"v_pk_fma_f32 v[{T+r}:{T+r+1}], v[{vW+r}:{vW+r+1}], v[{vE}:{vE+1}], v[{vQ+r}:{vQ+r+1}] {osel}")
        a(f"ds_read_b32 v{vE + (eh ^ 1)}, v{vAddr} offset:{8*(j+1)+4}")
        a(f"s_waitcnt vmcnt({U-1})")
        if mode != "plain":
            for p in range(4):
                a(f"v_dot2_f32_bf16 v{T+p}, v{P+p}, s{sSEL}, v{T+p}")
            a(f"v_pk_add_f32 v[{T+4}:{T+5}], v[{P}:{P+1}], v[{T+4}:{T+5}]")
            a(f"v_pk_add_f32 v[{T+6}:{T+7}], v[{P+2}:{P+3}], v[{T+6}:{T+7}]")
        else:
            for p in range(4):
                a(f"v_lshlrev_b32 v{vX+p}, 16, v{P+p}")
            a(f"v_pk_add_f32 v[{T+4}:{T+5}], v[{P}:{P+1}], v[{T+4}:{T+5}]")
            a(f"v_pk_add_f32 v[{T+6}:{T+7}], v[{P+2}:{P+3}], v[{T+6}:{T+7}]")
            a(f"v_pk_add_f32 v[{T}:{T+1}], v[{vX}:{vX+1}], v[{T}:{T+1}]")
            a(f"v_pk_add_f32 v[{T+2}:{T+3}], v[{vX+2}:{vX+3}], v[{T+2}:{T+3}]")
        a(f"buffer_load_dwordx4 v[{P}:{P+3}], v[{vPair+2*j}:{vPair+2*j+1}], s[{sP}:{sP+3}], s{sSl} idxen offen")
        a(f"ds_read_b32 v{vPair+2*jn}, v{vAddr} offset:{8*(j+1+U)}")
        for r in (4, 5, 6, 7, 0, 1, 2, 3):
            a(f"v_exp_f32 v{vX+r}, v{T+r}")
        order = (4, 6, 0, 2)
        if mode == "first":
            for r in order:
                a(f"v_pk_add_f32 v[{vD+r}:{vD+r+1}], v[{vX+r}:{vX+r+1}], 1.0 op_sel_hi:[1,0]")
        elif mode == "fast":
            for r in order:
                a(f"v_pk_fma_f32 v[{vN+r}:{vN+r+1}], v[{vN+r}:{vN+r+1}], v[{vX+r}:{vX+r+1}], v[{vN+r}:{vN+r+1}]")
            for r in order:
                a(f"v_pk_fma_f32 v[{vN+r}:{vN+r+1}], v[{T+r}:{T+r+1}], v[{vD+r}:{vD+r+1}], v[{vN+r}:{vN+r+1}]")
            for r in order:
                a(f"v_pk_fma_f32 v[{vD+r}:{vD+r+1}], v[{vD+r}:{vD+r+1}], v[{vX+r}:{vX+r+1}], v[{vD+r}:{vD+r+1}]")
        else:
            for r in order:
                a(f"v_pk_add_f32 v[{vX+r}:{vX+r+1}], v[{vX+r}:{vX+r+1}], 1.0 op_sel_hi:[1,0]")
            for r in (4, 5, 6, 7, 0, 1, 2, 3):
                a(f"v_rcp_f32 v{vX+r}, v{vX+r}")
            for r in order:
                a(f"v_pk_fma_f32 v[{vN+r}:{vN+r+1}], v[{T+r}:{T+r+1}], v[{vX+r}:{vX+r+1}], v[{vN+r}:{vN+r+1}]")
        if j == U - 1:
            a(f"v_add_u32 v{vAddr}, {8*U}, v{vAddr}")
        a(f"s_add_u32 s{sS}, s{sS}, 1")
        a(f"s_cmp_ge_i32 s{sS}, s{sSafe}")

    def loop(pfx, mode):
        tails = []
        if mode == "fast":
            a(f"{pfx}_FIRST:")
            step(0, "first")
            a(f"s_cbranch_scc1 {pfx}_T0")
            seq = list(range(1, U)) + [0]
        else:
            seq = list(range(U))
        for j in seq:
            a(f"{pfx}_S{j}:")
            step(j, mode)
            if j == seq[-1]:
                a(f"s_cbranch_scc0 {pfx}_S{seq[0]}")
            else:
                a(f"s_cbranch_scc1 {pfx}_T{j}")
        for j in [seq[-1]] + seq[:-1]:
            a(f"""
{pfx}_T{j}:
    s_cmp_ge_u32 s{sS}, s{sD0}
    s_cbranch_scc1 {pfx}_FLUSH
    v_cmpx_lt_u32 vcc, s{sS}, v{vDeg}
    s_add_u32 s24, s{sS}, {U}
    s_cmp_lt_u32 s24, s{sD0}
    s_cselect_b32 s{sP+2}, {N}, 0
    s_branch {pfx}_S{(j+1) % U}
            """)

    loop("K2_F", "fast")
    a(f"""
K2_F_FLUSH:
    s_mov_b64 exec, 1
    v_mov_b32 v{vI}, {MISC}
    v_mov_b32 v{vI+1}, 1
    ds_add_rtn_u32 v{vI}, v{vI}, v{vI+1} offset:16
    s_mov_b64 exec, -1
    """)
    for r in range(8):
        a(f"v_rcp_f32 v{vX+r}, v{vD+r}")
    for r in range(0, 8, 2):
        a(f"v_pk_mul_f32 v[{vN+r}:{vN+r+1}], v[{vN+r}:{vN+r+1}], v[{vX+r}:{vX+r+1}]")
    a("K2_WRH:")
    for r in range(4):
        a(f"v_cvt_pk_bf16_f32 v{vX+r}, v{vN+2*r}, v{vN+2*r+1}")
    a(f"""
    ds_write_b128 v{vH}, v[{vX}:{vX+3}]
K2_NEXT:
    s_waitcnt lgkmcnt(0)
    v_readfirstlane_b32 s{sQ}, v{vI}
    s_branch K2_ITEM
K2_P_START:
    """)
    for r in range(8):
        a(f"v_mov_b32 v{vN+r}, 0")
    a(f"""
    s_cmp_eq_u32 s{sD0}, 0
    s_cbranch_scc1 K2_P_FLUSH
    v_cmpx_lt_u32 vcc, 0, v{vDeg}
    """)
    loop("K2_P", "plain")
    a(f"""
K2_P_FLUSH:
    s_mov_b64 exec, 1
    v_mov_b32 v{vI}, {MISC}
    v_mov_b32 v{vI+1}, 1
    ds_add_rtn_u32 v{vI}, v{vI}, v{vI+1} offset:16
    s_mov_b64 exec, -1
    s_cmp_le_u32 s{sNBATCH}, 1
    s_cbranch_scc1 K2_WRH
    """)
    a(f"""
    s_mul_i32 s24, s2, {SCR_STRIDE}
    s_add_u32 s24, s24, {SCR_OFF - QH}
    s_mov_b32 s{sSCR}, s22
    s_mov_b32 s{sSCR+1}, s23
    s_mov_b32 s{sSCR+2}, {WS_USED}
    s_mov_b32 s{sSCR+3}, 0x00020000
    v_add_u32 v{vH}, v{vH}, v{vL16}
    s_cmp_eq_u32 s{sBATCH}, 0
    s_cbranch_scc1 K2_P_ST
    buffer_load_dwordx4 v[{vX}:{vX+3}], v{vH}, s[{sSCR}:{sSCR+3}], s24 offen
    buffer_load_dwordx4 v[{vX+4}:{vX+7}], v{vH}, s[{sSCR}:{sSCR+3}], s24 offen offset:16
    s_waitcnt vmcnt(0)
    """)
    for r in range(0, 8, 2):
        a(f"v_pk_add_f32 v[{vN+r}:{vN+r+1}], v[{vN+r}:{vN+r+1}], v[{vX+r}:{vX+r+1}]")
    a(f"""
K2_P_ST:
    buffer_store_dwordx4 v[{vN}:{vN+3}], v{vH}, s[{sSCR}:{sSCR+3}], s24 offen
    buffer_store_dwordx4 v[{vN+4}:{vN+7}], v{vH}, s[{sSCR}:{sSCR+3}], s24 offen offset:16
    s_waitcnt vmcnt(0)
    s_branch K2_NEXT
    """)
    vF = 32
    a(f"""
K2_DONE:
    s_add_u32 s{sBATCH}, s{sBATCH}, 1
    s_cmp_ge_u32 s{sBATCH}, s{sNBATCH}
    s_cbranch_scc1 K2_FINAL
    s_waitcnt vmcnt(0)
    s_add_u32 s{sRECB}, s{sRECB}, 192
    v_subrev_u32 v127, 24, v127
    """)
    rec_loads()
    a(f"""
    s_barrier
    v_mov_b32 v4, 0
    v_lshlrev_b32 v5, 2, v0
    v_cmp_gt_u32 vcc, 256, v0
    s_mov_b64 exec, vcc
    ds_write_b32 v5, v4
    s_mov_b64 exec, 1
    v_mov_b32 v5, {MISC}
    v_mov_b32 v6, 16
    ds_write_b32 v5, v6 offset:16
    s_mov_b64 exec, -1
    s_waitcnt lgkmcnt(0)
    s_barrier
    s_branch K2_BATCH
K2_FINAL:
    s_waitcnt vmcnt(0)
    s_and_b32 s24, s3, 3                 ; cp
    s_lshl_b32 s25, s24, 14
    s_add_u32 s25, s25, {W2F_OFF}
    v_lshlrev_b32 v4, 4, v1
    """)
    for f in range(16):
        if f and f % 4 == 0:
            a("s_add_u32 s25, s25, 4096")
        a(f"buffer_load_dwordx4 v[{vF+4*f}:{vF+4*f+3}], v4, s[{sWS}:{sWS+3}], s25 offen offset:{1024*(f%4)}")
    srd(a, sB2, 18, 19, 256)
    srd(a, sOUT, 20, 21, N * 256)
    a(f"""
    s_lshl_b32 s24, s24, 6
    v_lshlrev_b32 v5, 4, v3              ; g*16
    buffer_load_dwordx4 v[8:11], v5, s[{sB2}:{sB2+3}], s24 offen
    s_lshr_b32 s27, s3, 2
    s_lshl_b32 s27, s27, 4               ; first row tile * 16
    v_add_u32 v6, s27, v2
    v_mul_u32_u24 v7, {ROWS}, v6
    v_add_u32 v7, v7, v5
    v_add_u32 v7, {QH}, v7
    v_lshlrev_b32 v20, 2, v6
    v_add_u32 v21, s{sROW0}, v6
    v_lshl_add_u32 v21, v21, 8, v5
    s_mov_b32 s34, {NLN2:#x}
    s_barrier
    s_cmp_le_u32 s{sNBATCH}, 1
    s_cbranch_scc1 K2_GEMM2
    s_mul_i32 s28, s2, {SCR_STRIDE}
    s_add_u32 s28, s28, {SCR_OFF}
    s_mov_b32 s{sSCR}, s22
    s_mov_b32 s{sSCR+1}, s23
    s_mov_b32 s{sSCR+2}, {WS_USED}
    s_mov_b32 s{sSCR+3}, 0x00020000
    v_and_b32 v22, 1, v3
    v_lshlrev_b32 v22, 9, v22
    v_lshl_add_u32 v22, v2, 4, v22       ; s*512 + l*16
    v_lshl_add_u32 v23, v2, 4, v22       ; s*512 + l*32
    s_mov_b32 s29, s3
K2_CONV:
    s_mul_i32 s30, s29, {ROWS}
    s_add_u32 s31, s30, s28
    buffer_load_dwordx4 v[100:103], v23, s[{sSCR}:{sSCR+3}], s31 offen
    buffer_load_dwordx4 v[104:107], v23, s[{sSCR}:{sSCR+3}], s31 offen offset:16
    s_add_u32 s30, s30, {QH}
    v_add_u32 v24, s30, v22
    s_waitcnt vmcnt(0)
    v_cvt_pk_bf16_f32 v100, v100, v101
    v_cvt_pk_bf16_f32 v101, v102, v103
    v_cvt_pk_bf16_f32 v102, v104, v105
    v_cvt_pk_bf16_f32 v103, v106, v107
    ds_write_b128 v24, v[100:103]
    s_add_u32 s29, s29, 16
    s_cmp_lt_u32 s29, {NB}
    s_cbranch_scc1 K2_CONV
    s_waitcnt lgkmcnt(0)
    s_barrier
K2_GEMM2:
    """)
    vHB = 96
    vO = 24
    for rt in range(2):
        off = rt * 64 * ROWS
        if rt == 1:
            a("s_cmp_ge_u32 s3, 12")
            a("s_cbranch_scc1 K2_END")
            a(f"v_add_u32 v7, {off}, v7")
            a(f"v_add_u32 v21, {64 * 256}, v21")
        a(f"ds_read_b32 v22, v20 offset:{DEGT + rt * 256}")
        for ks in range(8):
            a(f"ds_read_b128 v[{vHB+4*ks}:{vHB+4*ks+3}], v7 offset:{(ks >> 2) * 512 + (ks & 3) * 64}")
        if rt == 0:
            a("s_waitcnt vmcnt(0)")
            for p in range(4):
                a(f"v_lshlrev_b32 v{12+2*p}, 16, v{8+p}")
                a(f"v_and_b32 v{13+2*p}, 0xffff0000, v{8+p}")
        for ks in range(8):
            a(f"s_waitcnt lgkmcnt({7-ks})")
            for aa in range(2):
                f = vF + 4 * (aa * 8 + ks)
                c = "0" if ks == 0 else f"v[{vO+4*aa}:{vO+4*aa+3}]"
                a(f"v_mfma_f32_16x16x32_bf16 v[{vO+4*aa}:{vO+4*aa+3}], v[{f}:{f+3}], v[{vHB+4*ks}:{vHB+4*ks+3}], {c}")
        a("v_cvt_f32_u32 v22, v22")
        a(f"v_cmp_gt_u32 vcc, {NB - 64 * rt}, v6")
        a("s_nop 5")
        for r in range(8):
            a(f"v_mul_f32 v{vO+r}, s34, v{vO+r}")
        for r in range(8):
            a(f"v_fmac_f32 v{vO+r}, v22, v{12+r}")
        for r in range(4):
            a(f"v_cvt_pk_bf16_f32 v{vHB+r}, v{vO+2*r}, v{vO+2*r+1}")
        a("s_mov_b64 exec, vcc")
        a(f"buffer_store_dwordx4 v[{vHB}:{vHB+3}], v21, s[{sOUT}:{sOUT+3}], s24 offen")
        a("s_mov_b64 exec, -1")
        if rt == 0:
            a("s_nop 1")
    a("""
K2_END:
    s_endpgm
    """)
    return a.text(), 128, 96


HEADER = """; Kernarg layout for this problem (88 bytes, ptrs only, base s[0:1]):
"""


def kd(name, vgpr, sgpr):
    return f""".amdhsa_kernel {name}
  .amdhsa_next_free_vgpr {vgpr}
  .amdhsa_next_free_sgpr {sgpr}
  .amdhsa_accum_offset {(vgpr + 3) // 4 * 4}
  .amdhsa_group_segment_fixed_size 0
  .amdhsa_kernarg_size 88
  .amdhsa_user_sgpr_count 2
  .amdhsa_user_sgpr_kernarg_segment_ptr 1
  .amdhsa_system_sgpr_workgroup_id_x 1
.end_amdhsa_kernel
"""


def build():
    k1, v1, s1 = gen_k1()
    k2, v2, s2 = gen_k2()
    n1 = "mpnn_prep_kernel"
    n2 = "gather_scatter__edge_featured_mpnn_mpnn__graph_kernel"
    out = HEADER
    out += f"; @launch kernel={n1} grid=(256,1,1) block=(1024,1,1) lds={K1_LDS}\n"
    out += f"; @launch kernel={n2} grid=(256,1,1) block=(1024,1,1) lds={K2_LDS}\n"
    out += '.amdgcn_target "amdgcn-amd-amdhsa--gfx950"\n.text\n'
    for n, k in ((n1, k1), (n2, k2)):
        out += f".globl {n}\n.p2align 8\n.type {n},@function\n{n}:\n" + k
    out += '.section .rodata,"a"\n.p2align 6\n' + kd(n1, v1, s1) + ".p2align 6\n" + kd(n2, v2, s2)
    return out


if __name__ == "__main__":
    path = sys.argv[1] if len(sys.argv) > 1 else "gather_scatter__edge_featured_mpnn_mpnn__graph.s"
    for kv in sys.argv[2:]:
        k, v = kv.split("=")
        OPT[k] = int(v)
    open(path, "w").write(build())
    print("wrote", path, "K1_LDS", K1_LDS, "K2_LDS", K2_LDS)
```

```python
import sys

N = 25000; E = 400000
NB = 98
CH = 1564
CHS = 12544
PS = N * 256
P_OFF = 0
REC_OFF = 2 * PS
TAB_OFF = REC_OFF + 256 * CHS
W2F_OFF = TAB_OFF + 256 * 1024
PMAX_OFF = W2F_OFF + 65536
SCR_OFF = 0x1000000
SCR_STRIDE = 104448
WS_USED = SCR_OFF + 256 * SCR_STRIDE
NLOG2E = 0xbfb8aa3b
NLN2 = 0xbf317218
BOUND = 0x42dc0000

STAMP_OFF = 0x3000000
OPT = dict(U=4, stamps=False)


class A:
    def __init__(self):
        self.l = []

    def __call__(self, s):
        for x in s.strip("\n").split("\n"):
            x = x.rstrip()
            if not x.strip():
                continue
            if x.strip().endswith(":") and not x.strip().startswith(";"):
                self.l.append(x.strip())
            else:
                self.l.append("    " + x.strip())

    def text(self):
        return "\n".join(self.l) + "\n"


def stamp(a, i):
    if OPT["stamps"]:
        a(f"""
        s_memrealtime s[98:99]
        s_waitcnt lgkmcnt(0)
        s_mov_b32 s{84+i}, s98
        """)


def stamp_init(a):
    if OPT["stamps"]:
        for i in range(12):
            a(f"s_mov_b32 s{84+i}, 0")


def stamp_flush(a, kern):
    if OPT["stamps"]:
        a(f"""
        s_mov_b64 exec, -1
        s_mov_b32 s4, s22
        s_mov_b32 s5, s23
        s_mov_b32 s6, 0x8000000
        s_mov_b32 s7, 0x00020000
        s_lshl_b32 s8, s2, 4
        s_add_u32 s8, s8, s3
        s_lshl_b32 s8, s8, 6
        s_add_u32 s8, s8, {STAMP_OFF + kern * 256 * 16 * 64}
        v_mov_b32 v0, 0
        s_mov_b64 exec, 1
        """)
        for i in range(12):
            a(f"v_mov_b32 v1, s{84+i}")
            a(f"buffer_store_dword v1, v0, s[4:7], s8 offen offset:{4*i}")


def srd(a, d, lo, hi, size, stride=0):
    a(f"s_mov_b32 s{d}, s{lo}")
    if stride:
        a(f"s_and_b32 s{d+1}, s{hi}, 0xffff")
        a(f"s_or_b32 s{d+1}, s{d+1}, {stride << 16:#x}")
    else:
        a(f"s_mov_b32 s{d+1}, s{hi}")
    a(f"s_mov_b32 s{d+2}, {size}")
    a(f"s_mov_b32 s{d+3}, 0x00020000")


def wave_scan(a, regs):
    steps = ["row_shr:1 row_mask:0xf", "row_shr:2 row_mask:0xf", "row_shr:4 row_mask:0xf", "row_shr:8 row_mask:0xf",
             "row_bcast:15 row_mask:0xa", "row_bcast:31 row_mask:0xc"]
    for st in steps:
        a("s_nop 1" if len(regs) == 1 else "s_nop 0")
        for r in regs:
            a(f"v_add_u32_dpp v{r}, v{r}, v{r} {st} bank_mask:0xf")


def row_max(a, r):
    for sh in (1, 2, 4, 8):
        a("s_nop 1")
        a(f"v_max_f32_dpp v{r}, v{r}, v{r} row_shr:{sh} row_mask:0xf bank_mask:0xf")


def common_ids(a):
    a("""
    v_lshrrev_b32 v1, 6, v0
    v_and_b32 v2, 15, v0               ; l16
    v_readfirstlane_b32 s3, v1         ; wave
    v_and_b32 v1, 63, v0               ; lane
    v_lshrrev_b32 v3, 4, v1            ; g
    """)


def dma_w_setup(a, vdst, vt, s0, s1):
    a(f"""
    s_and_b32 s{s0}, s3, 1
    s_lshl_b32 s{s0}, s{s0}, 1
    s_and_b32 s{s1}, s3, 2
    s_lshl_b32 s{s1}, s{s1}, 2
    s_or_b32 s{s0}, s{s0}, s{s1}
    s_and_b32 s{s1}, s3, 4
    s_or_b32 s{s0}, s{s0}, s{s1}
    s_and_b32 s{s1}, s3, 8
    s_lshl_b32 s{s1}, s{s1}, 3
    s_or_b32 s{s0}, s{s0}, s{s1}         ; k0
    s_lshl_b32 s{s0}, s{s0}, 9           ; k0*512
    s_and_b32 s{s1}, s3, 3
    s_lshl_b32 s{s1}, s{s1}, 6           ; (w&3)<<1 <<5
    v_lshrrev_b32 v{vt}, 5, v1           ; L>>5
    v_mul_u32_u24 v{vt}, 544, v{vt}      ; (L>>5)*512 + (L>>5)<<5
    v_and_b32 v{vdst}, 31, v1
    v_lshlrev_b32 v{vdst}, 4, v{vdst}    ; j*16
    v_xor_b32 v{vdst}, v{vt}, v{vdst}
    v_xor_b32 v{vdst}, s{s1}, v{vdst}
    """)


def dma_w_issue(a, vsrc, srdw, s0, s1, goff, wb):
    for i in range(4):
        a(f"s_add_u32 m0, s{s0}, {wb + i * 8192}")
        a(f"s_add_u32 s{s1}, s{s0}, {goff + i * 8192}")
        a(f"buffer_load_dwordx4 v{vsrc}, s[{srdw}:{srdw+3}], s{s1} offen lds")


def gemm_baddr(a, vb, vt, st, wb):
    a(f"""
    v_lshrrev_b32 v{vt}, 2, v2           ; r
    v_mul_u32_u24 v{vb}, 544, v{vt}      ; r*512 + r*32
    v_lshl_add_u32 v{vb}, v3, 12, v{vb}  ; + g*8*512
    v_and_b32 v{vt}, 1, v3
    v_lshl_add_u32 v{vb}, v{vt}, 7, v{vb} ; + (g&1)<<2<<5
    v_and_b32 v{vt}, 3, v2
    v_lshl_add_u32 v{vb}, v{vt}, 3, v{vb} ; + c*8
    s_and_b32 s{st}, s3, 1
    s_lshl_b32 s{st}, s{st}, 8
    s_add_u32 s{st}, s{st}, {wb}
    v_add_u32 v{vb}, s{st}, v{vb}
    """)


def gemm16(a, vA, vB, vAcc, vb, vt):
    def reads(t):
        base = vB + 16 * (t & 1)
        if t == 0:
            ad = vb
        else:
            a(f"v_xor_b32 v{vt + (t & 1)}, {t << 5}, v{vb}")
            ad = vt + (t & 1)
        for ks in range(4):
            for h in range(2):
                r = base + 4 * ks + 2 * h
                a(f"ds_read_b64_tr_b16 v[{r}:{r+1}], v{ad} offset:{ks * 16384 + h * 2048}")
    reads(0)
    for t in range(8):
        if t < 7:
            reads(t + 1)
        base = vB + 16 * (t & 1)
        acc = vAcc + 4 * t
        for ks in range(4):
            rem = (8 if t < 7 else 0) + (3 - ks) * 2
            a(f"s_waitcnt lgkmcnt({rem})")
            c = "0" if ks == 0 else f"v[{acc}:{acc+3}]"
            a(f"v_mfma_f32_16x16x32_bf16 v[{acc}:{acc+3}], v[{vA+4*ks}:{vA+4*ks+3}], v[{base+4*ks}:{base+4*ks+3}], {c}")


K1_HIST = 0
K1_START = K1_HIST + 1024
K1_PM = K1_START + 1024
K1_STAGE = K1_PM + 256
K1_WB = 15360
assert K1_STAGE + CHS <= K1_WB
K1_LDS = K1_WB + 65536


def gen_k1():
    a = A()
    vA, vB, vAcc, vT = 20, 36, 68, 100
    sX, sW1, sDST, sSRC, sE, sW2, sWS = 36, 40, 44, 48, 52, 56, 60
    a("""
    s_cmp_ge_u32 s2, 256
    s_cbranch_scc1 K1_END
    s_load_dwordx16 s[4:19], s[0:1], 0
    s_load_dwordx2 s[22:23], s[0:1], 80
    """)
    stamp_init(a)
    stamp(a, 0)
    common_ids(a)
    a(f"""
    v_mov_b32 v4, 0
    v_lshlrev_b32 v5, 2, v0
    v_cmp_gt_u32 vcc, 256, v0
    s_mov_b64 exec, vcc
    ds_write_b32 v5, v4 offset:{K1_HIST}
    ds_write_b32 v4, v4 offset:{K1_PM}
    s_mov_b64 exec, -1
    """)
    dma_w_setup(a, 4, 5, 24, 25)
    a("s_waitcnt lgkmcnt(0)")
    srd(a, sW1, 12, 13, 257 * 512)
    srd(a, sX, 4, 5, N * 256)
    dma_w_issue(a, 4, sW1, 24, 25, 0, K1_WB)
    a(f"""
    s_mul_i32 s26, s2, {NB}              ; first row of bucket
    s_lshr_b32 s27, s3, 1
    s_lshl_b32 s27, s27, 4               ; rt*16
    s_add_u32 s28, s26, s27
    v_add_u32 v5, s28, v2
    v_lshlrev_b32 v5, 8, v5
    v_lshl_add_u32 v5, v3, 4, v5
    """)
    a("s_cmp_ge_u32 s3, 14")
    a("s_cbranch_scc1 K1_NOA")
    for ks in range(4):
        a(f"buffer_load_dwordx4 v[{vA+4*ks}:{vA+4*ks+3}], v5, s[{sX}:{sX+3}], 0 offen offset:{64*ks}")
    a("K1_NOA:")
    srd(a, sDST, 10, 11, E * 4)
    srd(a, sSRC, 8, 9, E * 4)
    srd(a, sE, 6, 7, E * 2)
    srd(a, sWS, 22, 23, SCR_OFF)
    a(f"""
    s_mul_i32 s29, s2, {CH}
    s_sub_u32 s30, {E}, s29
    s_min_u32 s30, s30, {CH}
    s_lshr_b32 s30, s30, 1
    v_lshl_add_u32 v6, v0, 1, s29        ; first edge index
    v_lshlrev_b32 v7, 1, v6
    v_lshlrev_b32 v6, 2, v6
    v_cmp_gt_u32 s[32:33], s30, v0
    s_mov_b64 exec, s[32:33]
    buffer_load_dword v10, v7, s[{sE}:{sE+3}], 0 offen
    buffer_load_dwordx2 v[8:9], v6, s[{sSRC}:{sSRC+3}], 0 offen
    buffer_load_dwordx2 v[6:7], v6, s[{sDST}:{sDST+3}], 0 offen
    s_mov_b64 exec, -1
    """)
    srd(a, sW2, 16, 17, 65536)
    a(f"""
    s_cmp_lg_u32 s3, 15
    s_cbranch_scc1 K1_NOW2
    s_lshr_b32 s24, s2, 2                ; F = G>>6
    s_and_b32 s25, s2, 3                 ; g' = (G&63)>>4
    s_and_b32 s31, s24, 7                ; ks
    s_lshl_b32 s31, s31, 2
    s_add_u32 s31, s31, s25
    s_lshr_b32 s25, s31, 4               ; s
    s_and_b32 s31, s31, 15               ; l'
    s_lshl_b32 s25, s25, 7
    s_add_u32 s31, s31, s25              ; h0 = 128s + l'
    s_lshl_b32 s31, s31, 8               ; *256 bytes
    s_lshr_b32 s25, s24, 4               ; cp
    s_lshl_b32 s25, s25, 5
    s_bfe_u32 s24, s24, 0x10003          ; a
    s_lshl_b32 s24, s24, 2
    s_add_u32 s24, s24, s25              ; 32cp + 4a
    v_lshrrev_b32 v11, 2, v2
    v_lshlrev_b32 v11, 3, v11            ; 8*(m>>2)
    v_and_b32 v12, 3, v2
    v_add3_u32 v11, v11, v12, s24        ; col
    v_lshlrev_b32 v11, 1, v11
    s_mov_b64 exec, 0xffff
    """)
    for t in range(8):
        so = 31
        if t:
            a("s_add_u32 s31, s31, 4096")
        r = vA + (t >> 1)
        op = "buffer_load_short_d16_hi" if t & 1 else "buffer_load_ushort"
        if t & 1:
            a(f"buffer_load_ushort v{vA+4+(t>>1)}, v11, s[{sW2}:{sW2+3}], s31 offen")
        else:
            a(f"buffer_load_ushort v{r}, v11, s[{sW2}:{sW2+3}], s31 offen")
    a(f"""
    s_waitcnt vmcnt(0)
    v_lshl_or_b32 v{vA}, v{vA+4}, 16, v{vA}
    v_lshl_or_b32 v{vA+1}, v{vA+5}, 16, v{vA+1}
    v_lshl_or_b32 v{vA+2}, v{vA+6}, 16, v{vA+2}
    v_lshl_or_b32 v{vA+3}, v{vA+7}, 16, v{vA+3}
    s_lshl_b32 s24, s2, 8
    s_add_u32 s24, s24, {W2F_OFF}
    v_lshlrev_b32 v11, 4, v2
    buffer_store_dwordx4 v[{vA}:{vA+3}], v11, s[{sWS}:{sWS+3}], s24 offen
    s_mov_b64 exec, -1
K1_NOW2:
    """)
    gemm_baddr(a, 17, 18, 24, K1_WB)
    a(f"""
    s_mov_b32 s34, {NLOG2E:#x}
    s_mov_b32 s35, {NLOG2E:#x}
    s_mov_b32 s64, 42800
    s_mov_b32 s65, 0x07060100
    s_mov_b32 s66, 0x07060302
    s_waitcnt vmcnt(0) lgkmcnt(0)
    """)
    stamp(a, 1)
    a("s_barrier")
    stamp(a, 2)
    a(f"""
    s_mov_b64 exec, s[32:33]
    v_mul_u32_u24 v11, s64, v6
    v_mul_u32_u24 v12, s64, v7
    v_lshrrev_b32 v11, 22, v11           ; bucket
    v_lshrrev_b32 v12, 22, v12
    v_mul_u32_u24 v13, {NB}, v11
    v_mul_u32_u24 v14, {NB}, v12
    v_sub_u32 v13, v6, v13               ; dloc
    v_sub_u32 v14, v7, v14
    v_lshlrev_b32 v11, 2, v11
    v_lshlrev_b32 v12, 2, v12
    v_lshlrev_b32 v15, 16, v10
    v_and_b32 v16, 0xffff0000, v10
    v_lshl_or_b32 v15, v13, 2, v15       ; e<<16 | dloc*4
    v_lshl_or_b32 v16, v14, 2, v16
    v_mov_b32 v10, 1
    ds_add_rtn_u32 v13, v11, v10 offset:{K1_HIST}
    ds_add_rtn_u32 v14, v12, v10 offset:{K1_HIST}
    s_mov_b64 exec, -1
    v_mov_b32 v19, 0
    s_cmp_ge_u32 s3, 14
    s_cbranch_scc1 K1_NOGEMM
    """)
    gemm16(a, vA, vB, vAcc, 17, 4)
    stamp(a, 3)
    a(f"""
    s_sub_u32 s24, {N}, s26
    s_min_u32 s24, s24, {NB}
    v_lshl_add_u32 v4, v3, 2, s27
    v_add_u32 v5, s26, v4
    v_lshlrev_b32 v5, 8, v5
    v_lshl_add_u32 v5, v2, 4, v5
    s_and_b32 s25, s3, 1
    s_mul_i32 s25, s25, {PS}
    s_nop 1
    """)
    for r in range(0, 32, 2):
        a(f"v_pk_fma_f32 v[{vAcc+r}:{vAcc+r+1}], v[{vAcc+r}:{vAcc+r+1}], s[34:35], 0")
    for r in range(0, 32, 2):
        a(f"v_max3_f32 v19, |v{vAcc+r}|, |v{vAcc+r+1}|, v19")
    vL = vB
    for t in range(4):
        for ip in range(2):
            a(f"v_cvt_pk_bf16_f32 v{vL+2*t+ip}, v{vAcc+4*t+2*ip}, v{vAcc+4*t+2*ip+1}")
    for r in range(16, 32):
        a(f"v_add_u32 v{vAcc+r}, 0x8000, v{vAcc+r}")
    for i in range(4):
        for t in range(4):
            h = vAcc + 16 + 4 * t + i
            a(f"v_sub_u32_sdwa v{h}, v{h}, v{vL+2*t+(i>>1)} clamp dst_sel:DWORD dst_unused:UNUSED_PAD src0_sel:DWORD src1_sel:WORD_{i&1}")
        for t in range(4):
            h = vAcc + 16 + 4 * t + i
            a(f"v_perm_b32 v{vT+4*i+t}, v{h}, v{vL+2*t+(i>>1)}, s{65+(i&1)}")
        a(f"v_cmp_gt_i32 vcc, s24, v4")
        a(f"s_mov_b64 exec, vcc")
        a(f"buffer_store_dwordx4 v[{vT+4*i}:{vT+4*i+3}], v5, s[{sWS}:{sWS+3}], s25 offen offset:{256*i}")
        a(f"s_mov_b64 exec, -1")
        if i < 3:
            a("s_sub_u32 s24, s24, 1")
    row_max(a, 19)
    a(f"""
    v_mov_b32 v4, 0
    s_mov_b32 exec_lo, 0x80008000
    s_mov_b32 exec_hi, 0x80008000
    ds_max_u32 v4, v19 offset:{K1_PM}
    s_mov_b64 exec, -1
K1_NOGEMM:
    s_waitcnt lgkmcnt(0)
    """)
    stamp(a, 4)
    a("s_barrier")
    stamp(a, 5)
    a(f"""
    v_lshlrev_b32 v4, 4, v1
    ds_read_b128 v[20:23], v4 offset:{K1_HIST}
    v_mov_b32 v5, 0
    ds_read_b32 v19, v5 offset:{K1_PM}
    s_waitcnt lgkmcnt(0)
    v_add_u32 v25, v20, v21              ; p2
    v_add_u32 v26, v25, v22              ; p3
    v_add_u32 v27, v26, v23              ; tot
    v_mov_b32 v28, v27
    """)
    wave_scan(a, [28])
    a(f"""
    v_sub_u32 v28, v28, v27              ; base
    v_add_u32 v29, v28, v20
    v_add_u32 v30, v28, v25
    v_add_u32 v31, v28, v26
    v_lshlrev_b32 v32, 3, v28
    v_lshlrev_b32 v33, 3, v29
    v_lshlrev_b32 v34, 3, v30
    v_lshlrev_b32 v35, 3, v31
    ds_write_b128 v4, v[32:35] offset:{K1_START}
    s_cmp_lg_u32 s3, 0
    s_cbranch_scc1 K1_NOTAB
    v_lshl_or_b32 v28, v20, 16, v28
    v_lshl_or_b32 v29, v21, 16, v29
    v_lshl_or_b32 v30, v22, 16, v30
    v_lshl_or_b32 v31, v23, 16, v31
    s_lshl_b32 s24, s2, 10
    s_add_u32 s24, s24, {TAB_OFF}
    buffer_store_dwordx4 v[28:31], v4, s[{sWS}:{sWS+3}], s24 offen
    s_lshl_b32 s24, s2, 2
    s_add_u32 s24, s24, {PMAX_OFF}
    s_mov_b64 exec, 1
    buffer_store_dword v19, v5, s[{sWS}:{sWS+3}], s24 offen
    s_mov_b64 exec, -1
K1_NOTAB:
    s_waitcnt lgkmcnt(0)
    s_mov_b64 exec, s[32:33]
    ds_read_b32 v11, v11 offset:{K1_START}
    ds_read_b32 v12, v12 offset:{K1_START}
    v_mov_b32 v36, v8
    v_mov_b32 v37, v15
    v_mov_b32 v38, v9
    v_mov_b32 v39, v16
    s_waitcnt lgkmcnt(0)
    v_lshl_add_u32 v11, v13, 3, v11
    v_lshl_add_u32 v12, v14, 3, v12
    ds_write_b64 v11, v[36:37] offset:{K1_STAGE}
    ds_write_b64 v12, v[38:39] offset:{K1_STAGE}
    s_mov_b64 exec, -1
    s_waitcnt lgkmcnt(0)
    s_barrier
    v_lshlrev_b32 v4, 4, v0
    v_cmp_gt_u32 vcc, {CHS // 16}, v0
    s_mov_b64 exec, vcc
    s_cbranch_execz K1_FIN
    ds_read_b128 v[20:23], v4 offset:{K1_STAGE}
    s_mul_i32 s24, s2, {CHS}
    s_add_u32 s24, s24, {REC_OFF}
    s_waitcnt lgkmcnt(0)
    buffer_store_dwordx4 v[20:23], v4, s[{sWS}:{sWS+3}], s24 offen
K1_FIN:
    """)
    stamp(a, 6)
    if OPT["stamps"]:
        a("s_waitcnt vmcnt(0)")
    stamp(a, 7)
    stamp_flush(a, 0)
    a("""
K1_END:
    s_endpgm
    """)
    return a.text(), 116, (102 if OPT["stamps"] else 72)


ROWS = 1040
CNT = 0
SABS = CNT + 512
POS = SABS + 512
DEGT = POS + 512
INFO = DEGT + 512
MISC = INFO + 1600
WT = MISC + 64
LIST = WT + 1024
LISTCAP = 6144
QH = (LIST + LISTCAP * 8 + 128 + 255) // 256 * 256
K2_LDS = QH + 100 * ROWS
assert K2_LDS <= 163840
assert MISC % 16 == 0 and INFO % 16 == 0 and WT % 16 == 0


def gen_k2():
    U = OPT["U"]
    a = A()
    vA, vB, vAcc = 20, 36, 68
    vRec, vRank, vPos = 100, 112, 118
    vB1 = 10
    sX, sW1, sB1, sWS, sP, sOUT, sB2, sSCR = 36, 40, 44, 48, 52, 56, 60, 64
    sWG, sWAVE = 2, 3
    sROW0 = 26
    sBATCH = 68; sNBATCH = 69; sRECB = 70
    a("""
    s_cmp_ge_u32 s2, 256
    s_cbranch_scc1 K2_END
    s_load_dwordx16 s[4:19], s[0:1], 0
    s_load_dwordx2 s[20:21], s[0:1], 64
    s_load_dwordx2 s[22:23], s[0:1], 80
    """)
    stamp_init(a)
    stamp(a, 0)
    common_ids(a)
    a(f"""
    v_mov_b32 v4, 0
    v_lshlrev_b32 v5, 2, v0
    v_cmp_gt_u32 vcc, 512, v0
    s_mov_b64 exec, vcc
    ds_write_b32 v5, v4 offset:{CNT}
    s_mov_b64 exec, 3
    v_mov_b32 v6, {LIST}
    v_mov_b32 v7, 0
    v_mul_u32_u24 v8, {ROWS}, v1
    v_add_u32 v8, {QH + 98 * ROWS}, v8
    v_mov_b32 v9, 0
    v_lshlrev_b32 v5, 4, v1
    ds_write_b128 v5, v[6:9] offset:{INFO + 98 * 16}
    v_mov_b32 v10, 0
    v_mov_b32 v11, 0
    v_mov_b32 v12, 0
    v_mov_b32 v13, 0
    ds_write_b128 v4, v[10:13] offset:{MISC}
    v_mov_b32 v14, 16
    ds_write_b32 v4, v14 offset:{MISC + 16}
    s_mov_b64 exec, -1
    """)
    dma_w_setup(a, 4, 5, 24, 25)
    a(f"""
    v_lshrrev_b32 v6, 2, v0              ; cell
    v_lshlrev_b32 v7, 10, v6
    s_lshl_b32 s30, s2, 2
    s_add_u32 s30, s30, {TAB_OFF}
    s_waitcnt lgkmcnt(0)
    """)
    srd(a, sWS, 22, 23, SCR_OFF)
    a(f"buffer_load_dword v124, v7, s[{sWS}:{sWS+3}], s30 offen")
    srd(a, sW1, 12, 13, 257 * 512)
    srd(a, sX, 4, 5, N * 256)
    srd(a, sB1, 14, 15, 512)
    dma_w_issue(a, 4, sW1, 24, 25, 128 * 512, QH)
    a(f"""
    s_mul_i32 s{sROW0}, s2, {NB}
    s_lshr_b32 s27, s3, 1
    s_lshl_b32 s27, s27, 4               ; rt*16
    s_add_u32 s28, s{sROW0}, s27
    v_add_u32 v5, s28, v2
    v_lshlrev_b32 v5, 8, v5
    v_lshl_add_u32 v5, v3, 4, v5
    v_mul_u32_u24 v125, {CHS}, v6
    v_and_b32 v126, 3, v0
    v_lshlrev_b32 v126, 1, v126            ; slot0 = 2j
    s_cmp_ge_u32 s3, 14
    s_cbranch_scc1 K2_AUXLD
    """)
    for ks in range(4):
        a(f"buffer_load_dwordx4 v[{vA+4*ks}:{vA+4*ks+3}], v5, s[{sX}:{sX+3}], 0 offen offset:{64*ks}")
    a(f"""
    s_and_b32 s24, s3, 1
    s_lshl_b32 s24, s24, 8
    v_lshlrev_b32 v5, 1, v2
    """)
    for t in range(8):
        a(f"buffer_load_ushort v{vB1+t}, v5, s[{sB1}:{sB1+3}], s24 offen offset:{32*t}")
    a(f"""
    s_waitcnt vmcnt(16)
    s_branch K2_RECLD
K2_AUXLD:
    v_subrev_u32 v5, 896, v0             ; 0..127
    v_lshlrev_b32 v8, 2, v5
    v_lshlrev_b32 v9, 3, v5
    s_mov_b32 s24, {256 * 512}
    s_mov_b32 s25, {PMAX_OFF}
    buffer_load_dword v{vA}, v8, s[{sW1}:{sW1+3}], s24 offen
    buffer_load_dwordx2 v[{vA+2}:{vA+3}], v9, s[{sWS}:{sWS+3}], s25 offen
    s_waitcnt vmcnt(6)
K2_RECLD:
    """)
    stamp(a, 1)
    a(f"""
    v_and_b32 v7, 0xffff, v124            ; start
    v_lshrrev_b32 v124, 16, v124           ; cnt
    v_add_u32 v7, v7, v126
    v_lshl_add_u32 v125, v7, 3, v125
    s_mov_b32 s{sRECB}, {REC_OFF}
    s_mov_b32 s{sBATCH}, 0
    v_mov_b32 v4, 0
    v_sub_u32 v127, v124, v126
    """)

    def rec_loads():
        for m in range(3):
            a(f"v_cmp_lt_i32 vcc, {8*m}, v127")
            a("s_mov_b64 exec, vcc")
            a(f"buffer_load_dwordx4 v[{vRec+4*m}:{vRec+4*m+3}], v125, s[{sWS}:{sWS+3}], s{sRECB} offen offset:{64*m}")
        a("s_mov_b64 exec, -1")
    rec_loads()
    gemm_baddr(a, 18, 19, 24, QH)
    a(f"""
    s_mov_b32 s34, {NLOG2E:#x}
    s_mov_b32 s35, {NLOG2E:#x}
    s_waitcnt vmcnt(3) lgkmcnt(0)
    s_barrier
    """)
    stamp(a, 2)
    a(f"""
    v_cmp_lt_u32 vcc, 24, v124
    s_mov_b64 exec, vcc
    ds_max_u32 v4, v124 offset:{MISC + 12}
    s_mov_b64 exec, -1
    s_cmp_ge_u32 s3, 14
    s_cbranch_scc1 K2_AUX
    """)
    gemm16(a, vA, vB, vAcc, 18, 8)
    for t in range(8):
        a(f"v_lshlrev_b32 v{vB1+t}, 16, v{vB1+t}")
    for t in range(0, 8, 2):
        a(f"v_pk_mul_f32 v[{vB1+t}:{vB1+t+1}], v[{vB1+t}:{vB1+t+1}], s[34:35]")
    a(f"""
    s_branch K2_HIST
K2_AUX:
    v_lshlrev_b32 v{vA+4}, 16, v{vA}
    v_and_b32 v{vA+5}, 0xffff0000, v{vA}
    v_pk_mul_f32 v[{vA+4}:{vA+5}], v[{vA+4}:{vA+5}], s[34:35]
    v_lshlrev_b32 v8, 1, v5              ; h
    v_and_b32 v9, 15, v8
    v_lshlrev_b32 v9, 4, v9              ; l*16
    v_bfe_u32 v10, v8, 4, 2
    v_lshl_add_u32 v9, v10, 2, v9        ; + (t&3)*4
    v_lshrrev_b32 v10, 6, v8             ; s*2 + (t>>2)
    v_lshl_add_u32 v9, v10, 8, v9
    ds_write_b32 v9, v{vA+4} offset:{WT}
    ds_write_b32 v9, v{vA+5} offset:{WT + 16}
    v_max3_f32 v10, |v{vA+4}|, |v{vA+5}|, 0
    v_max_f32 v11, v{vA+2}, v{vA+3}
    """)
    row_max(a, 10)
    row_max(a, 11)
    a(f"""
    s_mov_b32 exec_lo, 0x80008000
    s_mov_b32 exec_hi, 0x80008000
    ds_max_u32 v4, v10 offset:{MISC + 8}
    ds_max_u32 v4, v11 offset:{MISC}
    s_mov_b64 exec, -1
K2_HIST:
    """)
    a(f"""
K2_BATCH:
    v_mov_b32 v9, 1
    """)
    stamp(a, 3)
    a("s_waitcnt vmcnt(0)")
    stamp(a, 4)
    for k in range(6):
        m, o = k >> 1, k & 1
        r1 = vRec + 4 * m + 2 * o + 1
        a(f"v_cmp_lt_i32 vcc, {8*m+o}, v127")
        a("s_mov_b64 exec, vcc")
        if k in (2, 4):
            a("s_cbranch_execz K2_HISTDONE")
        a(f"v_and_b32 v{vPos+k}, 0xffff, v{r1}")
        a(f"v_and_b32 v8, 0x7fff0000, v{r1}")
        a(f"ds_add_rtn_u32 v{vRank+k}, v{vPos+k}, v9")
        a(f"ds_add_f32 v{vPos+k}, v8 offset:{SABS - CNT}")
    a(f"""
K2_HISTDONE:
    s_mov_b64 exec, -1
    v_lshlrev_b32 v8, 2, v1
    s_waitcnt lgkmcnt(0)
    s_barrier
    """)
    stamp(a, 5)
    a(f"""
    ds_read_b32 v20, v8
    ds_read_b32 v21, v8 offset:256
    ds_read_b32 v30, v8 offset:{SABS - CNT}
    ds_read_b32 v31, v8 offset:{SABS - CNT + 256}
    v_sub_u32 v24, 127, v1
    v_sub_u32 v25, 63, v1
    s_waitcnt lgkmcnt(2)
    v_mov_b32 v22, v20
    v_mov_b32 v23, v21
    v_lshl_or_b32 v24, v20, 7, v24       ; key0
    v_lshl_or_b32 v25, v21, 7, v25       ; key1
    v_cmp_gt_u32 vcc, {NB - 64}, v1
    """)
    wave_scan(a, [22, 23])
    a(f"""
    v_cndmask_b32 v25, 0, v25, vcc
    v_readlane_b32 s24, v22, 63
    v_sub_u32 v22, v22, v20
    v_sub_u32 v23, v23, v21
    v_add_u32 v23, s24, v23
    v_mov_b32 v9, {LIST}
    v_lshl_add_u32 v22, v22, 3, v9
    v_lshl_add_u32 v23, v23, 3, v9
    ds_write_b32 v8, v22 offset:{POS - CNT}
    ds_write_b32 v8, v23 offset:{POS - CNT + 256}
    s_cmp_lg_u32 s3, 0
    s_cbranch_scc1 K2_NODEG
    ds_add_u32 v8, v20 offset:{DEGT - CNT}
    ds_add_u32 v8, v21 offset:{DEGT - CNT + 256}
K2_NODEG:
    """)
    for i in range(7):
        a(f"s_add_u32 s25, s3, {16 * (i & 3)}")
        a(f"v_readlane_b32 s{72+i}, v{24 + (i >> 2)}, s25")
    a("s_waitcnt lgkmcnt(0)")
    for k in range(6):
        m, o = k >> 1, k & 1
        a(f"v_cmp_lt_i32 vcc, {8*m+o}, v127")
        a("s_mov_b64 exec, vcc")
        if k in (2, 4):
            a("s_cbranch_execz K2_POSDONE")
        a(f"ds_read_b32 v{vPos+k}, v{vPos+k} offset:{POS - CNT}")
    a("""
K2_POSDONE:
    s_mov_b64 exec, -1
    """)
    for i in range(7):
        a(f"v_cmp_lt_u32 s[80:81], s{72+i}, v24")
        a(f"v_cmp_lt_u32 s[82:83], s{72+i}, v25")
        a(f"s_add_u32 m0, s3, {16 * (i & 3)}")
        a("s_bcnt1_i32_b64 s80, s[80:81]")
        a("s_bcnt1_i32_b64 s82, s[82:83]")
        a("s_add_u32 s80, s80, s82")
        a(f"v_writelane_b32 v{32 + (i >> 2)}, s80, m0")
    a(f"""
    v_cmp_eq_u32 s[80:81], s3, v2
    v_cmp_gt_u32 vcc, {NB - 64}, v1
    v_mov_b32 v9, {INFO}
    v_lshl_add_u32 v32, v32, 4, v9
    v_lshl_add_u32 v33, v33, 4, v9
    s_and_b64 s[82:83], s[80:81], vcc
    v_mov_b32 v36, v22
    v_mov_b32 v37, v20
    v_mul_u32_u24 v38, {ROWS}, v1
    v_add_u32 v38, {QH}, v38
    v_mov_b32 v39, v30
    v_mov_b32 v40, v23
    v_mov_b32 v41, v21
    v_add_u32 v42, {64 * ROWS}, v38
    v_mov_b32 v43, v31
    s_mov_b64 exec, s[80:81]
    ds_write_b128 v32, v[36:39]
    s_mov_b64 exec, s[82:83]
    ds_write_b128 v33, v[40:43]
    s_mov_b64 exec, -1
    s_waitcnt lgkmcnt(2)
    """)
    for k in range(6):
        m, o = k >> 1, k & 1
        r0 = vRec + 4 * m + 2 * o
        a(f"v_cmp_lt_i32 vcc, {8*m+o}, v127")
        a("s_mov_b64 exec, vcc")
        if k in (2, 4):
            a("s_cbranch_execz K2_SCATDONE")
        a(f"v_lshl_add_u32 v{vPos+k}, v{vRank+k}, 3, v{vPos+k}")
        a(f"v_and_b32 v{r0+1}, 0xffff0000, v{r0+1}")
        a(f"ds_write_b64 v{vPos+k}, v[{r0}:{r0+1}]")
    a(f"""
K2_SCATDONE:
    s_mov_b64 exec, -1
    s_cmp_lg_u32 s{sBATCH}, 0
    s_cbranch_scc1 K2_NOQ
    s_cmp_ge_u32 s3, 14
    s_cbranch_scc1 K2_NOQ
    ; Q' epilogue
    v_lshl_add_u32 v8, v3, 2, s27
    v_mul_u32_u24 v9, {ROWS}, v8
    v_lshl_add_u32 v9, v2, 4, v9
    s_and_b32 s24, s3, 1
    s_lshl_b32 s24, s24, 9
    s_add_u32 s24, s24, {QH}
    v_add_u32 v9, s24, v9
    v_mov_b32 v19, 0
    """)
    for i in range(4):
        o = 36 + 8 * i
        for t in range(8):
            a(f"v_fma_f32 v{o+t}, v{vAcc+4*t+i}, s34, v{vB1+t}")
        for t in range(0, 8, 2):
            a(f"v_max3_f32 v19, |v{o+t}|, |v{o+t+1}|, v19")
        a(f"v_cmp_gt_i32 vcc, {NB - i}, v8")
        a("s_mov_b64 exec, vcc")
        a(f"ds_write_b128 v9, v[{o}:{o+3}] offset:{i*ROWS}")
        a(f"ds_write_b128 v9, v[{o+4}:{o+7}] offset:{i*ROWS+256}")
        a("s_mov_b64 exec, -1")
    row_max(a, 19)
    a(f"""
    v_mov_b32 v4, 0
    s_mov_b32 exec_lo, 0x80008000
    s_mov_b32 exec_hi, 0x80008000
    ds_max_u32 v4, v19 offset:{MISC + 4}
    s_mov_b64 exec, -1
K2_NOQ:
    """)
    vPair = 4
    vE = vPair + 2 * U
    vAddr, vDeg, vH, vL16, vK1, vWM, vG16, vWT = vE + 2, vE + 3, vE + 4, vE + 5, vE + 6, vE + 7, vE + 8, vE + 9
    assert vWT < 26 or U > 4
    vI = 100
    keep = [26, 27, 28, 29]
    if U > 4:
        vAddr, vDeg, vH, vL16, vK1, vWM, vG16, vWT = 104, 105, 106, 107, 108, 109, 110, 111
        assert vE + 1 < 26
    vQ, vW, vT, vX, vN, vD = 32, 40, 48, 56, 64, 72
    vP = 80 if U <= 4 else 112 - 0
    if U > 4:
        raise SystemExit("U>4 register map not done")
    sQ, sS, sD0, sD3, sSafe, sSl, sSEL, sONE = 72, 73, 74, 75, 76, 77, 78, 80
    srd(a, sP, 22, 23, N, stride=256)
    a(f"""
    v_mov_b32 v{vI}, {MISC}
    s_waitcnt lgkmcnt(0)
    """)
    stamp(a, 6)
    a("s_barrier")
    stamp(a, 7)
    a(f"""
    ds_read_b128 v[{vI}:{vI+3}], v{vI}
    v_lshlrev_b32 v{vL16}, 4, v2
    v_mov_b32 v{vG16}, {INFO}
    v_lshl_add_u32 v{vG16}, v3, 4, v{vG16}
    v_add_u32 v{vWT}, {WT}, v{vL16}
    """)
    for j in range(U):
        a(f"v_mov_b32 v{vPair+2*j+1}, v{vL16}")
    a(f"""
    s_mov_b32 s{sSEL}, 0x00003f80
    s_mov_b32 s{sQ}, s3
    s_waitcnt lgkmcnt(0)
    v_readfirstlane_b32 s24, v{vI+3}
    v_add_f32 v{vK1}, v{vI}, v{vI+1}
    v_add_f32 v{vK1}, 1.0, v{vK1}
    v_mov_b32 v{vWM}, v{vI+2}
    s_add_u32 s24, s24, 23
    s_mul_i32 s24, s24, 2731
    s_lshr_b32 s{sNBATCH}, s24, 16
    s_cmp_le_u32 s{sNBATCH}, 1
    s_cbranch_scc1 K2_ITEM
    v_mov_b32 v{vK1}, 0x7f800000         ; several batches: every item takes the plain path
K2_ITEM:
    s_cmp_ge_u32 s{sQ}, 50
    s_cbranch_scc1 K2_DONE
    s_cmp_ge_u32 s{sQ}, 25
    s_cselect_b32 s24, 25, 0
    s_cselect_b32 s25, 512, 0
    s_cselect_b32 s{sSl}, {PS}, 0
    s_sub_u32 s24, s{sQ}, s24
    s_lshl_b32 s24, s24, 6
    v_add_u32 v{vI}, s24, v{vG16}
    ds_read_b128 v[{vI}:{vI+3}], v{vI}
    v_add_u32 v{vH}, s25, v{vWT}
    ds_read_b128 v[{vW}:{vW+3}], v{vH}
    ds_read_b128 v[{vW+4}:{vW+7}], v{vH} offset:256
    s_mov_b32 s{sP+2}, {N}
    s_waitcnt lgkmcnt(2)
    v_mov_b32 v{vAddr}, v{vI}
    """)
    for j in range(U):
        a(f"ds_read_b32 v{vPair+2*j}, v{vI} offset:{8*j}")
    a(f"""
    v_mov_b32 v{vDeg}, v{vI+1}
    v_add3_u32 v{vH}, v{vI+2}, s25, v{vL16}
    v_readlane_b32 s{sD0}, v{vI+1}, 0
    v_readlane_b32 s{sD3}, v{vI+1}, 48
    ds_read_b32 v{vE}, v{vI} offset:4
    ds_read_b128 v[{vQ}:{vQ+3}], v{vH}
    ds_read_b128 v[{vQ+4}:{vQ+7}], v{vH} offset:256
    v_cvt_f32_u32 v{vI}, v{vI+1}
    v_mul_f32 v{vI+3}, v{vWM}, v{vI+3}
    v_fma_f32 v{vI}, v{vI}, v{vK1}, v{vI+3}
    """)
    for j in range(U):
        a(f"s_waitcnt lgkmcnt({U + 2 - j})")
        a(f"buffer_load_dwordx4 v[{vP+4*j}:{vP+4*j+3}], v[{vPair+2*j}:{vPair+2*j+1}], s[{sP}:{sP+3}], s{sSl} idxen offen")
    a(f"""
    ds_read_b32 v{vPair}, v{vAddr} offset:{8*U}
    v_cmp_nge_f32 vcc, {BOUND:#x}, v{vI}
    s_min_u32 s{sD0}, s{sD0}, {LISTCAP}
    s_sub_u32 s24, s{sD0}, {U}
    s_min_i32 s{sSafe}, s24, s{sD3}
    s_cmp_gt_i32 s24, 0
    s_cselect_b32 s{sP+2}, {N}, 0
    s_mov_b32 s{sS}, 0
    s_cbranch_vccnz K2_P_START
    s_cmp_lg_u32 s{sD3}, 0
    s_cbranch_scc1 K2_F_FIRST
    """)
    for r in range(8):
        a(f"v_mov_b32 v{vN+r}, 0")
        a(f"v_mov_b32 v{vD+r}, 1.0")
    a(f"""
    s_cmp_eq_u32 s{sD0}, 0
    s_cbranch_scc1 K2_F_FLUSH
    v_cmpx_lt_u32 vcc, 0, v{vDeg}
    """)

    def step(j, mode):
        P = vP + 4 * j
        T = vN if mode == "first" else vT
        eh = j & 1
        jn = (j + 1) % U
        osel = "op_sel_hi:[1,0,1]" if eh == 0 else "op_sel:[0,1,0] op_sel_hi:[1,1,1]"
        a("s_waitcnt lgkmcnt(0)")
        for r in range(0, 8, 2):
            a(f"v_pk_fma_f32 v[{T+r}:{T+r+1}], v[{vW+r}:{vW+r+1}], v[{vE}:{vE+1}], v[{vQ+r}:{vQ+r+1}] {osel}")
        a(f"ds_read_b32 v{vE + (eh ^ 1)}, v{vAddr} offset:{8*(j+1)+4}")
        a(f"s_waitcnt vmcnt({U-1})")
        if mode != "plain":
            for p in range(4):
                a(f"v_dot2_f32_bf16 v{T+p}, v{P+p}, s{sSEL}, v{T+p}")
            a(f"v_pk_add_f32 v[{T+4}:{T+5}], v[{P}:{P+1}], v[{T+4}:{T+5}]")
            a(f"v_pk_add_f32 v[{T+6}:{T+7}], v[{P+2}:{P+3}], v[{T+6}:{T+7}]")
        else:
            for p in range(4):
                a(f"v_lshlrev_b32 v{vX+p}, 16, v{P+p}")
            a(f"v_pk_add_f32 v[{T+4}:{T+5}], v[{P}:{P+1}], v[{T+4}:{T+5}]")
            a(f"v_pk_add_f32 v[{T+6}:{T+7}], v[{P+2}:{P+3}], v[{T+6}:{T+7}]")
            a(f"v_pk_add_f32 v[{T}:{T+1}], v[{vX}:{vX+1}], v[{T}:{T+1}]")
            a(f"v_pk_add_f32 v[{T+2}:{T+3}], v[{vX+2}:{vX+3}], v[{T+2}:{T+3}]")
        a(f"buffer_load_dwordx4 v[{P}:{P+3}], v[{vPair+2*j}:{vPair+2*j+1}], s[{sP}:{sP+3}], s{sSl} idxen offen")
        a(f"ds_read_b32 v{vPair+2*jn}, v{vAddr} offset:{8*(j+1+U)}")
        for r in (4, 5, 6, 7, 0, 1, 2, 3):
            a(f"v_exp_f32 v{vX+r}, v{T+r}")
        order = (4, 6, 0, 2)
        if mode == "first":
            for r in order:
                a(f"v_pk_add_f32 v[{vD+r}:{vD+r+1}], v[{vX+r}:{vX+r+1}], 1.0 op_sel_hi:[1,0]")
        elif mode == "fast":
            for r in order:
                a(f"v_pk_fma_f32 v[{vN+r}:{vN+r+1}], v[{vN+r}:{vN+r+1}], v[{vX+r}:{vX+r+1}], v[{vN+r}:{vN+r+1}]")
            for r in order:
                a(f"v_pk_fma_f32 v[{vN+r}:{vN+r+1}], v[{T+r}:{T+r+1}], v[{vD+r}:{vD+r+1}], v[{vN+r}:{vN+r+1}]")
            for r in order:
                a(f"v_pk_fma_f32 v[{vD+r}:{vD+r+1}], v[{vD+r}:{vD+r+1}], v[{vX+r}:{vX+r+1}], v[{vD+r}:{vD+r+1}]")
        else:
            for r in order:
                a(f"v_pk_add_f32 v[{vX+r}:{vX+r+1}], v[{vX+r}:{vX+r+1}], 1.0 op_sel_hi:[1,0]")
            for r in (4, 5, 6, 7, 0, 1, 2, 3):
                a(f"v_rcp_f32 v{vX+r}, v{vX+r}")
            for r in order:
                a(f"v_pk_fma_f32 v[{vN+r}:{vN+r+1}], v[{T+r}:{T+r+1}], v[{vX+r}:{vX+r+1}], v[{vN+r}:{vN+r+1}]")
        if j == U - 1:
            a(f"v_add_u32 v{vAddr}, {8*U}, v{vAddr}")
        a(f"s_add_u32 s{sS}, s{sS}, 1")
        a(f"s_cmp_ge_i32 s{sS}, s{sSafe}")

    def loop(pfx, mode):
        tails = []
        if mode == "fast":
            a(f"{pfx}_FIRST:")
            step(0, "first")
            a(f"s_cbranch_scc1 {pfx}_T0")
            seq = list(range(1, U)) + [0]
        else:
            seq = list(range(U))
        for j in seq:
            a(f"{pfx}_S{j}:")
            step(j, mode)
            if j == seq[-1]:
                a(f"s_cbranch_scc0 {pfx}_S{seq[0]}")
            else:
                a(f"s_cbranch_scc1 {pfx}_T{j}")
        for j in [seq[-1]] + seq[:-1]:
            a(f"""
{pfx}_T{j}:
    s_cmp_ge_u32 s{sS}, s{sD0}
    s_cbranch_scc1 {pfx}_FLUSH
    v_cmpx_lt_u32 vcc, s{sS}, v{vDeg}
    s_add_u32 s24, s{sS}, {U}
    s_cmp_lt_u32 s24, s{sD0}
    s_cselect_b32 s{sP+2}, {N}, 0
    s_branch {pfx}_S{(j+1) % U}
            """)

    loop("K2_F", "fast")
    a(f"""
K2_F_FLUSH:
    s_mov_b64 exec, 1
    v_mov_b32 v{vI}, {MISC}
    v_mov_b32 v{vI+1}, 1
    ds_add_rtn_u32 v{vI}, v{vI}, v{vI+1} offset:16
    s_mov_b64 exec, -1
    """)
    for r in range(8):
        a(f"v_rcp_f32 v{vX+r}, v{vD+r}")
    for r in range(0, 8, 2):
        a(f"v_pk_mul_f32 v[{vN+r}:{vN+r+1}], v[{vN+r}:{vN+r+1}], v[{vX+r}:{vX+r+1}]")
    a("K2_WRH:")
    for r in range(4):
        a(f"v_cvt_pk_bf16_f32 v{vX+r}, v{vN+2*r}, v{vN+2*r+1}")
    a(f"""
    ds_write_b128 v{vH}, v[{vX}:{vX+3}]
K2_NEXT:
    s_waitcnt lgkmcnt(0)
    v_readfirstlane_b32 s{sQ}, v{vI}
    s_branch K2_ITEM
K2_P_START:
    """)
    for r in range(8):
        a(f"v_mov_b32 v{vN+r}, 0")
    a(f"""
    s_cmp_eq_u32 s{sD0}, 0
    s_cbranch_scc1 K2_P_FLUSH
    v_cmpx_lt_u32 vcc, 0, v{vDeg}
    """)
    loop("K2_P", "plain")
    a(f"""
K2_P_FLUSH:
    s_mov_b64 exec, 1
    v_mov_b32 v{vI}, {MISC}
    v_mov_b32 v{vI+1}, 1
    ds_add_rtn_u32 v{vI}, v{vI}, v{vI+1} offset:16
    s_mov_b64 exec, -1
    s_cmp_le_u32 s{sNBATCH}, 1
    s_cbranch_scc1 K2_WRH
    """)
    a(f"""
    s_mul_i32 s24, s2, {SCR_STRIDE}
    s_add_u32 s24, s24, {SCR_OFF - QH}
    s_mov_b32 s{sSCR}, s22
    s_mov_b32 s{sSCR+1}, s23
    s_mov_b32 s{sSCR+2}, {WS_USED}
    s_mov_b32 s{sSCR+3}, 0x00020000
    v_add_u32 v{vH}, v{vH}, v{vL16}
    s_cmp_eq_u32 s{sBATCH}, 0
    s_cbranch_scc1 K2_P_ST
    buffer_load_dwordx4 v[{vX}:{vX+3}], v{vH}, s[{sSCR}:{sSCR+3}], s24 offen
    buffer_load_dwordx4 v[{vX+4}:{vX+7}], v{vH}, s[{sSCR}:{sSCR+3}], s24 offen offset:16
    s_waitcnt vmcnt(0)
    """)
    for r in range(0, 8, 2):
        a(f"v_pk_add_f32 v[{vN+r}:{vN+r+1}], v[{vN+r}:{vN+r+1}], v[{vX+r}:{vX+r+1}]")
    a(f"""
K2_P_ST:
    buffer_store_dwordx4 v[{vN}:{vN+3}], v{vH}, s[{sSCR}:{sSCR+3}], s24 offen
    buffer_store_dwordx4 v[{vN+4}:{vN+7}], v{vH}, s[{sSCR}:{sSCR+3}], s24 offen offset:16
    s_waitcnt vmcnt(0)
    s_branch K2_NEXT
    """)
    vF = 32
    a(f"""
K2_DONE:
    s_add_u32 s{sBATCH}, s{sBATCH}, 1
    s_cmp_ge_u32 s{sBATCH}, s{sNBATCH}
    s_cbranch_scc1 K2_FINAL
    s_waitcnt vmcnt(0)
    s_add_u32 s{sRECB}, s{sRECB}, 192
    v_subrev_u32 v127, 24, v127
    """)
    rec_loads()
    a(f"""
    s_barrier
    v_mov_b32 v4, 0
    v_lshlrev_b32 v5, 2, v0
    v_cmp_gt_u32 vcc, 256, v0
    s_mov_b64 exec, vcc
    ds_write_b32 v5, v4
    s_mov_b64 exec, 1
    v_mov_b32 v5, {MISC}
    v_mov_b32 v6, 16
    ds_write_b32 v5, v6 offset:16
    s_mov_b64 exec, -1
    s_waitcnt lgkmcnt(0)
    s_barrier
    s_branch K2_BATCH
K2_FINAL:
    """)
    stamp(a, 8)
    a(f"""
    s_waitcnt vmcnt(0)
    s_and_b32 s24, s3, 3                 ; cp
    s_lshl_b32 s25, s24, 14
    s_add_u32 s25, s25, {W2F_OFF}
    v_lshlrev_b32 v4, 4, v1
    """)
    for f in range(16):
        if f and f % 4 == 0:
            a("s_add_u32 s25, s25, 4096")
        a(f"buffer_load_dwordx4 v[{vF+4*f}:{vF+4*f+3}], v4, s[{sWS}:{sWS+3}], s25 offen offset:{1024*(f%4)}")
    srd(a, sB2, 18, 19, 256)
    srd(a, sOUT, 20, 21, N * 256)
    a(f"""
    s_lshl_b32 s24, s24, 6
    v_lshlrev_b32 v5, 4, v3              ; g*16
    buffer_load_dwordx4 v[8:11], v5, s[{sB2}:{sB2+3}], s24 offen
    s_lshr_b32 s27, s3, 2
    s_lshl_b32 s27, s27, 4               ; first row tile * 16
    v_add_u32 v6, s27, v2
    v_mul_u32_u24 v7, {ROWS}, v6
    v_add_u32 v7, v7, v5
    v_add_u32 v7, {QH}, v7
    v_lshlrev_b32 v20, 2, v6
    v_add_u32 v21, s{sROW0}, v6
    v_lshl_add_u32 v21, v21, 8, v5
    s_mov_b32 s34, {NLN2:#x}
    s_barrier
    s_cmp_le_u32 s{sNBATCH}, 1
    s_cbranch_scc1 K2_GEMM2
    s_mul_i32 s28, s2, {SCR_STRIDE}
    s_add_u32 s28, s28, {SCR_OFF}
    s_mov_b32 s{sSCR}, s22
    s_mov_b32 s{sSCR+1}, s23
    s_mov_b32 s{sSCR+2}, {WS_USED}
    s_mov_b32 s{sSCR+3}, 0x00020000
    v_and_b32 v22, 1, v3
    v_lshlrev_b32 v22, 9, v22
    v_lshl_add_u32 v22, v2, 4, v22       ; s*512 + l*16
    v_lshl_add_u32 v23, v2, 4, v22       ; s*512 + l*32
    s_mov_b32 s29, s3
K2_CONV:
    s_mul_i32 s30, s29, {ROWS}
    s_add_u32 s31, s30, s28
    buffer_load_dwordx4 v[100:103], v23, s[{sSCR}:{sSCR+3}], s31 offen
    buffer_load_dwordx4 v[104:107], v23, s[{sSCR}:{sSCR+3}], s31 offen offset:16
    s_add_u32 s30, s30, {QH}
    v_add_u32 v24, s30, v22
    s_waitcnt vmcnt(0)
    v_cvt_pk_bf16_f32 v100, v100, v101
    v_cvt_pk_bf16_f32 v101, v102, v103
    v_cvt_pk_bf16_f32 v102, v104, v105
    v_cvt_pk_bf16_f32 v103, v106, v107
    ds_write_b128 v24, v[100:103]
    s_add_u32 s29, s29, 16
    s_cmp_lt_u32 s29, {NB}
    s_cbranch_scc1 K2_CONV
    s_waitcnt lgkmcnt(0)
    s_barrier
K2_GEMM2:
    """)
    stamp(a, 9)
    vHB = 96
    vO = 24
    for rt in range(2):
        off = rt * 64 * ROWS
        if rt == 1:
            a("s_cmp_ge_u32 s3, 12")
            a("s_cbranch_scc1 K2_FIN")
            a(f"v_add_u32 v7, {off}, v7")
            a(f"v_add_u32 v21, {64 * 256}, v21")
        a(f"ds_read_b32 v22, v20 offset:{DEGT + rt * 256}")
        for ks in range(8):
            a(f"ds_read_b128 v[{vHB+4*ks}:{vHB+4*ks+3}], v7 offset:{(ks >> 2) * 512 + (ks & 3) * 64}")
        if rt == 0:
            a("s_waitcnt vmcnt(0)")
            for p in range(4):
                a(f"v_lshlrev_b32 v{12+2*p}, 16, v{8+p}")
                a(f"v_and_b32 v{13+2*p}, 0xffff0000, v{8+p}")
        for ks in range(8):
            a(f"s_waitcnt lgkmcnt({7-ks})")
            for aa in range(2):
                f = vF + 4 * (aa * 8 + ks)
                c = "0" if ks == 0 else f"v[{vO+4*aa}:{vO+4*aa+3}]"
                a(f"v_mfma_f32_16x16x32_bf16 v[{vO+4*aa}:{vO+4*aa+3}], v[{f}:{f+3}], v[{vHB+4*ks}:{vHB+4*ks+3}], {c}")
        a("v_cvt_f32_u32 v22, v22")
        a(f"v_cmp_gt_u32 vcc, {NB - 64 * rt}, v6")
        a("s_nop 5")
        for r in range(8):
            a(f"v_mul_f32 v{vO+r}, s34, v{vO+r}")
        for r in range(8):
            a(f"v_fmac_f32 v{vO+r}, v22, v{12+r}")
        for r in range(4):
            a(f"v_cvt_pk_bf16_f32 v{vHB+r}, v{vO+2*r}, v{vO+2*r+1}")
        a("s_mov_b64 exec, vcc")
        a(f"buffer_store_dwordx4 v[{vHB}:{vHB+3}], v21, s[{sOUT}:{sOUT+3}], s24 offen")
        a("s_mov_b64 exec, -1")
        if rt == 0:
            a("s_nop 1")
    a("K2_FIN:")
    stamp(a, 10)
    if OPT["stamps"]:
        a("s_waitcnt vmcnt(0)")
    stamp(a, 11)
    stamp_flush(a, 1)
    a("""
K2_END:
    s_endpgm
    """)
    return a.text(), 128, (102 if OPT["stamps"] else 96)


HEADER = """; Kernarg layout for this problem (88 bytes, ptrs only, base s[0:1]):
"""


def kd(name, vgpr, sgpr):
    return f""".amdhsa_kernel {name}
  .amdhsa_next_free_vgpr {vgpr}
  .amdhsa_next_free_sgpr {sgpr}
  .amdhsa_accum_offset {(vgpr + 3) // 4 * 4}
  .amdhsa_group_segment_fixed_size 0
  .amdhsa_kernarg_size 88
  .amdhsa_user_sgpr_count 2
  .amdhsa_user_sgpr_kernarg_segment_ptr 1
  .amdhsa_system_sgpr_workgroup_id_x 1
.end_amdhsa_kernel
"""


def build():
    k1, v1, s1 = gen_k1()
    k2, v2, s2 = gen_k2()
    n1 = "mpnn_prep_kernel"
    n2 = "gather_scatter__edge_featured_mpnn_mpnn__graph_kernel"
    out = HEADER
    out += f"; @launch kernel={n1} grid=(256,1,1) block=(1024,1,1) lds={K1_LDS}\n"
    out += f"; @launch kernel={n2} grid=(256,1,1) block=(1024,1,1) lds={K2_LDS}\n"
    out += '.amdgcn_target "amdgcn-amd-amdhsa--gfx950"\n.text\n'
    for n, k in ((n1, k1), (n2, k2)):
        out += f".globl {n}\n.p2align 8\n.type {n},@function\n{n}:\n" + k
    out += '.section .rodata,"a"\n.p2align 6\n' + kd(n1, v1, s1) + ".p2align 6\n" + kd(n2, v2, s2)
    return out


if __name__ == "__main__":
    path = sys.argv[1] if len(sys.argv) > 1 else "gather_scatter__edge_featured_mpnn_mpnn__graph.s"
    for kv in sys.argv[2:]:
        k, v = kv.split("=")
        OPT[k] = int(v)
    open(path, "w").write(build())
    print("wrote", path, "K1_LDS", K1_LDS, "K2_LDS", K2_LDS)
```

```python
import sys

N = 25000; E = 400000
NB = 98
CH = 1564
CHS = 12544
PS = N * 256
P_OFF = 0
REC_OFF = 2 * PS
TAB_OFF = REC_OFF + 256 * CHS
W2F_OFF = TAB_OFF + 256 * 1024
PMAX_OFF = W2F_OFF + 65536
SCR_OFF = 0x1000000
SCR_STRIDE = 104448
WS_USED = SCR_OFF + 256 * SCR_STRIDE
NLOG2E = 0xbfb8aa3b
NLN2 = 0xbf317218
BOUND = 0x42dc0000

STAMP_OFF = 0x3000000
OPT = dict(U=4, stamps=False, pst="", rst="", prio=1)


class A:
    def __init__(self):
        self.l = []

    def __call__(self, s):
        for x in s.strip("\n").split("\n"):
            x = x.rstrip()
            if not x.strip():
                continue
            if x.strip().endswith(":") and not x.strip().startswith(";"):
                self.l.append(x.strip())
            else:
                self.l.append("    " + x.strip())

    def text(self):
        return "\n".join(self.l) + "\n"


def stamp(a, i):
    if OPT["stamps"]:
        a(f"""
        s_memrealtime s[98:99]
        s_waitcnt lgkmcnt(0)
        s_mov_b32 s{84+i}, s98
        """)


def cstamp(a, i):
    if OPT["stamps"]:
        a(f"""
        s_memtime s[98:99]
        s_waitcnt lgkmcnt(0)
        s_mov_b32 s{96+i}, s98
        """)


def stamp_init(a):
    if OPT["stamps"]:
        for i in range(14):
            a(f"s_mov_b32 s{84+i}, 0")


def stamp_flush(a, kern):
    if OPT["stamps"]:
        a(f"""
        s_mov_b64 exec, -1
        s_mov_b32 s4, s22
        s_mov_b32 s5, s23
        s_mov_b32 s6, 0x8000000
        s_mov_b32 s7, 0x00020000
        s_lshl_b32 s8, s2, 4
        s_add_u32 s8, s8, s3
        s_lshl_b32 s8, s8, 6
        s_add_u32 s8, s8, {STAMP_OFF + kern * 256 * 16 * 64}
        v_mov_b32 v0, 0
        s_mov_b64 exec, 1
        """)
        for i in range(14):
            a(f"v_mov_b32 v1, s{84+i}")
            a(f"buffer_store_dword v1, v0, s[4:7], s8 offen offset:{4*i}")


def srd(a, d, lo, hi, size, stride=0):
    a(f"s_mov_b32 s{d}, s{lo}")
    if stride:
        a(f"s_and_b32 s{d+1}, s{hi}, 0xffff")
        a(f"s_or_b32 s{d+1}, s{d+1}, {stride << 16:#x}")
    else:
        a(f"s_mov_b32 s{d+1}, s{hi}")
    a(f"s_mov_b32 s{d+2}, {size}")
    a(f"s_mov_b32 s{d+3}, 0x00020000")


def wave_scan(a, regs):
    steps = ["row_shr:1 row_mask:0xf", "row_shr:2 row_mask:0xf", "row_shr:4 row_mask:0xf", "row_shr:8 row_mask:0xf",
             "row_bcast:15 row_mask:0xa", "row_bcast:31 row_mask:0xc"]
    for st in steps:
        a("s_nop 1" if len(regs) == 1 else "s_nop 0")
        for r in regs:
            a(f"v_add_u32_dpp v{r}, v{r}, v{r} {st} bank_mask:0xf")


def row_max(a, r):
    for sh in (1, 2, 4, 8):
        a("s_nop 1")
        a(f"v_max_f32_dpp v{r}, v{r}, v{r} row_shr:{sh} row_mask:0xf bank_mask:0xf")


def common_ids(a):
    a("""
    v_lshrrev_b32 v1, 6, v0
    v_and_b32 v2, 15, v0               ; l16
    v_readfirstlane_b32 s3, v1         ; wave
    v_and_b32 v1, 63, v0               ; lane
    v_lshrrev_b32 v3, 4, v1            ; g
    """)


def dma_w_setup(a, vdst, vt, s0, s1):
    a(f"""
    s_and_b32 s{s0}, s3, 1
    s_lshl_b32 s{s0}, s{s0}, 1
    s_and_b32 s{s1}, s3, 2
    s_lshl_b32 s{s1}, s{s1}, 2
    s_or_b32 s{s0}, s{s0}, s{s1}
    s_and_b32 s{s1}, s3, 4
    s_or_b32 s{s0}, s{s0}, s{s1}
    s_and_b32 s{s1}, s3, 8
    s_lshl_b32 s{s1}, s{s1}, 3
    s_or_b32 s{s0}, s{s0}, s{s1}         ; k0
    s_lshl_b32 s{s0}, s{s0}, 9           ; k0*512
    s_and_b32 s{s1}, s3, 3
    s_lshl_b32 s{s1}, s{s1}, 6           ; (w&3)<<1 <<5
    v_lshrrev_b32 v{vt}, 5, v1           ; L>>5
    v_mul_u32_u24 v{vt}, 544, v{vt}      ; (L>>5)*512 + (L>>5)<<5
    v_and_b32 v{vdst}, 31, v1
    v_lshlrev_b32 v{vdst}, 4, v{vdst}    ; j*16
    v_xor_b32 v{vdst}, v{vt}, v{vdst}
    v_xor_b32 v{vdst}, s{s1}, v{vdst}
    """)


def dma_w_issue(a, vsrc, srdw, s0, s1, goff, wb):
    for i in range(4):
        a(f"s_add_u32 m0, s{s0}, {wb + i * 8192}")
        a(f"s_add_u32 s{s1}, s{s0}, {goff + i * 8192}")
        a(f"buffer_load_dwordx4 v{vsrc}, s[{srdw}:{srdw+3}], s{s1} offen lds")


def dma_x(a, srdx, srow0, vo, vt, st, xb):
    a(f"""
    s_and_b32 s{st}, s3, 1
    s_lshl_b32 s{st}, s{st}, 3
    v_add_u32 v{vt}, s{st}, v3           ; 8*(w&1)+g
    v_xor_b32 v{vt}, v2, v{vt}
    s_lshl_b32 s{st}, s3, 3
    s_add_u32 s{st}, s{st}, s{srow0}
    v_add_u32 v{vo}, s{st}, v3           ; row
    v_lshlrev_b32 v{vo}, 8, v{vo}
    v_lshl_add_u32 v{vo}, v{vt}, 4, v{vo}
    s_lshl_b32 s{st}, s3, 11
    s_add_u32 m0, s{st}, {xb}
    v_xor_b32 v{vt}, 64, v{vo}
    buffer_load_dwordx4 v{vo}, s[{srdx}:{srdx+3}], 0 offen lds
    buffer_load_dwordx4 v{vt}, s[{srdx}:{srdx+3}], 0 offen offset:1024 lds
    """)


def gemm_addr(a, vb, vxa, vt, st, wb, xb):
    a(f"""
    v_lshrrev_b32 v{vt}, 2, v2           ; r
    v_mul_u32_u24 v{vb}, 544, v{vt}      ; r*512 + r*32
    v_lshl_add_u32 v{vb}, v3, 12, v{vb}  ; + g*8*512
    v_and_b32 v{vt}, 1, v3
    v_lshl_add_u32 v{vb}, v{vt}, 7, v{vb} ; + (g&1)<<2<<5
    v_and_b32 v{vt}, 3, v2
    v_lshl_add_u32 v{vb}, v{vt}, 3, v{vb} ; + c*8
    s_and_b32 s{st}, s3, 7
    s_lshl_b32 s{st}, s{st}, 6
    v_xor_b32 v{vb}, s{st}, v{vb}
    v_add_u32 v{vb}, {wb}, v{vb}
    v_xor_b32 v{vb+1}, 32, v{vb}
    v_xor_b32 v{vt}, v2, v3
    v_lshlrev_b32 v{vt}, 4, v{vt}
    v_lshl_add_u32 v{vxa}, v2, 8, v{vt}
    s_lshr_b32 s{st}, s3, 3
    s_lshl_b32 s{st}, s{st}, 14
    s_add_u32 s{st}, s{st}, {xb}
    v_add_u32 v{vxa}, s{st}, v{vxa}
    v_xor_b32 v{vxa+1}, 64, v{vxa}
    v_xor_b32 v{vxa+2}, 0x80, v{vxa}
    v_xor_b32 v{vxa+3}, 0xc0, v{vxa}
    """)


def gemm_t(a, vW, vX, vAcc, vb, vxa, cinit, epi, pfx, mid=None, acc2=False):
    def xreads(i):
        for ks in range(4):
            r = vX + 16 * (i & 1) + 4 * ks
            a(f"ds_read_b128 v[{r}:{r+3}], v{vxa+ks} offset:{4096 * i}")

    def mf(i):
        for ks in range(4):
            for aa in range(2):
                acc = vAcc + 8 * ((i & 1) if acc2 else i) + 4 * aa
                c = cinit(aa) if ks == 0 else f"v[{acc}:{acc+3}]"
                w = vW + 16 * aa + 4 * ks
                x = vX + 16 * (i & 1) + 4 * ks
                a(f"v_mfma_f32_16x16x32_bf16 v[{acc}:{acc+3}], v[{w}:{w+3}], v[{x}:{x+3}], {c}")
    for aa in range(2):
        for ks in range(4):
            for h in range(2):
                r = vW + 16 * aa + 4 * ks + 2 * h
                a(f"ds_read_b64_tr_b16 v[{r}:{r+1}], v{vb+aa} offset:{ks * 16384 + h * 2048}")
    xreads(0)
    xreads(1)
    a("s_waitcnt lgkmcnt(4)")
    mf(0)
    xreads(2)
    a("s_waitcnt lgkmcnt(4)")
    mf(1)
    if mid:
        mid()
    xreads(3)
    epi(0)
    a("s_waitcnt lgkmcnt(%d)" % (4 + epi.nds))
    mf(2)
    epi(1)
    a("s_cmp_ge_u32 s3, 8")
    a(f"s_cbranch_scc1 {pfx}_E2")
    a("s_waitcnt lgkmcnt(%d)" % (2 * epi.nds))
    mf(3)
    epi(2)
    a("s_nop 1")
    epi(3)
    a(f"s_branch {pfx}_GD")
    a(f"{pfx}_E2:")
    epi(2, last=True)
    a(f"{pfx}_GD:")


K1_HIST = 0
K1_START = K1_HIST + 1024
K1_PM = K1_START + 1024
K1_STAGE = K1_PM + 256
K1_XB = 15360
K1_WB = K1_XB + 32768
assert K1_STAGE + CHS <= K1_XB
K1_LDS = K1_WB + 65536


def gen_k1():
    a = A()
    vW, vX, vAcc, vT = 20, 52, 84, 116
    vb, vxa = 4, 16
    sX, sW1, sDST, sSRC, sE, sW2, sWS = 36, 40, 44, 48, 52, 56, 60
    pst, rst = OPT["pst"], OPT["rst"]
    a("""
    s_cmp_ge_u32 s2, 256
    s_cbranch_scc1 K1_END
    s_load_dwordx16 s[4:19], s[0:1], 0
    s_load_dwordx2 s[22:23], s[0:1], 80
    """)
    stamp_init(a)
    stamp(a, 0)
    common_ids(a)
    dma_w_setup(a, 4, 5, 24, 25)
    a(f"s_mul_i32 s26, s2, {NB}              ; first row of bucket")
    a("s_waitcnt lgkmcnt(0)")
    srd(a, sX, 4, 5, N * 256)
    srd(a, sW1, 12, 13, 257 * 512)
    a("s_cmp_ge_u32 s3, 14")
    a("s_cbranch_scc1 K1_NOX")
    dma_x(a, sX, 26, 5, 6, 27, K1_XB)
    a("K1_NOX:")
    dma_w_issue(a, 4, sW1, 24, 25, 0, K1_WB)
    srd(a, sDST, 10, 11, E * 4)
    srd(a, sSRC, 8, 9, E * 4)
    srd(a, sE, 6, 7, E * 2)
    srd(a, sWS, 22, 23, SCR_OFF)
    a(f"""
    s_mul_i32 s29, s2, {CH}
    s_sub_u32 s30, {E}, s29
    s_min_u32 s30, s30, {CH}
    s_lshr_b32 s30, s30, 1
    v_lshl_add_u32 v6, v0, 1, s29        ; first edge index
    v_lshlrev_b32 v7, 1, v6
    v_lshlrev_b32 v6, 2, v6
    v_cmp_gt_u32 s[32:33], s30, v0
    v_mov_b32 v11, 0
    v_lshlrev_b32 v12, 2, v0
    v_cmp_gt_u32 vcc, 256, v0
    s_mov_b64 exec, vcc
    ds_write_b32 v12, v11 offset:{K1_HIST}
    ds_write_b32 v11, v11 offset:{K1_PM}
    s_mov_b64 exec, -1
    """)
    gemm_addr(a, vb, vxa, 11, 24, K1_WB, K1_XB)
    a(f"""
    s_mov_b32 s34, {NLOG2E:#x}
    s_mov_b32 s64, 42800
    s_mov_b32 s65, 0x07060100
    s_mov_b32 s66, 0x07060302
    s_lshr_b32 s27, s3, 3
    s_lshl_b32 s27, s27, 6               ; 64*rh
    s_sub_u32 s28, {N}, s26
    s_min_u32 s28, s28, {NB}
    s_sub_u32 s28, s28, s27              ; valid rows from this wave's first row
    s_add_u32 s27, s27, s26
    v_add_u32 v11, s27, v2
    v_lshlrev_b32 v11, 8, v11
    s_and_b32 s24, s3, 3
    s_lshl_b32 s24, s24, 2
    v_add_u32 v12, s24, v3
    v_lshl_add_u32 v11, v12, 4, v11
    s_bfe_u32 s25, s3, 0x10002
    s_mul_i32 s25, s25, {PS}
    v_mov_b32 v12, 0
    s_waitcnt vmcnt(0) lgkmcnt(0)
    """)
    stamp(a, 1)
    a("s_barrier")
    stamp(a, 2)
    cstamp(a, 0)
    a(f"""
    s_mov_b64 exec, s[32:33]
    buffer_load_dword v10, v7, s[{sE}:{sE+3}], 0 offen
    buffer_load_dwordx2 v[8:9], v6, s[{sSRC}:{sSRC+3}], 0 offen
    buffer_load_dwordx2 v[6:7], v6, s[{sDST}:{sDST+3}], 0 offen
    s_mov_b64 exec, -1
    """)

    def epi(i, last=False):
        lo = vAcc + 8 * i; hi = lo + 4
        if last:
            a("s_nop 4")
        for r in range(8):
            a(f"v_fma_f32 v{lo+r}, v{lo+r}, s34, 0")
        a(f"v_cvt_pk_bf16_f32 v14, v{lo}, v{lo+1}")
        a(f"v_cvt_pk_bf16_f32 v15, v{lo+2}, v{lo+3}")
        for r in range(0, 8, 2):
            a(f"v_max3_f32 v12, |v{lo+r}|, |v{lo+r+1}|, v12")
        for r in range(4):
            a(f"v_add_u32 v{hi+r}, 0x8000, v{hi+r}")
        for r in range(4):
            a(f"v_sub_u32_sdwa v{hi+r}, v{hi+r}, v{14+(r>>1)} clamp dst_sel:DWORD dst_unused:UNUSED_PAD src0_sel:DWORD src1_sel:WORD_{r&1}")
        for r in range(4):
            a(f"v_perm_b32 v{lo+r}, v{hi+r}, v{14+(r>>1)}, s{65+(r&1)}")
        a(f"v_cmp_gt_i32 vcc, s28, v2")
        a(f"s_mov_b64 exec, vcc")
        a(f"buffer_store_dwordx4 v[{lo}:{lo+3}], v11, s[{sWS}:{sWS+3}], s25 offen {pst}")
        a(f"s_mov_b64 exec, -1")
        a("s_sub_u32 s28, s28, 16")
        a("s_add_u32 s25, s25, 4096")
        if i == 3 or last:
            a(f"s_waitcnt vmcnt({i + 1})")
    epi.nds = 0
    gemm_t(a, vW, vX, vAcc, vb, vxa, lambda aa: "0", epi, "K1")
    stamp(a, 3)
    srd(a, sW2, 16, 17, 65536)
    a(f"""
    s_cmp_lg_u32 s3, 15
    s_cbranch_scc1 K1_NOW2
    s_lshr_b32 s24, s2, 2                ; F = G>>6
    s_and_b32 s25, s2, 3                 ; g' = (G&63)>>4
    s_and_b32 s31, s24, 7
    s_lshl_b32 s31, s31, 5
    s_lshl_b32 s25, s25, 2
    s_add_u32 s31, s31, s25
    s_lshl_b32 s31, s31, 8               ; *256 bytes
    s_lshr_b32 s25, s24, 4               ; cp
    s_lshl_b32 s25, s25, 5
    s_bfe_u32 s24, s24, 0x10003          ; a
    s_lshl_b32 s24, s24, 2
    s_add_u32 s24, s24, s25              ; 32cp + 4a
    v_lshrrev_b32 v13, 2, v2
    v_lshlrev_b32 v13, 3, v13            ; 8*(m>>2)
    v_and_b32 v14, 3, v2
    v_add3_u32 v13, v13, v14, s24        ; col
    v_lshlrev_b32 v13, 1, v13
    s_mov_b64 exec, 0xffff
    """)
    for t in range(8):
        if t == 4:
            a("s_add_u32 s31, s31, 4096")
        r = vW + (t >> 1) + 4 * (t & 1)
        a(f"buffer_load_ushort v{r}, v13, s[{sW2}:{sW2+3}], s31 offen offset:{256 * (t & 3)}")
    a(f"""
    s_waitcnt vmcnt(0)
    v_lshl_or_b32 v{vW}, v{vW+4}, 16, v{vW}
    v_lshl_or_b32 v{vW+1}, v{vW+5}, 16, v{vW+1}
    v_lshl_or_b32 v{vW+2}, v{vW+6}, 16, v{vW+2}
    v_lshl_or_b32 v{vW+3}, v{vW+7}, 16, v{vW+3}
    s_lshl_b32 s24, s2, 8
    s_add_u32 s24, s24, {W2F_OFF}
    v_lshlrev_b32 v13, 4, v2
    buffer_store_dwordx4 v[{vW}:{vW+3}], v13, s[{sWS}:{sWS+3}], s24 offen {rst}
    s_mov_b64 exec, -1
K1_NOW2:
    v_mov_b32 v19, v12
    """)
    row_max(a, 19)
    a(f"""
    v_mov_b32 v4, 0
    s_mov_b32 exec_lo, 0x80008000
    s_mov_b32 exec_hi, 0x80008000
    ds_max_u32 v4, v19 offset:{K1_PM}
    s_mov_b64 exec, s[32:33]
    v_mul_u32_u24 v11, s64, v6
    v_mul_u32_u24 v12, s64, v7
    v_lshrrev_b32 v11, 22, v11           ; bucket
    v_lshrrev_b32 v12, 22, v12
    v_mul_u32_u24 v13, {NB}, v11
    v_mul_u32_u24 v14, {NB}, v12
    v_sub_u32 v13, v6, v13               ; dloc
    v_sub_u32 v14, v7, v14
    v_lshlrev_b32 v11, 2, v11
    v_lshlrev_b32 v12, 2, v12
    v_lshlrev_b32 v15, 16, v10
    v_and_b32 v16, 0xffff0000, v10
    v_lshl_or_b32 v15, v13, 2, v15       ; e<<16 | dloc*4
    v_lshl_or_b32 v16, v14, 2, v16
    v_mov_b32 v10, 1
    ds_add_rtn_u32 v13, v11, v10 offset:{K1_HIST}
    ds_add_rtn_u32 v14, v12, v10 offset:{K1_HIST}
    s_mov_b64 exec, -1
    s_waitcnt lgkmcnt(0)
    """)
    stamp(a, 4)
    a("s_barrier")
    stamp(a, 5)
    cstamp(a, 1)
    a(f"""
    v_lshlrev_b32 v4, 4, v1
    ds_read_b128 v[20:23], v4 offset:{K1_HIST}
    v_mov_b32 v5, 0
    ds_read_b32 v19, v5 offset:{K1_PM}
    s_waitcnt lgkmcnt(0)
    v_add_u32 v25, v20, v21              ; p2
    v_add_u32 v26, v25, v22              ; p3
    v_add_u32 v27, v26, v23              ; tot
    v_mov_b32 v28, v27
    """)
    wave_scan(a, [28])
    a(f"""
    v_sub_u32 v28, v28, v27              ; base
    v_add_u32 v29, v28, v20
    v_add_u32 v30, v28, v25
    v_add_u32 v31, v28, v26
    v_lshlrev_b32 v32, 3, v28
    v_lshlrev_b32 v33, 3, v29
    v_lshlrev_b32 v34, 3, v30
    v_lshlrev_b32 v35, 3, v31
    ds_write_b128 v4, v[32:35] offset:{K1_START}
    s_cmp_lg_u32 s3, 0
    s_cbranch_scc1 K1_NOTAB
    v_lshl_or_b32 v28, v20, 16, v28
    v_lshl_or_b32 v29, v21, 16, v29
    v_lshl_or_b32 v30, v22, 16, v30
    v_lshl_or_b32 v31, v23, 16, v31
    s_lshl_b32 s24, s2, 10
    s_add_u32 s24, s24, {TAB_OFF}
    buffer_store_dwordx4 v[28:31], v4, s[{sWS}:{sWS+3}], s24 offen {rst}
    s_lshl_b32 s24, s2, 2
    s_add_u32 s24, s24, {PMAX_OFF}
    s_mov_b64 exec, 1
    buffer_store_dword v19, v5, s[{sWS}:{sWS+3}], s24 offen {rst}
    s_mov_b64 exec, -1
K1_NOTAB:
    s_waitcnt lgkmcnt(0)
    s_mov_b64 exec, s[32:33]
    ds_read_b32 v11, v11 offset:{K1_START}
    ds_read_b32 v12, v12 offset:{K1_START}
    v_mov_b32 v36, v8
    v_mov_b32 v37, v15
    v_mov_b32 v38, v9
    v_mov_b32 v39, v16
    s_waitcnt lgkmcnt(0)
    v_lshl_add_u32 v11, v13, 3, v11
    v_lshl_add_u32 v12, v14, 3, v12
    ds_write_b64 v11, v[36:37] offset:{K1_STAGE}
    ds_write_b64 v12, v[38:39] offset:{K1_STAGE}
    s_mov_b64 exec, -1
    s_waitcnt lgkmcnt(0)
    s_barrier
    v_lshlrev_b32 v4, 4, v0
    v_cmp_gt_u32 vcc, {CHS // 16}, v0
    s_mov_b64 exec, vcc
    s_cbranch_execz K1_FIN
    ds_read_b128 v[20:23], v4 offset:{K1_STAGE}
    s_mul_i32 s24, s2, {CHS}
    s_add_u32 s24, s24, {REC_OFF}
    s_waitcnt lgkmcnt(0)
    buffer_store_dwordx4 v[20:23], v4, s[{sWS}:{sWS+3}], s24 offen {rst}
K1_FIN:
    """)
    stamp(a, 6)
    if OPT["stamps"]:
        a("s_waitcnt vmcnt(0)")
    stamp(a, 7)
    stamp_flush(a, 0)
    a("""
K1_END:
    s_endpgm
    """)
    return a.text(), 116, (102 if OPT["stamps"] else 72)


ROWS = 1040
CNT = 0
SABS = CNT + 512
DH = SABS + 512
DEGT = DH + 256
POS = DEGT + 512
INFO = POS + 512
MISC = INFO + 1600
WT = MISC + 64
LIST = (WT + 1024 + 255) // 256 * 256
LISTCAP = 6144
QH = (LIST + LISTCAP * 8 + 128 + 255) // 256 * 256
K2_LDS = QH + 100 * ROWS
assert K2_LDS <= 163840
assert MISC % 16 == 0 and INFO % 16 == 0 and WT % 16 == 0


def gen_k2():
    U = OPT["U"]
    a = A()
    vW, vX, vAcc = 20, 52, 84
    vAcc = 84
    vRec, vRank, vPos = 100, 112, 118
    vb, vxa, vB1 = 4, 6, 10
    sX, sW1, sB1, sWS, sP, sOUT, sB2, sSCR = 36, 40, 44, 48, 52, 56, 60, 64
    sROW0 = 26
    sBATCH = 68; sNBATCH = 69; sRECB = 70
    sM = 72
    a("""
    s_cmp_ge_u32 s2, 256
    s_cbranch_scc1 K2_END
    s_load_dwordx16 s[4:19], s[0:1], 0
    s_load_dwordx2 s[20:21], s[0:1], 64
    s_load_dwordx2 s[22:23], s[0:1], 80
    """)
    stamp_init(a)
    stamp(a, 0)
    common_ids(a)
    a(f"""
    v_lshrrev_b32 v126, 2, v0            ; cell
    v_lshlrev_b32 v7, 10, v126
    s_lshl_b32 s30, s2, 2
    s_add_u32 s30, s30, {TAB_OFF}
    s_mul_i32 s{sROW0}, s2, {NB}
    """)
    dma_w_setup(a, 4, 5, 24, 25)
    a("s_waitcnt lgkmcnt(0)")
    srd(a, sWS, 22, 23, SCR_OFF)
    a(f"buffer_load_dword v124, v7, s[{sWS}:{sWS+3}], s30 offen")
    srd(a, sX, 4, 5, N * 256)
    srd(a, sW1, 12, 13, 257 * 512)
    a("s_cmp_ge_u32 s3, 14")
    a("s_cbranch_scc1 K2_AUXLD")
    dma_x(a, sX, sROW0, 5, 6, 27, LIST)
    a(f"""
    s_branch K2_WLD
K2_AUXLD:
    v_subrev_u32 v123, 896, v0           ; 0..127
    v_lshlrev_b32 v8, 2, v123
    v_lshlrev_b32 v9, 3, v123
    s_mov_b32 s28, {256 * 512}
    s_mov_b32 s29, {PMAX_OFF}
    buffer_load_dword v122, v8, s[{sW1}:{sW1+3}], s28 offen
    buffer_load_dwordx2 v[120:121], v9, s[{sWS}:{sWS+3}], s29 offen
K2_WLD:
    """)
    dma_w_issue(a, 4, sW1, 24, 25, 128 * 512, QH)
    srd(a, sB1, 14, 15, 512)
    a(f"""
    s_and_b32 s24, s3, 7
    s_lshl_b32 s24, s24, 6
    v_lshlrev_b32 v5, 3, v3
    buffer_load_dwordx2 v[112:113], v5, s[{sB1}:{sB1+3}], s24 offen
    buffer_load_dwordx2 v[114:115], v5, s[{sB1}:{sB1+3}], s24 offen offset:32
    v_mov_b32 v4, 0
    v_lshlrev_b32 v5, 2, v0
    v_cmp_gt_u32 vcc, {(POS - CNT) // 4}, v0
    s_mov_b64 exec, vcc
    ds_write_b32 v5, v4 offset:{CNT}
    s_mov_b64 exec, 31
    v_cmp_eq_u32 vcc, 4, v1
    v_lshlrev_b32 v5, 2, v1
    s_nop 0
    v_cndmask_b32 v6, 0, 16, vcc
    ds_write_b32 v5, v6 offset:{MISC}
    s_mov_b64 exec, -1
    v_mul_u32_u24 v125, {CHS}, v126
    v_and_b32 v126, 3, v0
    v_lshlrev_b32 v126, 1, v126          ; slot0 = 2j
    s_mov_b32 s{sRECB}, {REC_OFF}
    s_mov_b32 s{sBATCH}, 0
    s_waitcnt vmcnt(8)
    """)
    stamp(a, 1)
    a(f"""
    v_and_b32 v7, 0xffff, v124           ; start
    v_lshrrev_b32 v124, 16, v124         ; cnt
    v_add_u32 v7, v7, v126
    v_lshl_add_u32 v125, v7, 3, v125
    v_sub_u32 v127, v124, v126
    """)

    def rec_loads():
        for k in range(6):
            a(f"v_cmp_lt_i32 s[{sM+2*k}:{sM+2*k+1}], {8*(k>>1)+(k&1)}, v127")
        for m in range(3):
            a(f"s_mov_b64 exec, s[{sM+4*m}:{sM+4*m+1}]")
            a(f"buffer_load_dwordx4 v[{vRec+4*m}:{vRec+4*m+3}], v125, s[{sWS}:{sWS+3}], s{sRECB} offen offset:{64*m}")
        a("s_mov_b64 exec, -1")
    rec_loads()
    gemm_addr(a, vb, vxa, 10, 24, QH, LIST)
    a(f"""
    s_mov_b32 s34, {NLOG2E:#x}
    s_lshr_b32 s27, s3, 3
    s_mul_i32 s27, s27, {64 * ROWS}
    s_bfe_u32 s24, s3, 0x10002
    s_lshl_b32 s24, s24, 9
    s_add_u32 s27, s27, s24
    s_and_b32 s24, s3, 3
    s_lshl_b32 s24, s24, 6
    s_add_u32 s27, s27, s24
    s_add_u32 s27, s27, {QH}
    v_mul_u32_u24 v18, {ROWS}, v2
    v_lshl_add_u32 v18, v3, 4, v18
    v_add_u32 v18, s27, v18
    v_mov_b32 v19, 0
    v_cmp_lt_u32 s[28:29], 24, v124
    s_waitcnt vmcnt(3) lgkmcnt(0)
    """)
    for p in range(4):
        a(f"v_lshlrev_b32 v{vB1+2*p}, 16, v{112+p}")
        a(f"v_and_b32 v{vB1+2*p+1}, 0xffff0000, v{112+p}")
    a("s_barrier")
    stamp(a, 2)

    def epi(i, last=False):
        o = vAcc + 8 * (i & 1)
        for r in range(8):
            a(f"v_mul_f32 v{o+r}, s34, v{o+r}")
        for r in range(0, 8, 2):
            a(f"v_max3_f32 v19, |v{o+r}|, |v{o+r+1}|, v19")
        if last:
            a("s_mov_b32 exec_lo, 0x00030003")
            a("s_mov_b32 exec_hi, 0x00030003")
        a(f"ds_write_b128 v18, v[{o}:{o+3}] offset:{i * 16 * ROWS}")
        a(f"ds_write_b128 v18, v[{o+4}:{o+7}] offset:{i * 16 * ROWS + 256}")
        if last:
            a("s_mov_b64 exec, -1")
    epi.nds = 2
    gemm_t(a, vW, vX, vAcc, vb, vxa, lambda aa: f"v[{vB1+4*aa}:{vB1+4*aa+3}]", epi, "K2", mid=lambda: a("s_barrier"), acc2=True)
    row_max(a, 19)
    a(f"""
    v_mov_b32 v4, 0
    s_mov_b32 exec_lo, 0x80008000
    s_mov_b32 exec_hi, 0x80008000
    ds_max_u32 v4, v19 offset:{MISC + 4}
    s_mov_b64 exec, s[28:29]
    ds_max_u32 v4, v124 offset:{MISC + 12}
    s_mov_b64 exec, -1
    s_cmp_lt_u32 s3, 14
    s_cbranch_scc1 K2_BATCH
    v_lshlrev_b32 v24, 16, v122
    v_and_b32 v25, 0xffff0000, v122
    v_mul_f32 v24, s34, v24
    v_mul_f32 v25, s34, v25
    v_and_b32 v9, 1, v123
    v_lshlrev_b32 v9, 3, v9              ; (h&3)*4
    v_bfe_u32 v10, v123, 1, 2
    v_lshl_add_u32 v9, v10, 4, v9        ; + ((h>>2)&3)*16
    v_bfe_u32 v10, v123, 4, 2
    v_lshl_add_u32 v9, v10, 6, v9        ; + ((h>>5)&3)*64
    v_bfe_u32 v10, v123, 3, 1
    v_lshl_add_u32 v9, v10, 8, v9        ; + half*256
    v_lshrrev_b32 v10, 6, v123
    v_lshl_add_u32 v9, v10, 9, v9        ; + s*512
    ds_write_b64 v9, v[24:25] offset:{WT}
    v_max3_f32 v10, |v24|, |v25|, 0
    v_max_f32 v11, v120, v121
    """)
    row_max(a, 10)
    row_max(a, 11)
    a(f"""
    s_mov_b32 exec_lo, 0x80008000
    s_mov_b32 exec_hi, 0x80008000
    ds_max_u32 v4, v10 offset:{MISC + 8}
    ds_max_u32 v4, v11 offset:{MISC}
    s_mov_b64 exec, -1
    """)
    a(f"""
K2_BATCH:
    v_mov_b32 v9, 1
    """)
    stamp(a, 3)
    a("s_waitcnt vmcnt(0)")
    stamp(a, 4)
    for k in range(6):
        m, o = k >> 1, k & 1
        r1 = vRec + 4 * m + 2 * o + 1
        a(f"s_mov_b64 exec, s[{sM+2*k}:{sM+2*k+1}]")
        if k in (2, 4):
            a("s_cbranch_execz K2_HISTDONE")
        a(f"v_and_b32 v{vPos+k}, 0xffff, v{r1}")
        a(f"v_and_b32 v8, 0x7fff0000, v{r1}")
        a(f"ds_add_rtn_u32 v{vRank+k}, v{vPos+k}, v9 offset:{CNT}")
        if not OPT.get("nosabs"):
            a(f"ds_add_f32 v{vPos+k}, v8 offset:{SABS}")
        a(f"v_and_b32 v{r1}, 0xffff0000, v{r1}")
    a(f"""
K2_HISTDONE:
    s_mov_b64 exec, -1
    v_lshlrev_b32 v8, 2, v1
    s_waitcnt lgkmcnt(0)
    s_barrier
    """)
    stamp(a, 5)
    a(f"""
    s_cmp_ge_u32 s3, 2
    s_cbranch_scc1 K2_B1B
    ds_read_b32 v20, v8 offset:{CNT}
    ds_read_b32 v21, v8 offset:{CNT + 256}
    s_cmp_eq_u32 s3, 0
    s_cbranch_scc1 K2_SCAN
    ds_read_b32 v30, v8 offset:{SABS}
    ds_read_b32 v31, v8 offset:{SABS + 256}
    s_waitcnt lgkmcnt(2)
    v_min_u32 v24, 63, v20
    v_min_u32 v25, 63, v21
    v_sub_u32 v24, 63, v24
    v_sub_u32 v25, 63, v25
    v_lshlrev_b32 v24, 2, v24
    v_lshlrev_b32 v25, 2, v25
    ds_add_rtn_u32 v26, v24, v9 offset:{DH}
    s_mov_b32 exec_hi, 0xf
    s_mov_b32 exec_lo, -1                ; nodes 64..99
    ds_add_rtn_u32 v27, v25, v9 offset:{DH}
    s_mov_b64 exec, -1
    ds_read_b32 v28, v8 offset:{DH}
K2_SCAN:
    s_waitcnt lgkmcnt(0)
    v_mov_b32 v22, v20
    v_mov_b32 v23, v21
    v_mov_b32 v29, v28
    """)
    wave_scan(a, [22, 23, 29])
    a(f"""
    v_mov_b32 v10, {LIST}
    v_readlane_b32 s24, v22, 63
    v_sub_u32 v22, v22, v20
    v_sub_u32 v23, v23, v21
    v_add_u32 v23, s24, v23
    v_lshl_add_u32 v22, v22, 3, v10
    v_lshl_add_u32 v23, v23, 3, v10
    s_cmp_eq_u32 s3, 0
    s_cbranch_scc0 K2_RANK
    ds_write_b32 v8, v22 offset:{POS}
    ds_write_b32 v8, v23 offset:{POS + 256}
    ds_add_u32 v8, v20 offset:{DEGT}
    ds_add_u32 v8, v21 offset:{DEGT + 256}
    s_waitcnt lgkmcnt(2)
    s_branch K2_B1B
K2_RANK:
    v_sub_u32 v29, v29, v28
    ds_bpermute_b32 v24, v24, v29
    ds_bpermute_b32 v25, v25, v29
    v_mov_b32 v36, v22
    v_mov_b32 v37, v20
    v_mul_u32_u24 v38, {ROWS}, v1
    v_add_u32 v38, {QH}, v38
    v_mov_b32 v39, v30
    v_mov_b32 v40, v23
    v_mov_b32 v41, v21
    v_add_u32 v42, {64 * ROWS}, v38
    v_mov_b32 v43, v31
    s_waitcnt lgkmcnt(0)
    v_add_lshl_u32 v24, v24, v26, 4
    v_add_lshl_u32 v25, v25, v27, 4
    ds_write_b128 v24, v[36:39] offset:{INFO}
    s_mov_b32 exec_hi, 0xf
    ds_write_b128 v25, v[40:43] offset:{INFO}
    s_mov_b64 exec, -1
K2_B1B:
    s_barrier
    """)
    for k in range(6):
        a(f"s_mov_b64 exec, s[{sM+2*k}:{sM+2*k+1}]")
        if k in (2, 4):
            a("s_cbranch_execz K2_POSDONE")
        a(f"ds_read_b32 v{vPos+k}, v{vPos+k} offset:{POS}")
    a("""
K2_POSDONE:
    s_waitcnt lgkmcnt(0)
    """)
    for k in range(6):
        m, o = k >> 1, k & 1
        r0 = vRec + 4 * m + 2 * o
        a(f"s_mov_b64 exec, s[{sM+2*k}:{sM+2*k+1}]")
        if k in (2, 4):
            a("s_cbranch_execz K2_SCATDONE")
        a(f"v_lshl_add_u32 v{vPos+k}, v{vRank+k}, 3, v{vPos+k}")
        a(f"ds_write_b64 v{vPos+k}, v[{r0}:{r0+1}]")
    a(f"""
K2_SCATDONE:
    s_mov_b64 exec, -1
    """)
    vPair = 4
    vE = vPair + 2 * U
    vAddr, vDeg, vH, vL16, vK1, vWM, vG16, vWT = vE + 2, vE + 3, vE + 4, vE + 5, vE + 6, vE + 7, vE + 8, vE + 9
    assert vWT < 26 or U > 4
    vI = 100
    keep = [26, 27, 28, 29]
    if U > 4:
        vAddr, vDeg, vH, vL16, vK1, vWM, vG16, vWT = 104, 105, 106, 107, 108, 109, 110, 111
        assert vE + 1 < 26
    vQ, vW, vT, vX, vN, vD = 32, 40, 48, 56, 64, 72
    vP = 80 if U <= 4 else 112 - 0
    if U > 4:
        raise SystemExit("U>4 register map not done")
    sQ, sS, sD0, sD3, sSafe, sSl, sSEL = 27, 28, 29, 30, 31, 32, 33
    srd(a, sP, 22, 23, N, stride=256)
    a(f"""
    v_mov_b32 v{vI}, {MISC}
    s_waitcnt lgkmcnt(0)
    """)
    stamp(a, 6)
    a("s_barrier")
    stamp(a, 7)
    cstamp(a, 0)
    a(f"""
    ds_read_b128 v[{vI}:{vI+3}], v{vI}
    v_lshlrev_b32 v{vL16}, 4, v2
    v_mov_b32 v{vG16}, {INFO}
    v_lshl_add_u32 v{vG16}, v3, 4, v{vG16}
    v_add_u32 v{vWT}, {WT}, v{vL16}
    """)
    for j in range(U):
        a(f"v_mov_b32 v{vPair+2*j+1}, v{vL16}")
    a(f"""
    s_mov_b32 s{sSEL}, 0x00003f80
    s_mov_b32 s{sQ}, s3
    s_waitcnt lgkmcnt(0)
    v_readfirstlane_b32 s24, v{vI+3}
    v_add_f32 v{vK1}, v{vI}, v{vI+1}
    v_add_f32 v{vK1}, 1.0, v{vK1}
    v_mov_b32 v{vWM}, v{vI+2}
    s_add_u32 s24, s24, 23
    s_mul_i32 s24, s24, 2731
    s_lshr_b32 s{sNBATCH}, s24, 16
    s_cmp_le_u32 s{sNBATCH}, 1
    s_cbranch_scc1 K2_ITEM
    v_mov_b32 v{vK1}, 0x7f800000         ; several batches: every item takes the plain path
K2_ITEM:
    s_cmp_ge_u32 s{sQ}, 50
    s_cbranch_scc1 K2_DONE
    s_cmp_ge_u32 s{sQ}, 25
    s_cselect_b32 s24, 25, 0
    s_cselect_b32 s25, 512, 0
    s_cselect_b32 s{sSl}, {PS}, 0
    s_sub_u32 s24, s{sQ}, s24
    s_lshl_b32 s24, s24, 6
    v_add_u32 v{vI}, s24, v{vG16}
    ds_read_b128 v[{vI}:{vI+3}], v{vI}
    v_add_u32 v{vH}, s25, v{vWT}
    ds_read_b128 v[{vW}:{vW+3}], v{vH}
    ds_read_b128 v[{vW+4}:{vW+7}], v{vH} offset:256
    s_mov_b32 s{sP+2}, {N}
    s_waitcnt lgkmcnt(2)
    v_mov_b32 v{vAddr}, v{vI}
    """)
    for j in range(U):
        a(f"ds_read_b32 v{vPair+2*j}, v{vI} offset:{8*j}")
    a(f"""
    v_mov_b32 v{vDeg}, v{vI+1}
    v_add3_u32 v{vH}, v{vI+2}, s25, v{vL16}
    v_readlane_b32 s{sD0}, v{vI+1}, 0
    v_readlane_b32 s{sD3}, v{vI+1}, 48
    v_readlane_b32 s35, v{vI+1}, 16
    v_readlane_b32 s71, v{vI+1}, 32
    ds_read_b32 v{vE}, v{vI} offset:4
    ds_read_b128 v[{vQ}:{vQ+3}], v{vH}
    ds_read_b128 v[{vQ+4}:{vQ+7}], v{vH} offset:256
    v_cvt_f32_u32 v{vI}, v{vI+1}
    v_mul_f32 v{vI+3}, v{vWM}, v{vI+3}
    v_fma_f32 v{vI}, v{vI}, v{vK1}, v{vI+3}
    """)
    for j in range(U):
        a(f"s_waitcnt lgkmcnt({U + 2 - j})")
        a(f"buffer_load_dwordx4 v[{vP+4*j}:{vP+4*j+3}], v[{vPair+2*j}:{vPair+2*j+1}], s[{sP}:{sP+3}], s{sSl} idxen offen")
    a(f"""
    ds_read_b32 v{vPair}, v{vAddr} offset:{8*U}
    v_cmp_nge_f32 vcc, {BOUND:#x}, v{vI}
    s_max_u32 s24, s{sD0}, s{sD3}
    s_min_u32 s{sD3}, s{sD0}, s{sD3}
    s_max_u32 s{sD0}, s35, s71
    s_min_u32 s35, s35, s71
    s_max_u32 s{sD0}, s{sD0}, s24
    s_min_u32 s{sD3}, s{sD3}, s35
    s_min_u32 s{sD0}, s{sD0}, {LISTCAP}
    s_sub_u32 s24, s{sD0}, {U}
    s_min_i32 s{sSafe}, s24, s{sD3}
    s_cmp_gt_i32 s24, 0
    s_cselect_b32 s{sP+2}, {N}, 0
    s_mov_b32 s{sS}, 0
    {"s_setprio 0" if OPT["prio"] else ""}
    s_cbranch_vccnz K2_P_START
    s_cmp_lg_u32 s{sD3}, 0
    s_cbranch_scc1 K2_F_FIRST
    """)
    for r in range(8):
        a(f"v_mov_b32 v{vN+r}, 0")
        a(f"v_mov_b32 v{vD+r}, 1.0")
    a(f"""
    s_cmp_eq_u32 s{sD0}, 0
    s_cbranch_scc1 K2_F_FLUSH
    v_cmpx_lt_u32 vcc, 0, v{vDeg}
    """)

    def step(j, mode):
        P = vP + 4 * j
        T = vN if mode == "first" else vT
        eh = j & 1
        jn = (j + 1) % U
        osel = "op_sel_hi:[1,0,1]" if eh == 0 else "op_sel:[0,1,0] op_sel_hi:[1,1,1]"
        a("s_waitcnt lgkmcnt(0)")
        for r in range(0, 8, 2):
            a(f"v_pk_fma_f32 v[{T+r}:{T+r+1}], v[{vW+r}:{vW+r+1}], v[{vE}:{vE+1}], v[{vQ+r}:{vQ+r+1}] {osel}")
        a(f"ds_read_b32 v{vE + (eh ^ 1)}, v{vAddr} offset:{8*(j+1)+4}")
        a(f"s_waitcnt vmcnt({U-1})")
        if mode != "plain":
            for p in range(4):
                a(f"v_dot2_f32_bf16 v{T+p}, v{P+p}, s{sSEL}, v{T+p}")
            a(f"v_pk_add_f32 v[{T+4}:{T+5}], v[{P}:{P+1}], v[{T+4}:{T+5}]")
            a(f"v_pk_add_f32 v[{T+6}:{T+7}], v[{P+2}:{P+3}], v[{T+6}:{T+7}]")
        else:
            for p in range(4):
                a(f"v_lshlrev_b32 v{vX+p}, 16, v{P+p}")
            a(f"v_pk_add_f32 v[{T+4}:{T+5}], v[{P}:{P+1}], v[{T+4}:{T+5}]")
            a(f"v_pk_add_f32 v[{T+6}:{T+7}], v[{P+2}:{P+3}], v[{T+6}:{T+7}]")
            a(f"v_pk_add_f32 v[{T}:{T+1}], v[{vX}:{vX+1}], v[{T}:{T+1}]")
            a(f"v_pk_add_f32 v[{T+2}:{T+3}], v[{vX+2}:{vX+3}], v[{T+2}:{T+3}]")
        a(f"buffer_load_dwordx4 v[{P}:{P+3}], v[{vPair+2*j}:{vPair+2*j+1}], s[{sP}:{sP+3}], s{sSl} idxen offen")
        a(f"ds_read_b32 v{vPair+2*jn}, v{vAddr} offset:{8*(j+1+U)}")
        for r in (4, 5, 6, 7, 0, 1, 2, 3):
            a(f"v_exp_f32 v{vX+r}, v{T+r}")
        order = (4, 6, 0, 2)
        if mode == "first":
            for r in order:
                a(f"v_pk_add_f32 v[{vD+r}:{vD+r+1}], v[{vX+r}:{vX+r+1}], 1.0 op_sel_hi:[1,0]")
        elif mode == "fast":
            for r in order:
                a(f"v_pk_fma_f32 v[{vN+r}:{vN+r+1}], v[{vN+r}:{vN+r+1}], v[{vX+r}:{vX+r+1}], v[{vN+r}:{vN+r+1}]")
            for r in order:
                a(f"v_pk_fma_f32 v[{vN+r}:{vN+r+1}], v[{T+r}:{T+r+1}], v[{vD+r}:{vD+r+1}], v[{vN+r}:{vN+r+1}]")
            for r in order:
                a(f"v_pk_fma_f32 v[{vD+r}:{vD+r+1}], v[{vD+r}:{vD+r+1}], v[{vX+r}:{vX+r+1}], v[{vD+r}:{vD+r+1}]")
        else:
            for r in order:
                a(f"v_pk_add_f32 v[{vX+r}:{vX+r+1}], v[{vX+r}:{vX+r+1}], 1.0 op_sel_hi:[1,0]")
            for r in (4, 5, 6, 7, 0, 1, 2, 3):
                a(f"v_rcp_f32 v{vX+r}, v{vX+r}")
            for r in order:
                a(f"v_pk_fma_f32 v[{vN+r}:{vN+r+1}], v[{T+r}:{T+r+1}], v[{vX+r}:{vX+r+1}], v[{vN+r}:{vN+r+1}]")
        if j == U - 1:
            a(f"v_add_u32 v{vAddr}, {8*U}, v{vAddr}")
            if OPT["prio"]:
                a("s_setprio 1")
        a(f"s_add_u32 s{sS}, s{sS}, 1")
        a(f"s_cmp_ge_i32 s{sS}, s{sSafe}")

    def loop(pfx, mode):
        tails = []
        if mode == "fast":
            a(f"{pfx}_FIRST:")
            step(0, "first")
            a(f"s_cbranch_scc1 {pfx}_T0")
            seq = list(range(1, U)) + [0]
        else:
            seq = list(range(U))
        for j in seq:
            a(f"{pfx}_S{j}:")
            step(j, mode)
            if j == seq[-1]:
                a(f"s_cbranch_scc0 {pfx}_S{seq[0]}")
            else:
                a(f"s_cbranch_scc1 {pfx}_T{j}")
        for j in [seq[-1]] + seq[:-1]:
            a(f"""
{pfx}_T{j}:
    {"s_setprio 2" if OPT["prio"] else ""}
    s_cmp_ge_u32 s{sS}, s{sD0}
    s_cbranch_scc1 {pfx}_FLUSH
    v_cmpx_lt_u32 vcc, s{sS}, v{vDeg}
    s_add_u32 s24, s{sS}, {U}
    s_cmp_lt_u32 s24, s{sD0}
    s_cselect_b32 s{sP+2}, {N}, 0
    s_branch {pfx}_S{(j+1) % U}
            """)

    loop("K2_F", "fast")
    a(f"""
K2_F_FLUSH:
    s_mov_b64 exec, 1
    v_mov_b32 v{vI}, {MISC}
    v_mov_b32 v{vI+1}, 1
    ds_add_rtn_u32 v{vI}, v{vI}, v{vI+1} offset:16
    s_mov_b64 exec, -1
    """)
    for r in range(8):
        a(f"v_rcp_f32 v{vX+r}, v{vD+r}")
    for r in range(0, 8, 2):
        a(f"v_pk_mul_f32 v[{vN+r}:{vN+r+1}], v[{vN+r}:{vN+r+1}], v[{vX+r}:{vX+r+1}]")
    a("K2_WRH:")
    for r in range(4):
        a(f"v_cvt_pk_bf16_f32 v{vX+r}, v{vN+2*r}, v{vN+2*r+1}")
    a(f"""
    ds_write_b128 v{vH}, v[{vX}:{vX+3}]
K2_NEXT:
    s_waitcnt lgkmcnt(0)
    v_readfirstlane_b32 s{sQ}, v{vI}
    s_branch K2_ITEM
K2_P_START:
    """)
    for r in range(8):
        a(f"v_mov_b32 v{vN+r}, 0")
    a(f"""
    s_cmp_eq_u32 s{sD0}, 0
    s_cbranch_scc1 K2_P_FLUSH
    v_cmpx_lt_u32 vcc, 0, v{vDeg}
    """)
    loop("K2_P", "plain")
    a(f"""
K2_P_FLUSH:
    s_mov_b64 exec, 1
    v_mov_b32 v{vI}, {MISC}
    v_mov_b32 v{vI+1}, 1
    ds_add_rtn_u32 v{vI}, v{vI}, v{vI+1} offset:16
    s_mov_b64 exec, -1
    s_cmp_le_u32 s{sNBATCH}, 1
    s_cbranch_scc1 K2_WRH
    """)
    a(f"""
    s_mul_i32 s24, s2, {SCR_STRIDE}
    s_add_u32 s24, s24, {SCR_OFF - QH}
    s_mov_b32 s{sSCR}, s22
    s_mov_b32 s{sSCR+1}, s23
    s_mov_b32 s{sSCR+2}, {WS_USED}
    s_mov_b32 s{sSCR+3}, 0x00020000
    v_add_u32 v{vH}, v{vH}, v{vL16}
    s_cmp_eq_u32 s{sBATCH}, 0
    s_cbranch_scc1 K2_P_ST
    buffer_load_dwordx4 v[{vX}:{vX+3}], v{vH}, s[{sSCR}:{sSCR+3}], s24 offen
    buffer_load_dwordx4 v[{vX+4}:{vX+7}], v{vH}, s[{sSCR}:{sSCR+3}], s24 offen offset:16
    s_waitcnt vmcnt(0)
    """)
    for r in range(0, 8, 2):
        a(f"v_pk_add_f32 v[{vN+r}:{vN+r+1}], v[{vN+r}:{vN+r+1}], v[{vX+r}:{vX+r+1}]")
    a(f"""
K2_P_ST:
    buffer_store_dwordx4 v[{vN}:{vN+3}], v{vH}, s[{sSCR}:{sSCR+3}], s24 offen
    buffer_store_dwordx4 v[{vN+4}:{vN+7}], v{vH}, s[{sSCR}:{sSCR+3}], s24 offen offset:16
    s_waitcnt vmcnt(0)
    s_branch K2_NEXT
    """)
    vF = 32
    a(f"""
K2_DONE:
    s_add_u32 s{sBATCH}, s{sBATCH}, 1
    s_cmp_ge_u32 s{sBATCH}, s{sNBATCH}
    s_cbranch_scc1 K2_FINAL
    s_waitcnt vmcnt(0)
    s_add_u32 s{sRECB}, s{sRECB}, 192
    v_subrev_u32 v127, 24, v127
    """)
    rec_loads()
    a(f"""
    s_barrier
    v_mov_b32 v4, 0
    v_lshlrev_b32 v5, 2, v0
    v_cmp_gt_u32 vcc, {(DEGT - CNT) // 4}, v0
    s_mov_b64 exec, vcc
    ds_write_b32 v5, v4 offset:{CNT}
    s_mov_b64 exec, 1
    v_mov_b32 v5, {MISC}
    v_mov_b32 v6, 16
    ds_write_b32 v5, v6 offset:16
    s_mov_b64 exec, -1
    s_waitcnt lgkmcnt(0)
    s_barrier
    s_branch K2_BATCH
K2_FINAL:
    """)
    stamp(a, 8)
    cstamp(a, 1)
    a(f"""
    s_waitcnt vmcnt(0)
    s_and_b32 s24, s3, 3                 ; cp
    s_lshl_b32 s25, s24, 14
    s_add_u32 s25, s25, {W2F_OFF}
    v_lshlrev_b32 v4, 4, v1
    """)
    for f in range(16):
        if f and f % 4 == 0:
            a("s_add_u32 s25, s25, 4096")
        a(f"buffer_load_dwordx4 v[{vF+4*f}:{vF+4*f+3}], v4, s[{sWS}:{sWS+3}], s25 offen offset:{1024*(f%4)}")
    srd(a, sB2, 18, 19, 256)
    srd(a, sOUT, 20, 21, N * 256)
    a(f"""
    s_lshl_b32 s24, s24, 6
    v_lshlrev_b32 v5, 4, v3              ; g*16
    buffer_load_dwordx4 v[8:11], v5, s[{sB2}:{sB2+3}], s24 offen
    s_lshr_b32 s27, s3, 2
    s_lshl_b32 s27, s27, 4               ; first row tile * 16
    v_add_u32 v6, s27, v2
    v_mul_u32_u24 v7, {ROWS}, v6
    v_add_u32 v7, v7, v5
    v_add_u32 v7, {QH}, v7
    v_lshlrev_b32 v20, 2, v6
    v_add_u32 v21, s{sROW0}, v6
    v_lshl_add_u32 v21, v21, 8, v5
    s_mov_b32 s34, {NLN2:#x}
    s_barrier
    s_cmp_le_u32 s{sNBATCH}, 1
    s_cbranch_scc1 K2_GEMM2
    s_mul_i32 s28, s2, {SCR_STRIDE}
    s_add_u32 s28, s28, {SCR_OFF}
    s_mov_b32 s{sSCR}, s22
    s_mov_b32 s{sSCR+1}, s23
    s_mov_b32 s{sSCR+2}, {WS_USED}
    s_mov_b32 s{sSCR+3}, 0x00020000
    v_and_b32 v22, 1, v3
    v_lshlrev_b32 v22, 9, v22
    v_lshl_add_u32 v22, v2, 4, v22       ; s*512 + l*16
    v_lshl_add_u32 v23, v2, 4, v22       ; s*512 + l*32
    s_mov_b32 s29, s3
K2_CONV:
    s_mul_i32 s30, s29, {ROWS}
    s_add_u32 s31, s30, s28
    buffer_load_dwordx4 v[100:103], v23, s[{sSCR}:{sSCR+3}], s31 offen
    buffer_load_dwordx4 v[104:107], v23, s[{sSCR}:{sSCR+3}], s31 offen offset:16
    s_add_u32 s30, s30, {QH}
    v_add_u32 v24, s30, v22
    s_waitcnt vmcnt(0)
    v_cvt_pk_bf16_f32 v100, v100, v101
    v_cvt_pk_bf16_f32 v101, v102, v103
    v_cvt_pk_bf16_f32 v102, v104, v105
    v_cvt_pk_bf16_f32 v103, v106, v107
    ds_write_b128 v24, v[100:103]
    s_add_u32 s29, s29, 16
    s_cmp_lt_u32 s29, {NB}
    s_cbranch_scc1 K2_CONV
    s_waitcnt lgkmcnt(0)
    s_barrier
K2_GEMM2:
    """)
    stamp(a, 9)
    vHB = 96
    vO = 24
    for rt in range(2):
        off = rt * 64 * ROWS
        if rt == 1:
            a("s_cmp_ge_u32 s3, 12")
            a("s_cbranch_scc1 K2_FIN")
            a(f"v_add_u32 v7, {off}, v7")
            a(f"v_add_u32 v21, {64 * 256}, v21")
        a(f"ds_read_b32 v22, v20 offset:{DEGT + rt * 256}")
        for ks in range(8):
            a(f"ds_read_b128 v[{vHB+4*ks}:{vHB+4*ks+3}], v7 offset:{(ks >> 2) * 512 + (ks & 3) * 64}")
        if rt == 0:
            a("s_waitcnt vmcnt(0)")
            for p in range(4):
                a(f"v_lshlrev_b32 v{12+2*p}, 16, v{8+p}")
                a(f"v_and_b32 v{13+2*p}, 0xffff0000, v{8+p}")
        for ks in range(8):
            a(f"s_waitcnt lgkmcnt({7-ks})")
            for aa in range(2):
                f = vF + 4 * (aa * 8 + ks)
                c = "0" if ks == 0 else f"v[{vO+4*aa}:{vO+4*aa+3}]"
                a(f"v_mfma_f32_16x16x32_bf16 v[{vO+4*aa}:{vO+4*aa+3}], v[{f}:{f+3}], v[{vHB+4*ks}:{vHB+4*ks+3}], {c}")
        a("v_cvt_f32_u32 v22, v22")
        a(f"v_cmp_gt_u32 vcc, {NB - 64 * rt}, v6")
        a("s_nop 5")
        for r in range(8):
            a(f"v_mul_f32 v{vO+r}, s34, v{vO+r}")
        for r in range(8):
            a(f"v_fmac_f32 v{vO+r}, v22, v{12+r}")
        for r in range(4):
            a(f"v_cvt_pk_bf16_f32 v{vHB+r}, v{vO+2*r}, v{vO+2*r+1}")
        a("s_mov_b64 exec, vcc")
        a(f"buffer_store_dwordx4 v[{vHB}:{vHB+3}], v21, s[{sOUT}:{sOUT+3}], s24 offen")
        a("s_mov_b64 exec, -1")
        if rt == 0:
            a("s_nop 1")
    a("K2_FIN:")
    stamp(a, 10)
    if OPT["stamps"]:
        a("s_waitcnt vmcnt(0)")
    stamp(a, 11)
    stamp_flush(a, 1)
    a("""
K2_END:
    s_endpgm
    """)
    return a.text(), 128, (102 if OPT["stamps"] else 96)


HEADER = """; Kernarg layout for this problem (88 bytes, ptrs only, base s[0:1]):
"""


def kd(name, vgpr, sgpr):
    return f""".amdhsa_kernel {name}
  .amdhsa_next_free_vgpr {vgpr}
  .amdhsa_next_free_sgpr {sgpr}
  .amdhsa_accum_offset {(vgpr + 3) // 4 * 4}
  .amdhsa_group_segment_fixed_size 0
  .amdhsa_kernarg_size 88
  .amdhsa_user_sgpr_count 2
  .amdhsa_user_sgpr_kernarg_segment_ptr 1
  .amdhsa_system_sgpr_workgroup_id_x 1
.end_amdhsa_kernel
"""


def build():
    k1, v1, s1 = gen_k1()
    k2, v2, s2 = gen_k2()
    n1 = "mpnn_prep_kernel"
    n2 = "gather_scatter__edge_featured_mpnn_mpnn__graph_kernel"
    out = HEADER
    out += f"; @launch kernel={n1} grid=(256,1,1) block=(1024,1,1) lds={K1_LDS}\n"
    out += f"; @launch kernel={n2} grid=(256,1,1) block=(1024,1,1) lds={K2_LDS}\n"
    out += '.amdgcn_target "amdgcn-amd-amdhsa--gfx950"\n.text\n'
    for n, k in ((n1, k1), (n2, k2)):
        out += f".globl {n}\n.p2align 8\n.type {n},@function\n{n}:\n" + k
    out += '.section .rodata,"a"\n.p2align 6\n' + kd(n1, v1, s1) + ".p2align 6\n" + kd(n2, v2, s2)
    return out


if __name__ == "__main__":
    path = sys.argv[1] if len(sys.argv) > 1 else "gather_scatter__edge_featured_mpnn_mpnn__graph.s"
    for kv in sys.argv[2:]:
        k, v = kv.split("=")
        OPT[k] = int(v) if v.lstrip('-').isdigit() else v.replace('+', ' ')
    open(path, "w").write(build())
    print("wrote", path, "K1_LDS", K1_LDS, "K2_LDS", K2_LDS)
```

```python
import sys

N = 25000; E = 400000
NB = 98
CH = 1564
CHS = 12544
PS = N * 256
P_OFF = 0
REC_OFF = 2 * PS
TAB_OFF = REC_OFF + 256 * CHS
W2F_OFF = TAB_OFF + 256 * 1024
PMAX_OFF = W2F_OFF + 65536
SCR_OFF = 0x1000000
SCR_STRIDE = 104448
WS_USED = SCR_OFF + 256 * SCR_STRIDE
NLOG2E = 0xbfb8aa3b
NLN2 = 0xbf317218
BOUND = 0x43e00000

STAMP_OFF = 0x3000000
OPT = dict(U=4, stamps=False, pst="", rst="", prio=1, warm=1, reclate=1)


class A:
    def __init__(self):
        self.l = []

    def __call__(self, s):
        for x in s.strip("\n").split("\n"):
            x = x.rstrip()
            if not x.strip():
                continue
            if x.strip().endswith(":") and not x.strip().startswith(";"):
                self.l.append(x.strip())
            else:
                self.l.append("    " + x.strip())

    def text(self):
        return "\n".join(self.l) + "\n"


def stamp(a, i):
    if OPT["stamps"]:
        a(f"""
        s_memrealtime s[98:99]
        s_waitcnt lgkmcnt(0)
        s_mov_b32 s{84+i}, s98
        """)


def cstamp(a, i):
    if OPT["stamps"]:
        a(f"""
        s_memtime s[98:99]
        s_waitcnt lgkmcnt(0)
        s_mov_b32 s{96+i}, s98
        """)


def stamp_init(a):
    if OPT["stamps"]:
        for i in range(14):
            a(f"s_mov_b32 s{84+i}, 0")


def stamp_flush(a, kern):
    if OPT["stamps"]:
        a(f"""
        s_mov_b64 exec, -1
        s_mov_b32 s4, s22
        s_mov_b32 s5, s23
        s_mov_b32 s6, 0x8000000
        s_mov_b32 s7, 0x00020000
        s_lshl_b32 s8, s2, 4
        s_add_u32 s8, s8, s3
        s_lshl_b32 s8, s8, 6
        s_add_u32 s8, s8, {STAMP_OFF + kern * 256 * 16 * 64}
        v_mov_b32 v0, 0
        s_mov_b64 exec, 1
        """)
        for i in range(14):
            a(f"v_mov_b32 v1, s{84+i}")
            a(f"buffer_store_dword v1, v0, s[4:7], s8 offen offset:{4*i}")


def srd(a, d, lo, hi, size, stride=0):
    a(f"s_mov_b32 s{d}, s{lo}")
    if stride:
        a(f"s_and_b32 s{d+1}, s{hi}, 0xffff")
        a(f"s_or_b32 s{d+1}, s{d+1}, {stride << 16:#x}")
    else:
        a(f"s_mov_b32 s{d+1}, s{hi}")
    a(f"s_mov_b32 s{d+2}, {size}")
    a(f"s_mov_b32 s{d+3}, 0x00020000")


def wave_scan(a, regs):
    steps = ["row_shr:1 row_mask:0xf", "row_shr:2 row_mask:0xf", "row_shr:4 row_mask:0xf", "row_shr:8 row_mask:0xf",
             "row_bcast:15 row_mask:0xa", "row_bcast:31 row_mask:0xc"]
    for st in steps:
        a("s_nop 1" if len(regs) == 1 else "s_nop 0")
        for r in regs:
            a(f"v_add_u32_dpp v{r}, v{r}, v{r} {st} bank_mask:0xf")


def row_max(a, r):
    for sh in (1, 2, 4, 8):
        a("s_nop 1")
        a(f"v_max_f32_dpp v{r}, v{r}, v{r} row_shr:{sh} row_mask:0xf bank_mask:0xf")


def common_ids(a):
    a("""
    v_lshrrev_b32 v1, 6, v0
    v_and_b32 v2, 15, v0               ; l16
    v_readfirstlane_b32 s3, v1         ; wave
    v_and_b32 v1, 63, v0               ; lane
    v_lshrrev_b32 v3, 4, v1            ; g
    """)


def dma_w_setup(a, vdst, vt, s0, s1):
    a(f"""
    s_and_b32 s{s0}, s3, 1
    s_lshl_b32 s{s0}, s{s0}, 1
    s_and_b32 s{s1}, s3, 2
    s_lshl_b32 s{s1}, s{s1}, 2
    s_or_b32 s{s0}, s{s0}, s{s1}
    s_and_b32 s{s1}, s3, 4
    s_or_b32 s{s0}, s{s0}, s{s1}
    s_and_b32 s{s1}, s3, 8
    s_lshl_b32 s{s1}, s{s1}, 3
    s_or_b32 s{s0}, s{s0}, s{s1}         ; k0
    s_lshl_b32 s{s0}, s{s0}, 9           ; k0*512
    s_and_b32 s{s1}, s3, 3
    s_lshl_b32 s{s1}, s{s1}, 6           ; (w&3)<<1 <<5
    v_lshrrev_b32 v{vt}, 5, v1           ; L>>5
    v_mul_u32_u24 v{vt}, 544, v{vt}      ; (L>>5)*512 + (L>>5)<<5
    v_and_b32 v{vdst}, 31, v1
    v_lshlrev_b32 v{vdst}, 4, v{vdst}    ; j*16
    v_xor_b32 v{vdst}, v{vt}, v{vdst}
    v_xor_b32 v{vdst}, s{s1}, v{vdst}
    """)


def dma_w_issue(a, vsrc, srdw, s0, s1, goff, wb):
    for i in range(4):
        a(f"s_add_u32 m0, s{s0}, {wb + i * 8192}")
        a(f"s_add_u32 s{s1}, s{s0}, {goff + i * 8192}")
        a(f"buffer_load_dwordx4 v{vsrc}, s[{srdw}:{srdw+3}], s{s1} offen lds")


def dma_x(a, srdx, srow0, vo, vt, st, xb):
    a(f"""
    s_and_b32 s{st}, s3, 1
    s_lshl_b32 s{st}, s{st}, 3
    v_add_u32 v{vt}, s{st}, v3           ; 8*(w&1)+g
    v_xor_b32 v{vt}, v2, v{vt}
    s_lshl_b32 s{st}, s3, 3
    s_add_u32 s{st}, s{st}, s{srow0}
    v_add_u32 v{vo}, s{st}, v3           ; row
    v_lshlrev_b32 v{vo}, 8, v{vo}
    v_lshl_add_u32 v{vo}, v{vt}, 4, v{vo}
    s_lshl_b32 s{st}, s3, 11
    s_add_u32 m0, s{st}, {xb}
    v_xor_b32 v{vt}, 64, v{vo}
    buffer_load_dwordx4 v{vo}, s[{srdx}:{srdx+3}], 0 offen lds
    buffer_load_dwordx4 v{vt}, s[{srdx}:{srdx+3}], 0 offen offset:1024 lds
    """)


def gemm_addr(a, vb, vxa, vt, st, wb, xb):
    a(f"""
    v_lshrrev_b32 v{vt}, 2, v2           ; r
    v_mul_u32_u24 v{vb}, 544, v{vt}      ; r*512 + r*32
    v_lshl_add_u32 v{vb}, v3, 12, v{vb}  ; + g*8*512
    v_and_b32 v{vt}, 1, v3
    v_lshl_add_u32 v{vb}, v{vt}, 7, v{vb} ; + (g&1)<<2<<5
    v_and_b32 v{vt}, 3, v2
    v_lshl_add_u32 v{vb}, v{vt}, 3, v{vb} ; + c*8
    s_and_b32 s{st}, s3, 7
    s_lshl_b32 s{st}, s{st}, 6
    v_xor_b32 v{vb}, s{st}, v{vb}
    v_add_u32 v{vb}, {wb}, v{vb}
    v_xor_b32 v{vb+1}, 32, v{vb}
    v_xor_b32 v{vt}, v2, v3
    v_lshlrev_b32 v{vt}, 4, v{vt}
    v_lshl_add_u32 v{vxa}, v2, 8, v{vt}
    s_lshr_b32 s{st}, s3, 3
    s_lshl_b32 s{st}, s{st}, 14
    s_add_u32 s{st}, s{st}, {xb}
    v_add_u32 v{vxa}, s{st}, v{vxa}
    v_xor_b32 v{vxa+1}, 64, v{vxa}
    v_xor_b32 v{vxa+2}, 0x80, v{vxa}
    v_xor_b32 v{vxa+3}, 0xc0, v{vxa}
    """)


def gemm_parts(a, vW, vX, vAcc, vb, vxa, cinit, acc2=False):
    def wreads():
        for ks in range(4):
            for aa in range(2):
                for h in range(2):
                    r = vW + 16 * aa + 4 * ks + 2 * h
                    a(f"ds_read_b64_tr_b16 v[{r}:{r+1}], v{vb+aa} offset:{ks * 16384 + h * 2048}")

    def xreads(i):
        for ks in range(4):
            r = vX + 16 * (i & 1) + 4 * ks
            a(f"ds_read_b128 v[{r}:{r+3}], v{vxa+ks} offset:{4096 * i}")

    def mf(i):
        for ks in range(4):
            for aa in range(2):
                acc = vAcc + 8 * ((i & 1) if acc2 else i) + 4 * aa
                c = cinit(aa) if ks == 0 else f"v[{acc}:{acc+3}]"
                w = vW + 16 * aa + 4 * ks
                x = vX + 16 * (i & 1) + 4 * ks
                a(f"v_mfma_f32_16x16x32_bf16 v[{acc}:{acc+3}], v[{w}:{w+3}], v[{x}:{x+3}], {c}")
    return wreads, xreads, mf


K1_HIST = 0
K1_START = K1_HIST + 1024
K1_PM = K1_START + 1024
K1_STAGE = K1_PM + 256
K1_XB = 15360
K1_WB = K1_XB + 32768
assert K1_STAGE + CHS <= K1_XB
K1_LDS = K1_WB + 65536
QCAP = 585


def gen_k1():
    a = A()
    vW, vX, vAcc = 20, 52, 84
    vb, vxa = 4, 16
    sX, sW1, sDST, sSRC, sE, sW2, sWS = 36, 40, 44, 48, 52, 56, 60
    pst, rst = OPT["pst"], OPT["rst"]
    a("""
    s_cmp_ge_u32 s2, 256
    s_cbranch_scc1 K1_END
    s_load_dwordx16 s[4:19], s[0:1], 0
    s_load_dwordx2 s[22:23], s[0:1], 80
    """)
    stamp_init(a)
    stamp(a, 0)
    common_ids(a)
    a(f"""
    s_mul_i32 s29, s2, {CH}
    s_sub_u32 s30, {E}, s29
    s_min_u32 s30, s30, {CH}
    s_lshr_b32 s30, s30, 1
    v_lshl_add_u32 v6, v0, 1, s29        ; first edge index
    v_lshlrev_b32 v7, 1, v6
    v_lshlrev_b32 v6, 2, v6
    v_cmp_gt_u32 s[32:33], s30, v0
    v_mov_b32 v11, 0
    v_lshlrev_b32 v12, 2, v0
    v_cmp_gt_u32 vcc, 256, v0
    s_mov_b64 exec, vcc
    ds_write_b32 v12, v11 offset:{K1_HIST}
    ds_write_b32 v11, v11 offset:{K1_PM}
    s_mov_b64 exec, -1
    v_lshlrev_b32 v13, 3, v1
    s_mov_b32 s68, {256 * 512}
    s_mul_i32 s26, s2, {NB}              ; first row of bucket
    s_waitcnt lgkmcnt(0)
    """)
    srd(a, sDST, 10, 11, E * 4)
    srd(a, sE, 6, 7, E * 2)
    srd(a, sSRC, 8, 9, E * 4)
    srd(a, sW1, 12, 13, 257 * 512)
    a(f"""
    buffer_load_dwordx2 v[14:15], v13, s[{sW1}:{sW1+3}], s68 offen
    s_mov_b64 exec, s[32:33]
    buffer_load_dwordx2 v[118:119], v6, s[{sDST}:{sDST+3}], 0 offen
    buffer_load_dword v10, v7, s[{sE}:{sE+3}], 0 offen
    buffer_load_dwordx2 v[8:9], v6, s[{sSRC}:{sSRC+3}], 0 offen
    s_mov_b64 exec, -1
    """)
    dma_w_setup(a, 4, 5, 24, 25)
    srd(a, sX, 4, 5, N * 256)
    srd(a, sWS, 22, 23, SCR_OFF)
    a("s_barrier")
    a("s_cmp_ge_u32 s3, 14")
    a("s_cbranch_scc1 K1_NOX")
    dma_x(a, sX, 26, 5, 6, 27, K1_XB)
    dma_w_issue(a, 4, sW1, 24, 25, 0, K1_WB)
    a("s_waitcnt vmcnt(9)")
    a("s_branch K1_WM")
    a("K1_NOX:")
    dma_w_issue(a, 4, sW1, 24, 25, 0, K1_WB)
    a("s_waitcnt vmcnt(7)")
    a(f"""
K1_WM:
    v_and_b32 v14, 0x7fff7fff, v14
    v_and_b32 v15, 0x7fff7fff, v15
    v_pk_max_u16 v14, v14, v15
    v_lshlrev_b32 v15, 16, v14
    v_and_b32 v14, 0xffff0000, v14
    v_max_u32 v14, v14, v15
    s_mov_b32 s64, 42800
    """)
    for st in ("row_shr:1 row_mask:0xf", "row_shr:2 row_mask:0xf", "row_shr:4 row_mask:0xf", "row_shr:8 row_mask:0xf",
               "row_bcast:15 row_mask:0xa", "row_bcast:31 row_mask:0xc"):
        a("s_nop 1")
        a(f"v_max_u32_dpp v14, v14, v14 {st} bank_mask:0xf")
    a(f"""
    v_mul_f32 v14, 0x40b8aa3b, v14       ; 4*log2(e)
    s_cmp_ge_u32 s3, 13
    s_cbranch_scc1 K1_NOH
    v_readlane_b32 s67, v14, 63
    s_waitcnt vmcnt(6)
    """)
    stamp(a, 1)
    a(f"""
    s_mov_b64 exec, s[32:33]
    v_mul_u32_u24 v116, s64, v118
    v_mul_u32_u24 v117, s64, v119
    v_lshrrev_b32 v116, 22, v116         ; bucket
    v_lshrrev_b32 v117, 22, v117
    v_mul_u32_u24 v125, {NB}, v116
    v_mul_u32_u24 v126, {NB}, v117
    v_lshlrev_b32 v116, 2, v116
    v_lshlrev_b32 v117, 2, v117
    v_sub_u32 v125, v118, v125           ; dloc
    v_sub_u32 v126, v119, v126
    v_mov_b32 v127, 1
    ds_add_rtn_u32 v118, v116, v127 offset:{K1_HIST}
    ds_add_rtn_u32 v119, v117, v127 offset:{K1_HIST}
    v_lshlrev_b32 v121, 16, v10
    v_and_b32 v123, 0xffff0000, v10
    v_fma_f32 v120, |v121|, s67, 1.0
    v_fma_f32 v122, |v123|, s67, 1.0
    v_lshl_or_b32 v121, v125, 2, v121    ; e<<16 | dloc*4
    v_lshl_or_b32 v123, v126, 2, v123
    v_cvt_u32_f32 v120, v120
    v_cvt_u32_f32 v122, v122
    v_min_u32 v120, {QCAP}, v120
    v_min_u32 v122, {QCAP}, v122
    v_lshl_or_b32 v120, v120, 16, v8     ; src | q<<16
    v_lshl_or_b32 v122, v122, 16, v9
    s_mov_b64 exec, -1
K1_NOH:
    s_waitcnt lgkmcnt(0)
    s_barrier
    """)
    stamp(a, 2)
    a(f"""
    s_cmp_lg_u32 s3, 15
    s_cbranch_scc1 K1_NOSCAN
    v_lshlrev_b32 v6, 4, v1
    ds_read_b128 v[52:55], v6 offset:{K1_HIST}
    s_and_b32 s24, s2, 7
    s_lshl_b32 s24, s24, 5
    s_lshr_b32 s68, s2, 3
    s_add_u32 s24, s24, s68
    s_lshl_b32 s24, s24, 2
    s_add_u32 s24, s24, {TAB_OFF}
    v_lshlrev_b32 v7, 12, v1
    s_waitcnt lgkmcnt(0)
    v_add_u32 v57, v52, v53              ; p2
    v_add_u32 v58, v57, v54              ; p3
    v_add_u32 v59, v58, v55              ; tot
    v_mov_b32 v60, v59
    """)
    wave_scan(a, [60])
    a(f"""
    v_sub_u32 v60, v60, v59              ; base
    v_add_u32 v61, v60, v52
    v_add_u32 v62, v60, v57
    v_add_u32 v63, v60, v58
    v_lshlrev_b32 v64, 3, v60
    v_lshlrev_b32 v65, 3, v61
    v_lshlrev_b32 v66, 3, v62
    v_lshlrev_b32 v67, 3, v63
    ds_write_b128 v6, v[64:67] offset:{K1_START}
    v_lshl_or_b32 v60, v52, 16, v60
    v_lshl_or_b32 v61, v53, 16, v61
    v_lshl_or_b32 v62, v54, 16, v62
    v_lshl_or_b32 v63, v55, 16, v63
    s_waitcnt lgkmcnt(0)
    s_barrier
    s_waitcnt vmcnt(0)
    buffer_store_dword v60, v7, s[{sWS}:{sWS+3}], s24 offen {rst}
    buffer_store_dword v61, v7, s[{sWS}:{sWS+3}], s24 offen offset:1024 {rst}
    buffer_store_dword v62, v7, s[{sWS}:{sWS+3}], s24 offen offset:2048 {rst}
    buffer_store_dword v63, v7, s[{sWS}:{sWS+3}], s24 offen offset:3072 {rst}
    s_branch K1_ADDR
K1_NOSCAN:
    s_cmp_lg_u32 s3, 14
    s_cbranch_scc1 K1_SCAT
    """)
    srd(a, sW2, 16, 17, 65536)
    a(f"""
    s_lshr_b32 s68, s2, 2                ; F = G>>6
    s_and_b32 s69, s2, 3                 ; g' = (G&63)>>4
    s_and_b32 s31, s68, 7
    s_lshl_b32 s31, s31, 5
    s_lshl_b32 s69, s69, 2
    s_add_u32 s31, s31, s69
    s_lshl_b32 s31, s31, 8               ; *256 bytes
    s_lshr_b32 s69, s68, 4               ; cp
    s_lshl_b32 s69, s69, 5
    s_bfe_u32 s68, s68, 0x10003          ; a
    s_lshl_b32 s68, s68, 2
    s_add_u32 s68, s68, s69              ; 32cp + 4a
    v_lshrrev_b32 v13, 2, v2
    v_lshlrev_b32 v13, 3, v13            ; 8*(m>>2)
    v_and_b32 v14, 3, v2
    v_add3_u32 v13, v13, v14, s68        ; col
    v_lshlrev_b32 v13, 1, v13
    s_mov_b64 exec, 0xffff
    """)
    for t in range(8):
        if t == 4:
            a("s_add_u32 s31, s31, 4096")
        r = vW + (t >> 1) + 4 * (t & 1)
        a(f"buffer_load_ushort v{r}, v13, s[{sW2}:{sW2+3}], s31 offen offset:{256 * (t & 3)}")
    a(f"""
    s_barrier
    s_lshl_b32 s68, s2, 8
    s_add_u32 s68, s68, {W2F_OFF}
    v_lshlrev_b32 v13, 4, v2
    s_waitcnt vmcnt(0)
    v_lshl_or_b32 v{vAcc}, v{vW+4}, 16, v{vW}
    v_lshl_or_b32 v{vAcc+1}, v{vW+5}, 16, v{vW+1}
    v_lshl_or_b32 v{vAcc+2}, v{vW+6}, 16, v{vW+2}
    v_lshl_or_b32 v{vAcc+3}, v{vW+7}, 16, v{vW+3}
    buffer_store_dwordx4 v[{vAcc}:{vAcc+3}], v13, s[{sWS}:{sWS+3}], s68 offen {rst}
    s_mov_b64 exec, -1
    s_branch K1_ADDR
K1_SCAT:
    s_barrier
    s_mov_b64 exec, s[32:33]
    ds_read_b32 v116, v116 offset:{K1_START}
    ds_read_b32 v117, v117 offset:{K1_START}
    s_waitcnt lgkmcnt(0)
    v_lshl_add_u32 v116, v118, 3, v116
    v_lshl_add_u32 v117, v119, 3, v117
    ds_write_b64 v116, v[120:121] offset:{K1_STAGE}
    ds_write_b64 v117, v[122:123] offset:{K1_STAGE}
    s_mov_b64 exec, -1
K1_ADDR:
    """)
    gemm_addr(a, vb, vxa, 11, 24, K1_WB, K1_XB)
    a(f"""
    s_mov_b32 s34, {NLOG2E:#x}
    s_mov_b32 s65, 0x07060100
    s_mov_b32 s66, 0x07060302
    s_lshr_b32 s27, s3, 3
    s_lshl_b32 s27, s27, 6               ; 64*rh
    s_sub_u32 s28, {N}, s26
    s_min_u32 s28, s28, {NB}
    s_sub_u32 s28, s28, s27              ; valid rows from this wave's first row
    s_add_u32 s27, s27, s26
    v_add_u32 v11, s27, v2
    v_lshlrev_b32 v11, 8, v11
    s_and_b32 s24, s3, 3
    s_lshl_b32 s24, s24, 2
    v_add_u32 v12, s24, v3
    v_lshl_add_u32 v11, v12, 4, v11
    s_bfe_u32 s25, s3, 0x10002
    s_mul_i32 s25, s25, {PS}
    v_mov_b32 v12, 0
    v_lshlrev_b32 v6, 4, v0
    v_cmp_gt_u32 vcc, {CHS // 16}, v0
    s_mov_b64 s[30:31], vcc
    s_mul_i32 s24, s2, {CHS}
    s_add_u32 s24, s24, {REC_OFF}
    s_cmp_ge_u32 s3, 14
    s_cbranch_scc1 K1_B0
    s_waitcnt vmcnt(0)
K1_B0:
    s_waitcnt lgkmcnt(0)
    """)
    stamp(a, 3)
    a("s_barrier")
    stamp(a, 4)
    cstamp(a, 0)
    wreads, xreads, mf = gemm_parts(a, vW, vX, vAcc, vb, vxa, lambda aa: "0")

    def epi(i):
        lo = vAcc + 8 * i; hi = lo + 4
        for r in range(8):
            a(f"v_fma_f32 v{lo+r}, v{lo+r}, s34, 0")
        a(f"v_cvt_pk_bf16_f32 v14, v{lo}, v{lo+1}")
        a(f"v_cvt_pk_bf16_f32 v15, v{lo+2}, v{lo+3}")
        for r in range(0, 8, 2):
            a(f"v_max3_f32 v12, |v{lo+r}|, |v{lo+r+1}|, v12")
        for r in range(4):
            a(f"v_add_u32 v{hi+r}, 0x8000, v{hi+r}")
        for r in range(4):
            a(f"v_sub_u32_sdwa v{hi+r}, v{hi+r}, v{14+(r>>1)} clamp dst_sel:DWORD dst_unused:UNUSED_PAD src0_sel:DWORD src1_sel:WORD_{r&1}")
        for r in range(4):
            a(f"v_perm_b32 v{lo+r}, v{hi+r}, v{14+(r>>1)}, s{65+(r&1)}")
        a(f"v_cmp_gt_i32 vcc, s28, v2")
        a(f"s_mov_b64 exec, vcc")
        a(f"buffer_store_dwordx4 v[{lo}:{lo+3}], v11, s[{sWS}:{sWS+3}], s25 offen {pst}")
        a(f"s_mov_b64 exec, -1")
        a("s_sub_u32 s28, s28, 16")
        a("s_add_u32 s25, s25, 4096")

    a(f"ds_read_b128 v[116:119], v6 offset:{K1_STAGE}")
    wreads(); xreads(0); xreads(1)
    a("s_waitcnt lgkmcnt(4)")
    a(f"""
    s_mov_b64 exec, s[30:31]
    buffer_store_dwordx4 v[116:119], v6, s[{sWS}:{sWS+3}], s24 offen {rst}
    s_mov_b64 exec, -1
    """)
    mf(0)
    xreads(2)
    a("s_waitcnt lgkmcnt(4)")
    mf(1)
    xreads(3)
    epi(0)
    a("s_waitcnt lgkmcnt(4)")
    mf(2)
    epi(1)
    a("""
    s_cmp_ge_u32 s3, 8
    s_cbranch_scc1 K1_RH1
    s_waitcnt lgkmcnt(0)
    """)
    mf(3)
    epi(2)
    epi(3)
    a(f"""
    s_branch K1_GD
K1_RH1:
    """)
    epi(2)
    if OPT["warm"]:
        a(f"""
    s_cmp_lg_u32 s3, 8
    s_cbranch_scc1 K1_GD
    s_lshr_b32 s68, s2, 3
    s_lshl_b32 s68, s68, 11
    s_add_u32 s68, s68, {128 * 512}
    v_lshlrev_b32 v13, 5, v1
    buffer_load_dword v14, v13, s[{sW1}:{sW1+3}], s68 offen
        """)
    a("K1_GD:")
    stamp(a, 5)
    cstamp(a, 1)
    row_max(a, 12)
    a(f"""
    v_mov_b32 v4, 0
    s_mov_b32 exec_lo, 0x80008000
    s_mov_b32 exec_hi, 0x80008000
    ds_max_u32 v4, v12 offset:{K1_PM}
    s_mov_b64 exec, -1
    s_waitcnt lgkmcnt(0)
    s_barrier
    s_cmp_lg_u32 s3, 15
    s_cbranch_scc1 K1_FIN
    ds_read_b32 v12, v4 offset:{K1_PM}
    s_lshl_b32 s24, s2, 2
    s_add_u32 s24, s24, {PMAX_OFF}
    s_mov_b64 exec, 1
    s_waitcnt lgkmcnt(0)
    buffer_store_dword v12, v4, s[{sWS}:{sWS+3}], s24 offen {rst}
K1_FIN:
    """)
    stamp(a, 6)
    if OPT["stamps"]:
        a("s_waitcnt vmcnt(0)")
    stamp(a, 7)
    stamp_flush(a, 0)
    a("""
K1_END:
    s_endpgm
    """)
    return a.text(), 128, (102 if OPT["stamps"] else 72)


ROWS = 1040
CNT = 0
DH = CNT + 512
DEGT = DH + 256
POS = DEGT + 512
INFO = POS + 512
MISC = INFO + 1600
WT = MISC + 64
LIST = (WT + 1024 + 255) // 256 * 256
LISTCAP = 6144
LCAP = 60
LROW = LCAP * 8
QH = (LIST + LISTCAP * 8 + 128 + 255) // 256 * 256
K2_LDS = QH + 100 * ROWS
assert K2_LDS <= 163840
assert MISC % 16 == 0 and INFO % 16 == 0 and WT % 16 == 0


def gen_k2():
    U = OPT["U"]
    a = A()
    vW, vX, vAcc = 20, 52, 84
    vRec, vRank, vPos = 100, 112, 118
    vb, vxa, vB1 = 4, 6, 10
    sX, sW1, sB1, sWS, sP, sOUT, sB2, sSCR = 36, 40, 44, 48, 52, 56, 60, 64
    sROW0 = 26
    sBATCH = 68; sNBATCH = 69; sRECB = 70
    sM = 72
    a("""
    s_cmp_ge_u32 s2, 256
    s_cbranch_scc1 K2_END
    s_load_dwordx2 s[22:23], s[0:1], 80
    s_load_dwordx16 s[4:19], s[0:1], 0
    s_load_dwordx2 s[20:21], s[0:1], 64
    """)
    stamp_init(a)
    stamp(a, 0)
    common_ids(a)
    a(f"""
    v_lshrrev_b32 v126, 2, v0
    v_and_b32 v7, 0x3fc, v0
    s_lshl_b32 s30, s2, 10
    s_add_u32 s30, s30, {TAB_OFF}
    s_mul_i32 s{sROW0}, s2, {NB}
    v_mov_b32 v4, 0
    v_lshlrev_b32 v5, 2, v0
    v_cmp_gt_u32 vcc, {(POS - CNT) // 4}, v0
    s_mov_b64 exec, vcc
    ds_write_b32 v5, v4 offset:{CNT}
    s_mov_b64 exec, 31
    v_cmp_eq_u32 vcc, 4, v1
    v_lshlrev_b32 v5, 2, v1
    s_nop 0
    v_cndmask_b32 v6, 0, 16, vcc
    ds_write_b32 v5, v6 offset:{MISC}
    s_mov_b64 exec, -1
    s_waitcnt lgkmcnt(0)
    """)
    srd(a, sWS, 22, 23, SCR_OFF)
    a(f"buffer_load_dword v124, v7, s[{sWS}:{sWS+3}], s30 offen")
    dma_w_setup(a, 4, 5, 24, 25)
    srd(a, sX, 4, 5, N * 256)
    srd(a, sW1, 12, 13, 257 * 512)
    a("s_barrier")
    a("s_cmp_ge_u32 s3, 14")
    a("s_cbranch_scc1 K2_AUXLD")
    dma_x(a, sX, sROW0, 5, 6, 27, LIST)
    a(f"""
    s_branch K2_WLD
K2_AUXLD:
    v_subrev_u32 v123, 896, v0           ; 0..127
    v_lshlrev_b32 v8, 2, v123
    v_lshlrev_b32 v9, 3, v123
    s_mov_b32 s28, {256 * 512}
    s_mov_b32 s29, {PMAX_OFF}
    buffer_load_dword v122, v8, s[{sW1}:{sW1+3}], s28 offen
    buffer_load_dwordx2 v[120:121], v9, s[{sWS}:{sWS+3}], s29 offen
K2_WLD:
    """)
    dma_w_issue(a, 4, sW1, 24, 25, 128 * 512, QH)
    srd(a, sB1, 14, 15, 512)
    a(f"""
    s_and_b32 s24, s3, 7
    s_lshl_b32 s24, s24, 6
    v_lshlrev_b32 v5, 3, v3
    buffer_load_dwordx2 v[112:113], v5, s[{sB1}:{sB1+3}], s24 offen
    buffer_load_dwordx2 v[114:115], v5, s[{sB1}:{sB1+3}], s24 offen offset:32
    v_and_b32 v125, 31, v126
    v_lshrrev_b32 v126, 5, v126
    v_lshl_or_b32 v126, v125, 3, v126    ; chunk
    v_mul_u32_u24 v126, {CHS}, v126
    v_and_b32 v125, 3, v0
    v_lshlrev_b32 v125, 1, v125          ; slot0 = 2j
    s_mov_b32 s{sRECB}, {REC_OFF}
    s_mov_b32 s{sBATCH}, 0
    s_waitcnt vmcnt(8)
    """)
    stamp(a, 1)
    a(f"""
    v_and_b32 v7, 0xffff, v124           ; start
    v_lshrrev_b32 v124, 16, v124         ; cnt
    v_add_u32 v7, v7, v125
    v_lshl_add_u32 v126, v7, 3, v126
    v_sub_u32 v127, v124, v125
    """)

    def rec_loads():
        for k in range(6):
            a(f"v_cmp_lt_i32 s[{sM+2*k}:{sM+2*k+1}], {8*(k>>1)+(k&1)}, v127")
        for m in range(3):
            a(f"s_mov_b64 exec, s[{sM+4*m}:{sM+4*m+1}]")
            a(f"buffer_load_dwordx4 v[{vRec+4*m}:{vRec+4*m+3}], v126, s[{sWS}:{sWS+3}], s{sRECB} offen offset:{64*m}")
        a("s_mov_b64 exec, -1")

    def hist(L):
        a("s_mov_b32 s35, 0xffff0000")
        for k in range(6):
            m, o = k >> 1, k & 1
            r0 = vRec + 4 * m + 2 * o
            a(f"s_mov_b64 exec, s[{sM+2*k}:{sM+2*k+1}]")
            if k in (2, 4):
                a(f"s_cbranch_execz {L}_HISTDONE")
            a(f"v_and_b32 v{vPos+k}, 0xffff, v{r0+1}")
            a(f"v_and_or_b32 v8, v{r0}, s35, 1")
            a(f"ds_add_rtn_u32 v{vRank+k}, v{vPos+k}, v8 offset:{CNT}")
            a(f"v_and_b32 v{r0}, 0xffff, v{r0}")
            a(f"v_and_b32 v{r0+1}, s35, v{r0+1}")
        a(f"{L}_HISTDONE:")
        a("s_mov_b64 exec, -1")

    def scanrank(L, wscan, wrank, degt=True):
        a(f"""
    s_sub_u32 s24, s3, {wscan}
    s_cmp_ge_u32 s24, 2
    s_cbranch_scc1 {L}_SRDONE
    v_lshlrev_b32 v8, 2, v1
    ds_read_b32 v78, v8 offset:{CNT}
    ds_read_b32 v79, v8 offset:{CNT + 256}
    v_mov_b32 v9, 1
    s_waitcnt lgkmcnt(0)
    v_and_b32 v68, 0xffff, v78
    v_and_b32 v69, 0xffff, v79
    s_cmp_eq_u32 s3, {wscan}
    s_cbranch_scc1 {L}_SCAN
    v_mov_b32 v77, 0
    ds_write_b32 v8, v77 offset:{DH}
    v_min_u32 v73, 63, v68
    v_min_u32 v74, 63, v69
    v_sub_u32 v73, 63, v73
    v_sub_u32 v74, 63, v74
    v_lshlrev_b32 v73, 2, v73
    v_lshlrev_b32 v74, 2, v74
    ds_add_rtn_u32 v75, v73, v9 offset:{DH}
    s_mov_b32 exec_hi, 0xf               ; nodes 64..99
    ds_add_rtn_u32 v76, v74, v9 offset:{DH}
    s_mov_b64 exec, -1
    ds_read_b32 v77, v8 offset:{DH}
    s_waitcnt lgkmcnt(0)
{L}_SCAN:
    v_mov_b32 v70, v68
    v_mov_b32 v71, v69
    v_mov_b32 v72, v77
        """)
        wave_scan(a, [70, 71, 72])
        a(f"""
    v_mov_b32 v9, {LIST}
    v_readlane_b32 s24, v70, 63
    v_sub_u32 v70, v70, v68
    v_sub_u32 v71, v71, v69
    v_add_u32 v71, s24, v71
    v_lshl_add_u32 v80, v70, 3, v9
    v_lshl_add_u32 v4, v71, 3, v9
    s_cmp_eq_u32 s3, {wscan}
    s_cbranch_scc0 {L}_RANK
    ds_write_b32 v8, v80 offset:{POS}
    ds_write_b32 v8, v4 offset:{POS + 256}
    {f"ds_add_u32 v8, v68 offset:{DEGT}" if degt else ""}
    {f"ds_add_u32 v8, v69 offset:{DEGT + 256}" if degt else ""}
    s_branch {L}_SRDONE
{L}_RANK:
    v_sub_u32 v72, v72, v77
    ds_bpermute_b32 v73, v73, v72
    ds_bpermute_b32 v74, v74, v72
    v_mov_b32 v81, v68
    v_mul_u32_u24 v82, {ROWS}, v1
    v_add_u32 v82, {QH}, v82
    v_lshrrev_b32 v83, 16, v78
    v_mov_b32 v5, v69
    v_add_u32 v6, {64 * ROWS}, v82
    v_lshrrev_b32 v7, 16, v79
    s_waitcnt lgkmcnt(0)
    v_add_lshl_u32 v73, v73, v75, 4
    v_add_lshl_u32 v74, v74, v76, 4
    ds_write_b128 v73, v[80:83] offset:{INFO}
    s_mov_b32 exec_hi, 0xf
    ds_write_b128 v74, v[4:7] offset:{INFO}
    s_mov_b64 exec, -1
{L}_SRDONE:
        """)

    def fastrank(L, wrank):
        a(f"""
    s_cmp_lg_u32 s3, {wrank}
    s_cbranch_scc1 {L}_FRDONE
    s_setprio 3
    v_lshlrev_b32 v8, 2, v1
    ds_read_b32 v78, v8 offset:{CNT}
    ds_read_b32 v79, v8 offset:{CNT + 256}
    v_mov_b32 v9, 1
    v_mul_u32_u24 v80, {LROW}, v1
    v_add_u32 v80, {LIST}, v80
    v_add_u32 v4, {64 * LROW}, v80
    v_mul_u32_u24 v82, {ROWS}, v1
    v_add_u32 v82, {QH}, v82
    v_add_u32 v6, {64 * ROWS}, v82
    s_waitcnt lgkmcnt(0)
    v_and_b32 v81, 0xffff, v78
    v_and_b32 v5, 0xffff, v79
    v_min_u32 v73, 63, v81
    v_min_u32 v74, 63, v5
    v_sub_u32 v73, 63, v73
    v_sub_u32 v74, 63, v74
    v_lshlrev_b32 v73, 2, v73
    v_lshlrev_b32 v74, 2, v74
    ds_add_rtn_u32 v75, v73, v9 offset:{DH}
    s_mov_b32 exec_hi, 0xf               ; nodes 64..99
    ds_add_rtn_u32 v76, v74, v9 offset:{DH}
    s_mov_b64 exec, -1
    ds_read_b32 v77, v8 offset:{DH}
    ds_write_b32 v8, v81 offset:{DEGT}
    ds_write_b32 v8, v5 offset:{DEGT + 256}
    v_max_u32 v72, v81, v5
    v_cmp_lt_u32 vcc, {LCAP}, v72
    v_mov_b32 v71, 0
    s_mov_b64 exec, vcc
    ds_max_u32 v71, v72 offset:{MISC + 8}
    s_mov_b64 exec, -1
    v_lshrrev_b32 v83, 16, v78
    v_lshrrev_b32 v7, 16, v79
    s_waitcnt lgkmcnt(3)
    v_mov_b32 v72, v77
        """)
        wave_scan(a, [72])
        a(f"""
    v_sub_u32 v72, v72, v77
    ds_bpermute_b32 v73, v73, v72
    ds_bpermute_b32 v74, v74, v72
    s_waitcnt lgkmcnt(0)
    v_add_lshl_u32 v73, v73, v75, 4
    v_add_lshl_u32 v74, v74, v76, 4
    ds_write_b128 v73, v[80:83] offset:{INFO}
    s_mov_b32 exec_hi, 0xf
    ds_write_b128 v74, v[4:7] offset:{INFO}
    s_mov_b64 exec, -1
    s_setprio 0
{L}_FRDONE:
        """)

    def fastscatter(L):
        a(f"s_movk_i32 s24, {LROW // 4}")
        for k in range(6):
            m, o = k >> 1, k & 1
            r0 = vRec + 4 * m + 2 * o
            a(f"s_mov_b64 exec, s[{sM+2*k}:{sM+2*k+1}]")
            if k in (2, 4):
                a(f"s_cbranch_execz {L}_FSDONE")
            a(f"v_min_u16 v8, {LCAP - 1}, v{vRank+k}")
            a(f"v_mul_u32_u24 v9, s24, v{vPos+k}")
            a(f"v_mad_u32_u16 v9, v8, 8, v9")
            a(f"ds_write_b64 v9, v[{r0}:{r0+1}] offset:{LIST}")
        a(f"{L}_FSDONE:")
        a("s_mov_b64 exec, -1")

    def posread(L):
        for k in range(6):
            a(f"s_mov_b64 exec, s[{sM+2*k}:{sM+2*k+1}]")
            if k in (2, 4):
                a(f"s_cbranch_execz {L}_POSDONE")
            a(f"ds_read_b32 v{vPos+k}, v{vPos+k} offset:{POS}")
        a(f"{L}_POSDONE:")
        a("s_mov_b64 exec, -1")

    def scatter(L):
        for k in range(6):
            m, o = k >> 1, k & 1
            r0 = vRec + 4 * m + 2 * o
            a(f"s_mov_b64 exec, s[{sM+2*k}:{sM+2*k+1}]")
            if k in (2, 4):
                a(f"s_cbranch_execz {L}_SCATDONE")
            a(f"v_mad_u32_u16 v{vPos+k}, v{vRank+k}, 8, v{vPos+k}")
            a(f"ds_write_b64 v{vPos+k}, v[{r0}:{r0+1}]")
        a(f"{L}_SCATDONE:")
        a("s_mov_b64 exec, -1")

    if not OPT["reclate"]:
        rec_loads()
    gemm_addr(a, vb, vxa, 10, 24, QH, LIST)
    a(f"""
    s_mov_b32 s34, {NLOG2E:#x}
    s_lshr_b32 s27, s3, 3
    s_mul_i32 s27, s27, {64 * ROWS}
    s_bfe_u32 s24, s3, 0x10002
    s_lshl_b32 s24, s24, 9
    s_add_u32 s27, s27, s24
    s_and_b32 s24, s3, 3
    s_lshl_b32 s24, s24, 6
    s_add_u32 s27, s27, s24
    s_add_u32 s27, s27, {QH}
    v_mul_u32_u24 v18, {ROWS}, v2
    v_lshl_add_u32 v18, v3, 4, v18
    v_add_u32 v18, s27, v18
    v_mov_b32 v19, 0
    v_cmp_lt_u32 vcc, 24, v124
    s_mov_b64 exec, vcc
    ds_max_u32 v19, v124 offset:{MISC + 12}
    s_mov_b64 exec, -1
    s_waitcnt vmcnt({0 if OPT["reclate"] else 3})
    """)
    if OPT["reclate"]:
        rec_loads()
    for p in range(4):
        a(f"v_lshlrev_b32 v{vB1+2*p}, 16, v{112+p}")
        a(f"v_and_b32 v{vB1+2*p+1}, 0xffff0000, v{112+p}")
    a(f"""
    s_cmp_lt_u32 s3, 14
    s_cbranch_scc1 K2_B0
    v_lshlrev_b32 v24, 16, v122
    v_and_b32 v25, 0xffff0000, v122
    v_mul_f32 v24, s34, v24
    v_mul_f32 v25, s34, v25
    v_and_b32 v22, 1, v123
    v_lshlrev_b32 v22, 3, v22            ; (h&3)*4
    v_bfe_u32 v23, v123, 1, 2
    v_lshl_add_u32 v22, v23, 4, v22      ; + ((h>>2)&3)*16
    v_bfe_u32 v23, v123, 4, 2
    v_lshl_add_u32 v22, v23, 6, v22      ; + ((h>>5)&3)*64
    v_bfe_u32 v23, v123, 3, 1
    v_lshl_add_u32 v22, v23, 8, v22      ; + half*256
    v_lshrrev_b32 v23, 6, v123
    v_lshl_add_u32 v22, v23, 9, v22      ; + s*512
    ds_write_b64 v22, v[24:25] offset:{WT}
    v_max_f32 v21, v120, v121
    """)
    row_max(a, 21)
    a(f"""
    s_mov_b32 exec_lo, 0x80008000
    s_mov_b32 exec_hi, 0x80008000
    ds_max_u32 v19, v21 offset:{MISC}
    s_mov_b64 exec, -1
K2_B0:
    s_barrier
    """)
    stamp(a, 2)
    wreads, xreads, mf = gemm_parts(a, vW, vX, vAcc, vb, vxa, lambda aa: f"v[{vB1+4*aa}:{vB1+4*aa+3}]", acc2=True)

    def epi(i, last=False):
        o = vAcc + 8 * (i & 1)
        for r in range(8):
            a(f"v_mul_f32 v{o+r}, s34, v{o+r}")
        for r in range(0, 8, 2):
            a(f"v_max3_f32 v19, |v{o+r}|, |v{o+r+1}|, v19")
        if last:
            a("s_mov_b32 exec_lo, 0x00030003")
            a("s_mov_b32 exec_hi, 0x00030003")
        a(f"ds_write_b128 v18, v[{o}:{o+3}] offset:{i * 16 * ROWS}")
        a(f"ds_write_b128 v18, v[{o+4}:{o+7}] offset:{i * 16 * ROWS + 256}")
        if last:
            a("s_mov_b64 exec, -1")

    wreads(); xreads(0); xreads(1)
    a("s_waitcnt lgkmcnt(4)")
    mf(0)
    xreads(2)
    a("s_waitcnt lgkmcnt(4)")
    mf(1)
    a("s_cmp_ge_u32 s3, 8")
    a("s_cbranch_scc1 K2_NOX3")
    xreads(3)
    a("K2_NOX3:")
    stamp(a, 3)
    a("s_waitcnt vmcnt(0)")
    stamp(a, 4)
    hist("K2A")
    a("s_waitcnt lgkmcnt(0)")
    a("s_barrier")
    stamp(a, 5)
    assert U == 4
    vP = 100
    vPair = 116
    vE = 124
    vI = 52
    vAddr, vDeg, vH = vI, vI + 1, vI + 2
    vL16, vK1, vG16, vWT, vQI, vTmp = 56, 57, 58, 59, 60, 61
    vQ, vW, vT, vX, vN, vD = 20, 28, 36, 44, 64, 72
    sQ, sS, sD0, sD3, sSafe, sSl, sSEL = 27, 28, 29, 30, 31, 32, 33

    def gemm_tail(L):
        epi(1)
        a("s_cmp_ge_u32 s3, 8")
        a(f"s_cbranch_scc1 {L}_E2")
        mf(3)
        epi(2)
        epi(3)
        a(f"s_branch {L}_GD")
        a(f"{L}_E2:")
        epi(2, last=True)
        a(f"{L}_GD:")
        row_max(a, 19)
        a(f"""
    v_mov_b32 v4, 0
    s_mov_b32 exec_lo, 0x80008000
    s_mov_b32 exec_hi, 0x80008000
    ds_max_u32 v4, v19 offset:{MISC + 4}
    s_mov_b64 exec, -1
        """)

    def main_consts():
        a(f"""
    v_lshlrev_b32 v{vL16}, 4, v2
    v_mov_b32 v{vG16}, {INFO}
    v_lshl_add_u32 v{vG16}, v3, 4, v{vG16}
    v_add_u32 v{vWT}, {WT}, v{vL16}
    s_mov_b32 s{sSEL}, 0x00003f80
    s_mov_b32 s{sQ}, s3
        """)
        for j in range(U):
            a(f"v_mov_b32 v{vPair+2*j+1}, v{vL16}")

    def item_loads():
        for j in range(U):
            a(f"ds_read_b32 v{vPair+2*j}, v{vAddr} offset:{8*j}")
        a(f"""
    ds_read_b32 v{vE}, v{vAddr} offset:4
    v_add3_u32 v{vH}, v{vH}, s25, v{vL16}
    v_readlane_b32 s{sD0}, v{vDeg}, 0
    v_readlane_b32 s{sD3}, v{vDeg}, 48
    v_readlane_b32 s35, v{vDeg}, 16
    v_readlane_b32 s71, v{vDeg}, 32
        """)

    def item_issue(extra):
        for j in range(U):
            a(f"s_waitcnt lgkmcnt({U - j + extra})")
            a(f"buffer_load_dwordx4 v[{vP+4*j}:{vP+4*j+3}], v[{vPair+2*j}:{vPair+2*j+1}], s[{sP}:{sP+3}], s{sSl} idxen offen")
        a(f"ds_read_b32 v{vPair}, v{vAddr} offset:{8*U}")

    fastrank("K2A", 9)
    fastscatter("K2A")
    epi(0)
    mf(2)
    srd(a, sP, 22, 23, N, stride=256)
    a(f"""
    v_mov_b32 v4, 0
    s_mov_b32 s{sNBATCH}, 1
    s_waitcnt lgkmcnt(0)
    """)
    stamp(a, 6)
    a(f"""
    s_barrier
    ds_read_b64 v[6:7], v4 offset:{MISC + 8}
    s_lshl_b32 s24, s3, 6
    v_lshl_add_u32 v{vI}, v3, 4, s24
    ds_read_b128 v[{vI}:{vI+3}], v{vI} offset:{INFO}
    s_mov_b32 s25, 0
    s_mov_b32 s{sSl}, 0
    s_waitcnt lgkmcnt(1)
    v_or_b32 v6, v6, v7
    s_nop 0
    v_readfirstlane_b32 s24, v6
    s_cmp_lg_u32 s24, 0
    s_cbranch_scc1 K2_SLOW0
    """)
    main_consts()
    a("s_waitcnt lgkmcnt(0)")
    item_loads()
    item_issue(0)
    gemm_tail("K2F")
    a("s_waitcnt lgkmcnt(0)")
    a("s_barrier                            ; Q' complete")
    stamp(a, 7)
    cstamp(a, 0)
    a(f"""
    ds_read_b64 v[{vT}:{vT+1}], v4 offset:{MISC}
    ds_read_b128 v[{vW}:{vW+3}], v{vWT}
    ds_read_b128 v[{vW+4}:{vW+7}], v{vWT} offset:256
    ds_read_b128 v[{vQ}:{vQ+3}], v{vH}
    ds_read_b128 v[{vQ+4}:{vQ+7}], v{vH} offset:256
    s_waitcnt lgkmcnt(4)
    v_add_f32 v{vK1}, v{vT}, v{vT+1}
    v_fma_f32 v{vK1}, v{vK1}, 4.0, 4.0
    s_branch K2_GO
K2_SLOW0:
    """)
    gemm_tail("K2S")
    scanrank("K2S", 8, 9, degt=False)
    a("s_waitcnt lgkmcnt(0)")
    a("s_barrier")
    posread("K2S")
    a("s_waitcnt lgkmcnt(0)")
    scatter("K2S")
    a("""
    s_branch K2_MAIN
K2_BATCH:
    s_waitcnt vmcnt(0)
    """)
    hist("K2B")
    a("s_waitcnt lgkmcnt(0)")
    a("s_barrier")
    scanrank("K2B", 8, 9)
    a("s_waitcnt lgkmcnt(0)")
    a("s_barrier")
    posread("K2B")
    a("s_waitcnt lgkmcnt(0)")
    scatter("K2B")
    a(f"""
K2_MAIN:
    v_mov_b32 v4, 0
    s_waitcnt lgkmcnt(0)
    s_barrier
    ds_read_b128 v[{vI}:{vI+3}], v4 offset:{MISC}
    """)
    main_consts()
    a(f"""
    s_waitcnt lgkmcnt(0)
    v_readfirstlane_b32 s24, v{vI+3}
    v_add_f32 v{vK1}, v{vI}, v{vI+1}
    v_fma_f32 v{vK1}, v{vK1}, 4.0, 4.0
    s_add_u32 s24, s24, 23
    s_mul_i32 s24, s24, 2731
    s_lshr_b32 s{sNBATCH}, s24, 16
    s_cmp_le_u32 s{sNBATCH}, 1
    s_cbranch_scc1 K2_ITEM
    v_mov_b32 v{vK1}, 0x7f800000         ; several batches: every item takes the plain path
K2_ITEM:
    s_cmp_ge_u32 s{sQ}, 50
    s_cbranch_scc1 K2_DONE
    s_cmp_ge_u32 s{sQ}, 25
    s_cselect_b32 s24, 25, 0
    s_cselect_b32 s25, 512, 0
    s_cselect_b32 s{sSl}, {PS}, 0
    s_sub_u32 s24, s{sQ}, s24
    s_lshl_b32 s24, s24, 6
    v_add_u32 v{vTmp}, s24, v{vG16}
    ds_read_b128 v[{vI}:{vI+3}], v{vTmp}
    v_add_u32 v{vTmp}, s25, v{vWT}
    ds_read_b128 v[{vW}:{vW+3}], v{vTmp}
    ds_read_b128 v[{vW+4}:{vW+7}], v{vTmp} offset:256
    s_mov_b32 s{sP+2}, {N}
    s_waitcnt lgkmcnt(2)
    """)
    item_loads()
    a(f"""
    ds_read_b128 v[{vQ}:{vQ+3}], v{vH}
    ds_read_b128 v[{vQ+4}:{vQ+7}], v{vH} offset:256
    """)
    item_issue(2)
    a(f"""
K2_GO:
    v_cvt_f32_u32 v{vTmp}, v{vDeg}
    v_cvt_f32_u32 v{vI+3}, v{vI+3}
    v_fma_f32 v{vTmp}, v{vTmp}, v{vK1}, v{vI+3}
    s_max_u32 s24, s{sD0}, s{sD3}
    s_min_u32 s{sD3}, s{sD0}, s{sD3}
    v_cmp_nge_f32 vcc, {BOUND:#x}, v{vTmp}
    s_max_u32 s{sD0}, s35, s71
    s_min_u32 s35, s35, s71
    s_max_u32 s{sD0}, s{sD0}, s24
    s_min_u32 s{sD3}, s{sD3}, s35
    s_min_u32 s{sD0}, s{sD0}, {LISTCAP}
    s_sub_u32 s24, s{sD0}, {U}
    s_min_i32 s{sSafe}, s24, s{sD3}
    s_cmp_gt_i32 s24, 0
    s_cselect_b32 s{sP+2}, {N}, 0
    s_mov_b32 s{sS}, 0
    {"s_setprio 0" if OPT["prio"] else ""}
    s_cbranch_vccnz K2_P_START
    s_cmp_lg_u32 s{sD3}, 0
    s_cbranch_scc1 K2_F_FIRST
    """)
    for r in range(8):
        a(f"v_mov_b32 v{vN+r}, 0")
        a(f"v_mov_b32 v{vD+r}, 1.0")
    a(f"""
    s_cmp_eq_u32 s{sD0}, 0
    s_cbranch_scc1 K2_F_FLUSH
    v_cmpx_lt_u32 vcc, 0, v{vDeg}
    """)

    def step(j, mode):
        P = vP + 4 * j
        T = vN if mode == "first" else vT
        eh = j & 1
        jn = (j + 1) % U
        osel = "op_sel_hi:[1,0,1]" if eh == 0 else "op_sel:[0,1,0] op_sel_hi:[1,1,1]"
        a("s_waitcnt lgkmcnt(0)")
        for r in range(0, 8, 2):
            a(f"v_pk_fma_f32 v[{T+r}:{T+r+1}], v[{vW+r}:{vW+r+1}], v[{vE}:{vE+1}], v[{vQ+r}:{vQ+r+1}] {osel}")
        a(f"ds_read_b32 v{vE + (eh ^ 1)}, v{vAddr} offset:{8*(j+1)+4}")
        a(f"s_waitcnt vmcnt({U-1})")
        if mode != "plain":
            for p in range(4):
                a(f"v_dot2_f32_bf16 v{T+p}, v{P+p}, s{sSEL}, v{T+p}")
            a(f"v_pk_add_f32 v[{T+4}:{T+5}], v[{P}:{P+1}], v[{T+4}:{T+5}]")
            a(f"v_pk_add_f32 v[{T+6}:{T+7}], v[{P+2}:{P+3}], v[{T+6}:{T+7}]")
        else:
            for p in range(4):
                a(f"v_lshlrev_b32 v{vX+p}, 16, v{P+p}")
            a(f"v_pk_add_f32 v[{T+4}:{T+5}], v[{P}:{P+1}], v[{T+4}:{T+5}]")
            a(f"v_pk_add_f32 v[{T+6}:{T+7}], v[{P+2}:{P+3}], v[{T+6}:{T+7}]")
            a(f"v_pk_add_f32 v[{T}:{T+1}], v[{vX}:{vX+1}], v[{T}:{T+1}]")
            a(f"v_pk_add_f32 v[{T+2}:{T+3}], v[{vX+2}:{vX+3}], v[{T+2}:{T+3}]")
        a(f"buffer_load_dwordx4 v[{P}:{P+3}], v[{vPair+2*j}:{vPair+2*j+1}], s[{sP}:{sP+3}], s{sSl} idxen offen")
        a(f"ds_read_b32 v{vPair+2*jn}, v{vAddr} offset:{8*(j+1+U)}")
        for r in (4, 5, 6, 7, 0, 1, 2, 3):
            a(f"v_exp_f32 v{vX+r}, v{T+r}")
        order = (4, 6, 0, 2)
        if mode == "first":
            for r in order:
                a(f"v_pk_add_f32 v[{vD+r}:{vD+r+1}], v[{vX+r}:{vX+r+1}], 1.0 op_sel_hi:[1,0]")
        elif mode == "fast":
            for r in order:
                a(f"v_pk_fma_f32 v[{vN+r}:{vN+r+1}], v[{vN+r}:{vN+r+1}], v[{vX+r}:{vX+r+1}], v[{vN+r}:{vN+r+1}]")
            for r in order:
                a(f"v_pk_fma_f32 v[{vN+r}:{vN+r+1}], v[{T+r}:{T+r+1}], v[{vD+r}:{vD+r+1}], v[{vN+r}:{vN+r+1}]")
            for r in order:
                a(f"v_pk_fma_f32 v[{vD+r}:{vD+r+1}], v[{vD+r}:{vD+r+1}], v[{vX+r}:{vX+r+1}], v[{vD+r}:{vD+r+1}]")
        else:
            for r in order:
                a(f"v_pk_add_f32 v[{vX+r}:{vX+r+1}], v[{vX+r}:{vX+r+1}], 1.0 op_sel_hi:[1,0]")
            for r in (4, 5, 6, 7, 0, 1, 2, 3):
                a(f"v_rcp_f32 v{vX+r}, v{vX+r}")
            for r in order:
                a(f"v_pk_fma_f32 v[{vN+r}:{vN+r+1}], v[{T+r}:{T+r+1}], v[{vX+r}:{vX+r+1}], v[{vN+r}:{vN+r+1}]")
        if j == U - 1:
            a(f"v_add_u32 v{vAddr}, {8*U}, v{vAddr}")
            if OPT["prio"]:
                a("s_setprio 1")
        a(f"s_add_u32 s{sS}, s{sS}, 1")
        a(f"s_cmp_ge_i32 s{sS}, s{sSafe}")

    def loop(pfx, mode):
        tails = []
        if mode == "fast":
            a(f"{pfx}_FIRST:")
            step(0, "first")
            a(f"s_cbranch_scc1 {pfx}_T0")
            seq = list(range(1, U)) + [0]
        else:
            seq = list(range(U))
        for j in seq:
            a(f"{pfx}_S{j}:")
            step(j, mode)
            if j == seq[-1]:
                a(f"s_cbranch_scc0 {pfx}_S{seq[0]}")
            else:
                a(f"s_cbranch_scc1 {pfx}_T{j}")
        for j in [seq[-1]] + seq[:-1]:
            a(f"""
{pfx}_T{j}:
    {"s_setprio 2" if OPT["prio"] else ""}
    s_cmp_ge_u32 s{sS}, s{sD0}
    s_cbranch_scc1 {pfx}_FLUSH
    v_cmpx_lt_u32 vcc, s{sS}, v{vDeg}
    s_add_u32 s24, s{sS}, {U}
    s_cmp_lt_u32 s24, s{sD0}
    s_cselect_b32 s{sP+2}, {N}, 0
    s_branch {pfx}_S{(j+1) % U}
            """)

    loop("K2_F", "fast")
    a(f"""
K2_F_FLUSH:
    s_mov_b64 exec, 1
    v_mov_b32 v{vQI}, 0
    v_mov_b32 v{vTmp}, 1
    ds_add_rtn_u32 v{vQI}, v{vQI}, v{vTmp} offset:{MISC + 16}
    s_mov_b64 exec, -1
    """)
    for r in range(8):
        a(f"v_rcp_f32 v{vX+r}, v{vD+r}")
    for r in range(0, 8, 2):
        a(f"v_pk_mul_f32 v[{vN+r}:{vN+r+1}], v[{vN+r}:{vN+r+1}], v[{vX+r}:{vX+r+1}]")
    a("K2_WRH:")
    for r in range(4):
        a(f"v_cvt_pk_bf16_f32 v{vX+r}, v{vN+2*r}, v{vN+2*r+1}")
    a(f"""
    ds_write_b128 v{vH}, v[{vX}:{vX+3}]
K2_NEXT:
    s_waitcnt lgkmcnt(0)
    v_readfirstlane_b32 s{sQ}, v{vQI}
    s_branch K2_ITEM
K2_P_START:
    """)
    for r in range(8):
        a(f"v_mov_b32 v{vN+r}, 0")
    a(f"""
    s_cmp_eq_u32 s{sD0}, 0
    s_cbranch_scc1 K2_P_FLUSH
    v_cmpx_lt_u32 vcc, 0, v{vDeg}
    """)
    loop("K2_P", "plain")
    a(f"""
K2_P_FLUSH:
    s_mov_b64 exec, 1
    v_mov_b32 v{vQI}, 0
    v_mov_b32 v{vTmp}, 1
    ds_add_rtn_u32 v{vQI}, v{vQI}, v{vTmp} offset:{MISC + 16}
    s_mov_b64 exec, -1
    s_cmp_le_u32 s{sNBATCH}, 1
    s_cbranch_scc1 K2_WRH
    """)
    a(f"""
    s_mul_i32 s24, s2, {SCR_STRIDE}
    s_add_u32 s24, s24, {SCR_OFF - QH}
    s_mov_b32 s{sSCR}, s22
    s_mov_b32 s{sSCR+1}, s23
    s_mov_b32 s{sSCR+2}, {WS_USED}
    s_mov_b32 s{sSCR+3}, 0x00020000
    v_add_u32 v{vH}, v{vH}, v{vL16}
    s_cmp_eq_u32 s{sBATCH}, 0
    s_cbranch_scc1 K2_P_ST
    buffer_load_dwordx4 v[{vX}:{vX+3}], v{vH}, s[{sSCR}:{sSCR+3}], s24 offen
    buffer_load_dwordx4 v[{vX+4}:{vX+7}], v{vH}, s[{sSCR}:{sSCR+3}], s24 offen offset:16
    s_waitcnt vmcnt(0)
    """)
    for r in range(0, 8, 2):
        a(f"v_pk_add_f32 v[{vN+r}:{vN+r+1}], v[{vN+r}:{vN+r+1}], v[{vX+r}:{vX+r+1}]")
    a(f"""
K2_P_ST:
    buffer_store_dwordx4 v[{vN}:{vN+3}], v{vH}, s[{sSCR}:{sSCR+3}], s24 offen
    buffer_store_dwordx4 v[{vN+4}:{vN+7}], v{vH}, s[{sSCR}:{sSCR+3}], s24 offen offset:16
    s_waitcnt vmcnt(0)
    s_branch K2_NEXT
    """)
    vF = 32
    a(f"""
K2_DONE:
    s_add_u32 s{sBATCH}, s{sBATCH}, 1
    s_cmp_ge_u32 s{sBATCH}, s{sNBATCH}
    s_cbranch_scc1 K2_FINAL
    s_waitcnt vmcnt(0)
    s_add_u32 s{sRECB}, s{sRECB}, 192
    v_subrev_u32 v127, 24, v127
    """)
    rec_loads()
    a(f"""
    s_barrier
    v_mov_b32 v4, 0
    v_lshlrev_b32 v5, 2, v0
    v_cmp_gt_u32 vcc, {(DEGT - CNT) // 4}, v0
    s_mov_b64 exec, vcc
    ds_write_b32 v5, v4 offset:{CNT}
    s_mov_b64 exec, 1
    v_mov_b32 v5, {MISC}
    v_mov_b32 v6, 16
    ds_write_b32 v5, v6 offset:16
    s_mov_b64 exec, -1
    s_waitcnt lgkmcnt(0)
    s_barrier
    s_branch K2_BATCH
K2_FINAL:
    """)
    stamp(a, 8)
    cstamp(a, 1)
    a(f"""
    s_waitcnt vmcnt(0)
    s_and_b32 s24, s3, 3                 ; cp
    s_lshl_b32 s25, s24, 14
    s_add_u32 s25, s25, {W2F_OFF}
    v_lshlrev_b32 v4, 4, v1
    """)
    for f in range(16):
        if f and f % 4 == 0:
            a("s_add_u32 s25, s25, 4096")
        a(f"buffer_load_dwordx4 v[{vF+4*f}:{vF+4*f+3}], v4, s[{sWS}:{sWS+3}], s25 offen offset:{1024*(f%4)}")
    srd(a, sB2, 18, 19, 256)
    srd(a, sOUT, 20, 21, N * 256)
    a(f"""
    s_lshl_b32 s24, s24, 6
    v_lshlrev_b32 v5, 4, v3              ; g*16
    buffer_load_dwordx4 v[8:11], v5, s[{sB2}:{sB2+3}], s24 offen
    s_lshr_b32 s27, s3, 2
    s_lshl_b32 s27, s27, 4               ; first row tile * 16
    v_add_u32 v6, s27, v2
    v_mul_u32_u24 v7, {ROWS}, v6
    v_add_u32 v7, v7, v5
    v_add_u32 v7, {QH}, v7
    v_lshlrev_b32 v20, 2, v6
    v_add_u32 v21, s{sROW0}, v6
    v_lshl_add_u32 v21, v21, 8, v5
    s_mov_b32 s34, {NLN2:#x}
    s_barrier
    s_cmp_le_u32 s{sNBATCH}, 1
    s_cbranch_scc1 K2_GEMM2
    s_mul_i32 s28, s2, {SCR_STRIDE}
    s_add_u32 s28, s28, {SCR_OFF}
    s_mov_b32 s{sSCR}, s22
    s_mov_b32 s{sSCR+1}, s23
    s_mov_b32 s{sSCR+2}, {WS_USED}
    s_mov_b32 s{sSCR+3}, 0x00020000
    v_and_b32 v22, 1, v3
    v_lshlrev_b32 v22, 9, v22
    v_lshl_add_u32 v22, v2, 4, v22       ; s*512 + l*16
    v_lshl_add_u32 v23, v2, 4, v22       ; s*512 + l*32
    s_mov_b32 s29, s3
K2_CONV:
    s_mul_i32 s30, s29, {ROWS}
    s_add_u32 s31, s30, s28
    buffer_load_dwordx4 v[100:103], v23, s[{sSCR}:{sSCR+3}], s31 offen
    buffer_load_dwordx4 v[104:107], v23, s[{sSCR}:{sSCR+3}], s31 offen offset:16
    s_add_u32 s30, s30, {QH}
    v_add_u32 v24, s30, v22
    s_waitcnt vmcnt(0)
    v_cvt_pk_bf16_f32 v100, v100, v101
    v_cvt_pk_bf16_f32 v101, v102, v103
    v_cvt_pk_bf16_f32 v102, v104, v105
    v_cvt_pk_bf16_f32 v103, v106, v107
    ds_write_b128 v24, v[100:103]
    s_add_u32 s29, s29, 16
    s_cmp_lt_u32 s29, {NB}
    s_cbranch_scc1 K2_CONV
    s_waitcnt lgkmcnt(0)
    s_barrier
K2_GEMM2:
    """)
    stamp(a, 9)
    vHB = 96
    vO = 24
    for rt in range(2):
        off = rt * 64 * ROWS
        if rt == 1:
            a("s_cmp_ge_u32 s3, 12")
            a("s_cbranch_scc1 K2_FIN")
            a(f"v_add_u32 v7, {off}, v7")
            a(f"v_add_u32 v21, {64 * 256}, v21")
        a(f"ds_read_b32 v22, v20 offset:{DEGT + rt * 256}")
        for ks in range(8):
            a(f"ds_read_b128 v[{vHB+4*ks}:{vHB+4*ks+3}], v7 offset:{(ks >> 2) * 512 + (ks & 3) * 64}")
        if rt == 0:
            a("s_waitcnt vmcnt(0)")
            for p in range(4):
                a(f"v_lshlrev_b32 v{12+2*p}, 16, v{8+p}")
                a(f"v_and_b32 v{13+2*p}, 0xffff0000, v{8+p}")
        for ks in range(8):
            a(f"s_waitcnt lgkmcnt({7-ks})")
            for aa in range(2):
                f = vF + 4 * (aa * 8 + ks)
                c = "0" if ks == 0 else f"v[{vO+4*aa}:{vO+4*aa+3}]"
                a(f"v_mfma_f32_16x16x32_bf16 v[{vO+4*aa}:{vO+4*aa+3}], v[{f}:{f+3}], v[{vHB+4*ks}:{vHB+4*ks+3}], {c}")
        a("v_cvt_f32_u32 v22, v22")
        a(f"v_cmp_gt_u32 vcc, {NB - 64 * rt}, v6")
        a("s_nop 5")
        for r in range(8):
            a(f"v_mul_f32 v{vO+r}, s34, v{vO+r}")
        for r in range(8):
            a(f"v_fmac_f32 v{vO+r}, v22, v{12+r}")
        for r in range(4):
            a(f"v_cvt_pk_bf16_f32 v{vHB+r}, v{vO+2*r}, v{vO+2*r+1}")
        a("s_mov_b64 exec, vcc")
        a(f"buffer_store_dwordx4 v[{vHB}:{vHB+3}], v21, s[{sOUT}:{sOUT+3}], s24 offen")
        a("s_mov_b64 exec, -1")
        if rt == 0:
            a("s_nop 1")
    a("K2_FIN:")
    stamp(a, 10)
    if OPT["stamps"]:
        a("s_waitcnt vmcnt(0)")
    stamp(a, 11)
    stamp_flush(a, 1)
    a("""
K2_END:
    s_endpgm
    """)
    return a.text(), 128, (102 if OPT["stamps"] else 96)


HEADER = """; Kernarg layout for this problem (88 bytes, ptrs only, base s[0:1]):
"""


def kd(name, vgpr, sgpr):
    return f""".amdhsa_kernel {name}
  .amdhsa_next_free_vgpr {vgpr}
  .amdhsa_next_free_sgpr {sgpr}
  .amdhsa_accum_offset {(vgpr + 3) // 4 * 4}
  .amdhsa_group_segment_fixed_size 0
  .amdhsa_kernarg_size 88
  .amdhsa_user_sgpr_count 2
  .amdhsa_user_sgpr_kernarg_segment_ptr 1
  .amdhsa_system_sgpr_workgroup_id_x 1
.end_amdhsa_kernel
"""


def build():
    k1, v1, s1 = gen_k1()
    k2, v2, s2 = gen_k2()
    n1 = "mpnn_prep_kernel"
    n2 = "gather_scatter__edge_featured_mpnn_mpnn__graph_kernel"
    out = HEADER
    out += f"; @launch kernel={n1} grid=(256,1,1) block=(1024,1,1) lds={K1_LDS}\n"
    out += f"; @launch kernel={n2} grid=(256,1,1) block=(1024,1,1) lds={K2_LDS}\n"
    out += '.amdgcn_target "amdgcn-amd-amdhsa--gfx950"\n.text\n'
    for n, k in ((n1, k1), (n2, k2)):
        out += f".globl {n}\n.p2align 8\n.type {n},@function\n{n}:\n" + k
    out += '.section .rodata,"a"\n.p2align 6\n' + kd(n1, v1, s1) + ".p2align 6\n" + kd(n2, v2, s2)
    return out


if __name__ == "__main__":
    path = sys.argv[1] if len(sys.argv) > 1 else "gather_scatter__edge_featured_mpnn_mpnn__graph.s"
    for kv in sys.argv[2:]:
        k, v = kv.split("=")
        OPT[k] = int(v) if v.lstrip('-').isdigit() else v.replace('+', ' ')
    open(path, "w").write(build())
    print("wrote", path, "K1_LDS", K1_LDS, "K2_LDS", K2_LDS)
```

```python
import sys

N = 25000; E = 400000
NB = 98
CH = 1564
CHS = 12544
PS = N * 256
P_OFF = 0
REC_OFF = 2 * PS
TAB_OFF = REC_OFF + 256 * CHS
W2F_OFF = TAB_OFF + 256 * 1024
PMAX_OFF = W2F_OFF + 65536
SCR_OFF = 0x1000000
SCR_STRIDE = 104448
WS_USED = SCR_OFF + 256 * SCR_STRIDE
NLOG2E = 0xbfb8aa3b
NLN2 = 0xbf317218
BOUND = 0x43e00000

STAMP_OFF = 0x3000000
OPT = dict(U=4, stamps=False, pst="", rst="", prio=1, warm=1, reclate=0, tlb=0)


class A:
    def __init__(self):
        self.l = []

    def __call__(self, s):
        for x in s.strip("\n").split("\n"):
            x = x.rstrip()
            if not x.strip():
                continue
            if x.strip().endswith(":") and not x.strip().startswith(";"):
                self.l.append(x.strip())
            else:
                self.l.append("    " + x.strip())

    def text(self):
        return "\n".join(self.l) + "\n"


def stamp(a, i):
    if OPT["stamps"]:
        a(f"""
        s_memrealtime s[98:99]
        s_waitcnt lgkmcnt(0)
        s_mov_b32 s{84+i}, s98
        """)


def cstamp(a, i):
    if OPT["stamps"]:
        a(f"""
        s_memtime s[98:99]
        s_waitcnt lgkmcnt(0)
        s_mov_b32 s{96+i}, s98
        """)


def stamp_init(a):
    if OPT["stamps"]:
        for i in range(14):
            a(f"s_mov_b32 s{84+i}, 0")


def stamp_flush(a, kern):
    if OPT["stamps"]:
        a(f"""
        s_mov_b64 exec, -1
        s_mov_b32 s4, s22
        s_mov_b32 s5, s23
        s_mov_b32 s6, 0x8000000
        s_mov_b32 s7, 0x00020000
        s_lshl_b32 s8, s2, 4
        s_add_u32 s8, s8, s3
        s_lshl_b32 s8, s8, 6
        s_add_u32 s8, s8, {STAMP_OFF + kern * 256 * 16 * 64}
        v_mov_b32 v0, 0
        s_mov_b64 exec, 1
        """)
        for i in range(14):
            a(f"v_mov_b32 v1, s{84+i}")
            a(f"buffer_store_dword v1, v0, s[4:7], s8 offen offset:{4*i}")


def srd(a, d, lo, hi, size, stride=0):
    a(f"s_mov_b32 s{d}, s{lo}")
    if stride:
        a(f"s_and_b32 s{d+1}, s{hi}, 0xffff")
        a(f"s_or_b32 s{d+1}, s{d+1}, {stride << 16:#x}")
    else:
        a(f"s_mov_b32 s{d+1}, s{hi}")
    a(f"s_mov_b32 s{d+2}, {size}")
    a(f"s_mov_b32 s{d+3}, 0x00020000")


def wave_scan(a, regs):
    steps = ["row_shr:1 row_mask:0xf", "row_shr:2 row_mask:0xf", "row_shr:4 row_mask:0xf", "row_shr:8 row_mask:0xf",
             "row_bcast:15 row_mask:0xa", "row_bcast:31 row_mask:0xc"]
    for st in steps:
        a("s_nop 1" if len(regs) == 1 else "s_nop 0")
        for r in regs:
            a(f"v_add_u32_dpp v{r}, v{r}, v{r} {st} bank_mask:0xf")


def row_max(a, r):
    for sh in (1, 2, 4, 8):
        a("s_nop 1")
        a(f"v_max_f32_dpp v{r}, v{r}, v{r} row_shr:{sh} row_mask:0xf bank_mask:0xf")


def common_ids(a):
    a("""
    v_lshrrev_b32 v1, 6, v0
    v_and_b32 v2, 15, v0               ; l16
    v_readfirstlane_b32 s3, v1         ; wave
    v_and_b32 v1, 63, v0               ; lane
    v_lshrrev_b32 v3, 4, v1            ; g
    """)


def dma_w_setup(a, vdst, vt, s0, s1):
    a(f"""
    s_and_b32 s{s0}, s3, 1
    s_lshl_b32 s{s0}, s{s0}, 1
    s_and_b32 s{s1}, s3, 2
    s_lshl_b32 s{s1}, s{s1}, 2
    s_or_b32 s{s0}, s{s0}, s{s1}
    s_and_b32 s{s1}, s3, 4
    s_or_b32 s{s0}, s{s0}, s{s1}
    s_and_b32 s{s1}, s3, 8
    s_lshl_b32 s{s1}, s{s1}, 3
    s_or_b32 s{s0}, s{s0}, s{s1}         ; k0
    s_lshl_b32 s{s0}, s{s0}, 9           ; k0*512
    s_and_b32 s{s1}, s3, 3
    s_lshl_b32 s{s1}, s{s1}, 6           ; (w&3)<<1 <<5
    v_lshrrev_b32 v{vt}, 5, v1           ; L>>5
    v_mul_u32_u24 v{vt}, 544, v{vt}      ; (L>>5)*512 + (L>>5)<<5
    v_and_b32 v{vdst}, 31, v1
    v_lshlrev_b32 v{vdst}, 4, v{vdst}    ; j*16
    v_xor_b32 v{vdst}, v{vt}, v{vdst}
    v_xor_b32 v{vdst}, s{s1}, v{vdst}
    """)


def dma_w_issue(a, vsrc, srdw, s0, s1, goff, wb):
    for i in range(4):
        a(f"s_add_u32 m0, s{s0}, {wb + i * 8192}")
        a(f"s_add_u32 s{s1}, s{s0}, {goff + i * 8192}")
        a(f"buffer_load_dwordx4 v{vsrc}, s[{srdw}:{srdw+3}], s{s1} offen lds")


def dma_x(a, srdx, srow0, vo, vt, st, xb):
    a(f"""
    s_and_b32 s{st}, s3, 1
    s_lshl_b32 s{st}, s{st}, 3
    v_add_u32 v{vt}, s{st}, v3           ; 8*(w&1)+g
    v_xor_b32 v{vt}, v2, v{vt}
    s_lshl_b32 s{st}, s3, 3
    s_add_u32 s{st}, s{st}, s{srow0}
    v_add_u32 v{vo}, s{st}, v3           ; row
    v_lshlrev_b32 v{vo}, 8, v{vo}
    v_lshl_add_u32 v{vo}, v{vt}, 4, v{vo}
    s_lshl_b32 s{st}, s3, 11
    s_add_u32 m0, s{st}, {xb}
    v_xor_b32 v{vt}, 64, v{vo}
    buffer_load_dwordx4 v{vo}, s[{srdx}:{srdx+3}], 0 offen lds
    buffer_load_dwordx4 v{vt}, s[{srdx}:{srdx+3}], 0 offen offset:1024 lds
    """)


def gemm_addr(a, vb, vxa, vt, st, wb, xb):
    a(f"""
    v_lshrrev_b32 v{vt}, 2, v2           ; r
    v_mul_u32_u24 v{vb}, 544, v{vt}      ; r*512 + r*32
    v_lshl_add_u32 v{vb}, v3, 12, v{vb}  ; + g*8*512
    v_and_b32 v{vt}, 1, v3
    v_lshl_add_u32 v{vb}, v{vt}, 7, v{vb} ; + (g&1)<<2<<5
    v_and_b32 v{vt}, 3, v2
    v_lshl_add_u32 v{vb}, v{vt}, 3, v{vb} ; + c*8
    s_and_b32 s{st}, s3, 7
    s_lshl_b32 s{st}, s{st}, 6
    v_xor_b32 v{vb}, s{st}, v{vb}
    v_add_u32 v{vb}, {wb}, v{vb}
    v_xor_b32 v{vb+1}, 32, v{vb}
    v_xor_b32 v{vt}, v2, v3
    v_lshlrev_b32 v{vt}, 4, v{vt}
    v_lshl_add_u32 v{vxa}, v2, 8, v{vt}
    s_lshr_b32 s{st}, s3, 3
    s_lshl_b32 s{st}, s{st}, 14
    s_add_u32 s{st}, s{st}, {xb}
    v_add_u32 v{vxa}, s{st}, v{vxa}
    v_xor_b32 v{vxa+1}, 64, v{vxa}
    v_xor_b32 v{vxa+2}, 0x80, v{vxa}
    v_xor_b32 v{vxa+3}, 0xc0, v{vxa}
    """)


def gemm_parts(a, vW, vX, vAcc, vb, vxa, cinit, acc2=False):
    def wreads():
        for ks in range(4):
            for aa in range(2):
                for h in range(2):
                    r = vW + 16 * aa + 4 * ks + 2 * h
                    a(f"ds_read_b64_tr_b16 v[{r}:{r+1}], v{vb+aa} offset:{ks * 16384 + h * 2048}")

    def xreads(i):
        for ks in range(4):
            r = vX + 16 * (i & 1) + 4 * ks
            a(f"ds_read_b128 v[{r}:{r+3}], v{vxa+ks} offset:{4096 * i}")

    def mf(i):
        for ks in range(4):
            for aa in range(2):
                acc = vAcc + 8 * ((i & 1) if acc2 else i) + 4 * aa
                c = cinit(aa) if ks == 0 else f"v[{acc}:{acc+3}]"
                w = vW + 16 * aa + 4 * ks
                x = vX + 16 * (i & 1) + 4 * ks
                a(f"v_mfma_f32_16x16x32_bf16 v[{acc}:{acc+3}], v[{w}:{w+3}], v[{x}:{x+3}], {c}")
    return wreads, xreads, mf


K1_HIST = 0
K1_START = K1_HIST + 1024
K1_PM = K1_START + 1024
K1_STAGE = K1_PM + 256
K1_XB = 15360
K1_WB = K1_XB + 32768
assert K1_STAGE + CHS <= K1_XB
K1_LDS = K1_WB + 65536
QCAP = 585


def gen_k1():
    a = A()
    vW, vX, vAcc = 20, 52, 84
    vb, vxa = 4, 16
    sX, sW1, sDST, sSRC, sE, sW2, sWS = 36, 40, 44, 48, 52, 56, 60
    pst, rst = OPT["pst"], OPT["rst"]
    a("""
    s_cmp_ge_u32 s2, 256
    s_cbranch_scc1 K1_END
    s_load_dwordx16 s[4:19], s[0:1], 0
    s_load_dwordx2 s[22:23], s[0:1], 80
    """)
    stamp_init(a)
    stamp(a, 0)
    common_ids(a)
    a(f"""
    s_mul_i32 s29, s2, {CH}
    s_sub_u32 s30, {E}, s29
    s_min_u32 s30, s30, {CH}
    s_lshr_b32 s30, s30, 1
    v_lshl_add_u32 v6, v0, 1, s29        ; first edge index
    v_lshlrev_b32 v7, 1, v6
    v_lshlrev_b32 v6, 2, v6
    v_cmp_gt_u32 s[32:33], s30, v0
    v_mov_b32 v11, 0
    v_lshlrev_b32 v12, 2, v0
    v_cmp_gt_u32 vcc, 256, v0
    s_mov_b64 exec, vcc
    ds_write_b32 v12, v11 offset:{K1_HIST}
    ds_write_b32 v11, v11 offset:{K1_PM}
    s_mov_b64 exec, -1
    v_lshlrev_b32 v13, 3, v1
    s_mov_b32 s68, {256 * 512}
    s_mul_i32 s26, s2, {NB}              ; first row of bucket
    s_waitcnt lgkmcnt(0)
    """)
    srd(a, sDST, 10, 11, E * 4)
    srd(a, sE, 6, 7, E * 2)
    srd(a, sSRC, 8, 9, E * 4)
    srd(a, sW1, 12, 13, 257 * 512)
    a(f"""
    buffer_load_dwordx2 v[14:15], v13, s[{sW1}:{sW1+3}], s68 offen
    s_mov_b64 exec, s[32:33]
    buffer_load_dwordx2 v[118:119], v6, s[{sDST}:{sDST+3}], 0 offen
    buffer_load_dword v10, v7, s[{sE}:{sE+3}], 0 offen
    buffer_load_dwordx2 v[8:9], v6, s[{sSRC}:{sSRC+3}], 0 offen
    s_mov_b64 exec, -1
    """)
    dma_w_setup(a, 4, 5, 24, 25)
    srd(a, sX, 4, 5, N * 256)
    srd(a, sWS, 22, 23, SCR_OFF)
    a("s_barrier")
    a("s_cmp_ge_u32 s3, 14")
    a("s_cbranch_scc1 K1_NOX")
    dma_x(a, sX, 26, 5, 6, 27, K1_XB)
    dma_w_issue(a, 4, sW1, 24, 25, 0, K1_WB)
    a("s_waitcnt vmcnt(9)")
    a("s_branch K1_WM")
    a("K1_NOX:")
    dma_w_issue(a, 4, sW1, 24, 25, 0, K1_WB)
    a("s_waitcnt vmcnt(7)")
    a(f"""
K1_WM:
    v_and_b32 v14, 0x7fff7fff, v14
    v_and_b32 v15, 0x7fff7fff, v15
    v_pk_max_u16 v14, v14, v15
    v_lshlrev_b32 v15, 16, v14
    v_and_b32 v14, 0xffff0000, v14
    v_max_u32 v14, v14, v15
    s_mov_b32 s64, 42800
    """)
    for st in ("row_shr:1 row_mask:0xf", "row_shr:2 row_mask:0xf", "row_shr:4 row_mask:0xf", "row_shr:8 row_mask:0xf",
               "row_bcast:15 row_mask:0xa", "row_bcast:31 row_mask:0xc"):
        a("s_nop 1")
        a(f"v_max_u32_dpp v14, v14, v14 {st} bank_mask:0xf")
    a(f"""
    v_mul_f32 v14, 0x40b8aa3b, v14       ; 4*log2(e)
    s_cmp_ge_u32 s3, 13
    s_cbranch_scc1 K1_NOH
    v_readlane_b32 s67, v14, 63
    s_waitcnt vmcnt(6)
    """)
    stamp(a, 1)
    a(f"""
    s_mov_b64 exec, s[32:33]
    v_mul_u32_u24 v116, s64, v118
    v_mul_u32_u24 v117, s64, v119
    v_lshrrev_b32 v116, 22, v116         ; bucket
    v_lshrrev_b32 v117, 22, v117
    v_mul_u32_u24 v125, {NB}, v116
    v_mul_u32_u24 v126, {NB}, v117
    v_lshlrev_b32 v116, 2, v116
    v_lshlrev_b32 v117, 2, v117
    v_sub_u32 v125, v118, v125           ; dloc
    v_sub_u32 v126, v119, v126
    v_mov_b32 v127, 1
    ds_add_rtn_u32 v118, v116, v127 offset:{K1_HIST}
    ds_add_rtn_u32 v119, v117, v127 offset:{K1_HIST}
    v_lshlrev_b32 v121, 16, v10
    v_and_b32 v123, 0xffff0000, v10
    v_fma_f32 v120, |v121|, s67, 1.0
    v_fma_f32 v122, |v123|, s67, 1.0
    v_lshl_or_b32 v121, v125, 2, v121    ; e<<16 | dloc*4
    v_lshl_or_b32 v123, v126, 2, v123
    v_cvt_u32_f32 v120, v120
    v_cvt_u32_f32 v122, v122
    v_min_u32 v120, {QCAP}, v120
    v_min_u32 v122, {QCAP}, v122
    v_lshl_or_b32 v120, v120, 16, v8     ; src | q<<16
    v_lshl_or_b32 v122, v122, 16, v9
    s_mov_b64 exec, -1
K1_NOH:
    """)
    if OPT["tlb"]:
        sh = OPT["tlb"]
        a(f"""
    s_cmp_lg_u32 s3, 13
    s_cbranch_scc1 K1_NOTLB
    s_load_dwordx2 s[20:21], s[0:1], 64
    v_lshlrev_b32 v20, {sh}, v1
    buffer_load_dword v21, v20, s[{sWS}:{sWS+3}], 0 offen
    v_mov_b32 v22, 0
    global_load_dword v23, v22, s[14:15]
    global_load_dword v24, v22, s[16:17]
    global_load_dword v25, v22, s[18:19]
    s_waitcnt lgkmcnt(0)
        """)
        srd(a, 56, 20, 21, N * 256)
        a(f"""
    buffer_load_dword v26, v20, s[56:59], 0 offen
K1_NOTLB:
        """)
    a("""
    s_waitcnt lgkmcnt(0)
    s_barrier
    """)
    stamp(a, 2)
    a(f"""
    s_cmp_lg_u32 s3, 15
    s_cbranch_scc1 K1_NOSCAN
    v_lshlrev_b32 v6, 4, v1
    ds_read_b128 v[52:55], v6 offset:{K1_HIST}
    s_and_b32 s24, s2, 7
    s_lshl_b32 s24, s24, 5
    s_lshr_b32 s68, s2, 3
    s_add_u32 s24, s24, s68
    s_lshl_b32 s24, s24, 2
    s_add_u32 s24, s24, {TAB_OFF}
    v_lshlrev_b32 v7, 12, v1
    s_waitcnt lgkmcnt(0)
    v_add_u32 v57, v52, v53              ; p2
    v_add_u32 v58, v57, v54              ; p3
    v_add_u32 v59, v58, v55              ; tot
    v_mov_b32 v60, v59
    """)
    wave_scan(a, [60])
    a(f"""
    v_sub_u32 v60, v60, v59              ; base
    v_add_u32 v61, v60, v52
    v_add_u32 v62, v60, v57
    v_add_u32 v63, v60, v58
    v_lshlrev_b32 v64, 3, v60
    v_lshlrev_b32 v65, 3, v61
    v_lshlrev_b32 v66, 3, v62
    v_lshlrev_b32 v67, 3, v63
    ds_write_b128 v6, v[64:67] offset:{K1_START}
    v_lshl_or_b32 v60, v52, 16, v60
    v_lshl_or_b32 v61, v53, 16, v61
    v_lshl_or_b32 v62, v54, 16, v62
    v_lshl_or_b32 v63, v55, 16, v63
    s_waitcnt lgkmcnt(0)
    s_barrier
    s_waitcnt vmcnt(0)
    buffer_store_dword v60, v7, s[{sWS}:{sWS+3}], s24 offen {rst}
    buffer_store_dword v61, v7, s[{sWS}:{sWS+3}], s24 offen offset:1024 {rst}
    buffer_store_dword v62, v7, s[{sWS}:{sWS+3}], s24 offen offset:2048 {rst}
    buffer_store_dword v63, v7, s[{sWS}:{sWS+3}], s24 offen offset:3072 {rst}
    s_branch K1_ADDR
K1_NOSCAN:
    s_cmp_lg_u32 s3, 14
    s_cbranch_scc1 K1_SCAT
    """)
    srd(a, sW2, 16, 17, 65536)
    a(f"""
    s_lshr_b32 s68, s2, 2                ; F = G>>6
    s_and_b32 s69, s2, 3                 ; g' = (G&63)>>4
    s_and_b32 s31, s68, 7
    s_lshl_b32 s31, s31, 5
    s_lshl_b32 s69, s69, 2
    s_add_u32 s31, s31, s69
    s_lshl_b32 s31, s31, 8               ; *256 bytes
    s_lshr_b32 s69, s68, 4               ; cp
    s_lshl_b32 s69, s69, 5
    s_bfe_u32 s68, s68, 0x10003          ; a
    s_lshl_b32 s68, s68, 2
    s_add_u32 s68, s68, s69              ; 32cp + 4a
    v_lshrrev_b32 v13, 2, v2
    v_lshlrev_b32 v13, 3, v13            ; 8*(m>>2)
    v_and_b32 v14, 3, v2
    v_add3_u32 v13, v13, v14, s68        ; col
    v_lshlrev_b32 v13, 1, v13
    s_mov_b64 exec, 0xffff
    """)
    for t in range(8):
        if t == 4:
            a("s_add_u32 s31, s31, 4096")
        r = vW + (t >> 1) + 4 * (t & 1)
        a(f"buffer_load_ushort v{r}, v13, s[{sW2}:{sW2+3}], s31 offen offset:{256 * (t & 3)}")
    a(f"""
    s_barrier
    s_lshl_b32 s68, s2, 8
    s_add_u32 s68, s68, {W2F_OFF}
    v_lshlrev_b32 v13, 4, v2
    s_waitcnt vmcnt(0)
    v_lshl_or_b32 v{vAcc}, v{vW+4}, 16, v{vW}
    v_lshl_or_b32 v{vAcc+1}, v{vW+5}, 16, v{vW+1}
    v_lshl_or_b32 v{vAcc+2}, v{vW+6}, 16, v{vW+2}
    v_lshl_or_b32 v{vAcc+3}, v{vW+7}, 16, v{vW+3}
    buffer_store_dwordx4 v[{vAcc}:{vAcc+3}], v13, s[{sWS}:{sWS+3}], s68 offen {rst}
    s_mov_b64 exec, -1
    s_branch K1_ADDR
K1_SCAT:
    s_barrier
    s_mov_b64 exec, s[32:33]
    ds_read_b32 v116, v116 offset:{K1_START}
    ds_read_b32 v117, v117 offset:{K1_START}
    s_waitcnt lgkmcnt(0)
    v_lshl_add_u32 v116, v118, 3, v116
    v_lshl_add_u32 v117, v119, 3, v117
    ds_write_b64 v116, v[120:121] offset:{K1_STAGE}
    ds_write_b64 v117, v[122:123] offset:{K1_STAGE}
    s_mov_b64 exec, -1
K1_ADDR:
    """)
    gemm_addr(a, vb, vxa, 11, 24, K1_WB, K1_XB)
    a(f"""
    s_mov_b32 s34, {NLOG2E:#x}
    s_mov_b32 s65, 0x07060100
    s_mov_b32 s66, 0x07060302
    s_lshr_b32 s27, s3, 3
    s_lshl_b32 s27, s27, 6               ; 64*rh
    s_sub_u32 s28, {N}, s26
    s_min_u32 s28, s28, {NB}
    s_sub_u32 s28, s28, s27              ; valid rows from this wave's first row
    s_add_u32 s27, s27, s26
    v_add_u32 v11, s27, v2
    v_lshlrev_b32 v11, 8, v11
    s_and_b32 s24, s3, 3
    s_lshl_b32 s24, s24, 2
    v_add_u32 v12, s24, v3
    v_lshl_add_u32 v11, v12, 4, v11
    s_bfe_u32 s25, s3, 0x10002
    s_mul_i32 s25, s25, {PS}
    v_mov_b32 v12, 0
    v_lshlrev_b32 v6, 4, v0
    v_cmp_gt_u32 vcc, {CHS // 16}, v0
    s_mov_b64 s[30:31], vcc
    s_mul_i32 s24, s2, {CHS}
    s_add_u32 s24, s24, {REC_OFF}
    s_cmp_ge_u32 s3, 14
    s_cbranch_scc1 K1_B0
    s_waitcnt vmcnt(0)
K1_B0:
    s_waitcnt lgkmcnt(0)
    """)
    stamp(a, 3)
    a("s_barrier")
    stamp(a, 4)
    cstamp(a, 0)
    wreads, xreads, mf = gemm_parts(a, vW, vX, vAcc, vb, vxa, lambda aa: "0")

    def epi(i):
        lo = vAcc + 8 * i; hi = lo + 4
        for r in range(8):
            a(f"v_fma_f32 v{lo+r}, v{lo+r}, s34, 0")
        a(f"v_cvt_pk_bf16_f32 v14, v{lo}, v{lo+1}")
        a(f"v_cvt_pk_bf16_f32 v15, v{lo+2}, v{lo+3}")
        for r in range(0, 8, 2):
            a(f"v_max3_f32 v12, |v{lo+r}|, |v{lo+r+1}|, v12")
        for r in range(4):
            a(f"v_add_u32 v{hi+r}, 0x8000, v{hi+r}")
        for r in range(4):
            a(f"v_sub_u32_sdwa v{hi+r}, v{hi+r}, v{14+(r>>1)} clamp dst_sel:DWORD dst_unused:UNUSED_PAD src0_sel:DWORD src1_sel:WORD_{r&1}")
        for r in range(4):
            a(f"v_perm_b32 v{lo+r}, v{hi+r}, v{14+(r>>1)}, s{65+(r&1)}")
        a(f"v_cmp_gt_i32 vcc, s28, v2")
        a(f"s_mov_b64 exec, vcc")
        a(f"buffer_store_dwordx4 v[{lo}:{lo+3}], v11, s[{sWS}:{sWS+3}], s25 offen {pst}")
        a(f"s_mov_b64 exec, -1")
        a("s_sub_u32 s28, s28, 16")
        a("s_add_u32 s25, s25, 4096")

    a(f"ds_read_b128 v[116:119], v6 offset:{K1_STAGE}")
    wreads(); xreads(0); xreads(1)
    a("s_waitcnt lgkmcnt(4)")
    a(f"""
    s_mov_b64 exec, s[30:31]
    buffer_store_dwordx4 v[116:119], v6, s[{sWS}:{sWS+3}], s24 offen {rst}
    s_mov_b64 exec, -1
    """)
    mf(0)
    xreads(2)
    a("s_waitcnt lgkmcnt(4)")
    mf(1)
    xreads(3)
    epi(0)
    a("s_waitcnt lgkmcnt(4)")
    mf(2)
    epi(1)
    a("""
    s_cmp_ge_u32 s3, 8
    s_cbranch_scc1 K1_RH1
    s_waitcnt lgkmcnt(0)
    """)
    mf(3)
    epi(2)
    epi(3)
    a(f"""
    s_branch K1_GD
K1_RH1:
    """)
    epi(2)
    if OPT["warm"]:
        a(f"""
    s_cmp_lg_u32 s3, 8
    s_cbranch_scc1 K1_GD
    s_lshr_b32 s68, s2, 3
    s_lshl_b32 s68, s68, 11
    s_add_u32 s68, s68, {128 * 512}
    v_lshlrev_b32 v13, 5, v1
    buffer_load_dword v14, v13, s[{sW1}:{sW1+3}], s68 offen
        """)
    a("K1_GD:")
    stamp(a, 5)
    cstamp(a, 1)
    row_max(a, 12)
    a(f"""
    v_mov_b32 v4, 0
    s_mov_b32 exec_lo, 0x80008000
    s_mov_b32 exec_hi, 0x80008000
    ds_max_u32 v4, v12 offset:{K1_PM}
    s_mov_b64 exec, -1
    s_waitcnt lgkmcnt(0)
    s_barrier
    s_cmp_lg_u32 s3, 15
    s_cbranch_scc1 K1_FIN
    ds_read_b32 v12, v4 offset:{K1_PM}
    s_lshl_b32 s24, s2, 2
    s_add_u32 s24, s24, {PMAX_OFF}
    s_mov_b64 exec, 1
    s_waitcnt lgkmcnt(0)
    buffer_store_dword v12, v4, s[{sWS}:{sWS+3}], s24 offen {rst}
K1_FIN:
    """)
    stamp(a, 6)
    if OPT["stamps"]:
        a("s_waitcnt vmcnt(0)")
    stamp(a, 7)
    stamp_flush(a, 0)
    a("""
K1_END:
    s_endpgm
    """)
    return a.text(), 128, (102 if OPT["stamps"] else 72)


ROWS = 1040
CNT = 0
DH = CNT + 512
DEGT = DH + 256
POS = DEGT + 512
INFO = POS + 512
MISC = INFO + 1600
WT = MISC + 64
LIST = (WT + 1024 + 255) // 256 * 256
LISTCAP = 6144
LCAP = 60
LROW = LCAP * 8
QH = (LIST + LISTCAP * 8 + 128 + 255) // 256 * 256
K2_LDS = QH + 100 * ROWS
assert K2_LDS <= 163840
assert MISC % 16 == 0 and INFO % 16 == 0 and WT % 16 == 0


def gen_k2():
    U = OPT["U"]
    a = A()
    vW, vX, vAcc = 20, 52, 84
    vRec, vRank, vPos = 100, 112, 118
    vb, vxa, vB1 = 4, 6, 10
    sX, sW1, sB1, sWS, sP, sOUT, sB2, sSCR = 36, 40, 44, 48, 52, 56, 60, 64
    sROW0 = 26
    sBATCH = 68; sNBATCH = 69; sRECB = 70
    sM = 72
    a("""
    s_cmp_ge_u32 s2, 256
    s_cbranch_scc1 K2_END
    s_load_dwordx2 s[22:23], s[0:1], 80
    s_load_dwordx16 s[4:19], s[0:1], 0
    s_load_dwordx2 s[20:21], s[0:1], 64
    """)
    stamp_init(a)
    stamp(a, 0)
    common_ids(a)
    a(f"""
    v_lshrrev_b32 v126, 2, v0
    v_and_b32 v7, 0x3fc, v0
    s_lshl_b32 s30, s2, 10
    s_add_u32 s30, s30, {TAB_OFF}
    s_mul_i32 s{sROW0}, s2, {NB}
    v_mov_b32 v4, 0
    v_lshlrev_b32 v5, 2, v0
    v_cmp_gt_u32 vcc, {(POS - CNT) // 4}, v0
    s_mov_b64 exec, vcc
    ds_write_b32 v5, v4 offset:{CNT}
    s_mov_b64 exec, 31
    v_cmp_eq_u32 vcc, 4, v1
    v_lshlrev_b32 v5, 2, v1
    s_nop 0
    v_cndmask_b32 v6, 0, 16, vcc
    ds_write_b32 v5, v6 offset:{MISC}
    s_mov_b64 exec, -1
    s_waitcnt lgkmcnt(0)
    """)
    srd(a, sWS, 22, 23, SCR_OFF)
    a(f"buffer_load_dword v124, v7, s[{sWS}:{sWS+3}], s30 offen")
    dma_w_setup(a, 4, 5, 24, 25)
    srd(a, sX, 4, 5, N * 256)
    srd(a, sW1, 12, 13, 257 * 512)
    a("s_barrier")
    a("s_cmp_ge_u32 s3, 14")
    a("s_cbranch_scc1 K2_AUXLD")
    dma_x(a, sX, sROW0, 5, 6, 27, LIST)
    a(f"""
    s_branch K2_WLD
K2_AUXLD:
    v_subrev_u32 v123, 896, v0           ; 0..127
    v_lshlrev_b32 v8, 2, v123
    v_lshlrev_b32 v9, 3, v123
    s_mov_b32 s28, {256 * 512}
    s_mov_b32 s29, {PMAX_OFF}
    buffer_load_dword v122, v8, s[{sW1}:{sW1+3}], s28 offen
    buffer_load_dwordx2 v[120:121], v9, s[{sWS}:{sWS+3}], s29 offen
K2_WLD:
    """)
    dma_w_issue(a, 4, sW1, 24, 25, 128 * 512, QH)
    srd(a, sB1, 14, 15, 512)
    a(f"""
    s_and_b32 s24, s3, 7
    s_lshl_b32 s24, s24, 6
    v_lshlrev_b32 v5, 3, v3
    buffer_load_dwordx2 v[112:113], v5, s[{sB1}:{sB1+3}], s24 offen
    buffer_load_dwordx2 v[114:115], v5, s[{sB1}:{sB1+3}], s24 offen offset:32
    v_and_b32 v125, 31, v126
    v_lshrrev_b32 v126, 5, v126
    v_lshl_or_b32 v126, v125, 3, v126    ; chunk
    v_mul_u32_u24 v126, {CHS}, v126
    v_and_b32 v125, 3, v0
    v_lshlrev_b32 v125, 1, v125          ; slot0 = 2j
    s_mov_b32 s{sRECB}, {REC_OFF}
    s_mov_b32 s{sBATCH}, 0
    s_waitcnt vmcnt(8)
    """)
    stamp(a, 1)
    a(f"""
    v_and_b32 v7, 0xffff, v124           ; start
    v_lshrrev_b32 v124, 16, v124         ; cnt
    v_add_u32 v7, v7, v125
    v_lshl_add_u32 v126, v7, 3, v126
    v_sub_u32 v127, v124, v125
    """)

    def rec_loads():
        for k in range(6):
            a(f"v_cmp_lt_i32 s[{sM+2*k}:{sM+2*k+1}], {8*(k>>1)+(k&1)}, v127")
        for m in range(3):
            a(f"s_mov_b64 exec, s[{sM+4*m}:{sM+4*m+1}]")
            a(f"buffer_load_dwordx4 v[{vRec+4*m}:{vRec+4*m+3}], v126, s[{sWS}:{sWS+3}], s{sRECB} offen offset:{64*m}")
        a("s_mov_b64 exec, -1")

    def hist(L):
        a("s_mov_b32 s35, 0xffff0000")
        for k in range(6):
            m, o = k >> 1, k & 1
            r0 = vRec + 4 * m + 2 * o
            a(f"s_mov_b64 exec, s[{sM+2*k}:{sM+2*k+1}]")
            if k in (2, 4):
                a(f"s_cbranch_execz {L}_HISTDONE")
            a(f"v_and_b32 v{vPos+k}, 0xffff, v{r0+1}")
            a(f"v_and_or_b32 v8, v{r0}, s35, 1")
            a(f"ds_add_rtn_u32 v{vRank+k}, v{vPos+k}, v8 offset:{CNT}")
            a(f"v_and_b32 v{r0}, 0xffff, v{r0}")
            a(f"v_and_b32 v{r0+1}, s35, v{r0+1}")
        a(f"{L}_HISTDONE:")
        a("s_mov_b64 exec, -1")

    def scanrank(L, wscan, wrank, degt=True):
        a(f"""
    s_sub_u32 s24, s3, {wscan}
    s_cmp_ge_u32 s24, 2
    s_cbranch_scc1 {L}_SRDONE
    v_lshlrev_b32 v8, 2, v1
    ds_read_b32 v78, v8 offset:{CNT}
    ds_read_b32 v79, v8 offset:{CNT + 256}
    v_mov_b32 v9, 1
    s_waitcnt lgkmcnt(0)
    v_and_b32 v68, 0xffff, v78
    v_and_b32 v69, 0xffff, v79
    s_cmp_eq_u32 s3, {wscan}
    s_cbranch_scc1 {L}_SCAN
    v_mov_b32 v77, 0
    ds_write_b32 v8, v77 offset:{DH}
    v_min_u32 v73, 63, v68
    v_min_u32 v74, 63, v69
    v_sub_u32 v73, 63, v73
    v_sub_u32 v74, 63, v74
    v_lshlrev_b32 v73, 2, v73
    v_lshlrev_b32 v74, 2, v74
    ds_add_rtn_u32 v75, v73, v9 offset:{DH}
    s_mov_b32 exec_hi, 0xf               ; nodes 64..99
    ds_add_rtn_u32 v76, v74, v9 offset:{DH}
    s_mov_b64 exec, -1
    ds_read_b32 v77, v8 offset:{DH}
    s_waitcnt lgkmcnt(0)
{L}_SCAN:
    v_mov_b32 v70, v68
    v_mov_b32 v71, v69
    v_mov_b32 v72, v77
        """)
        wave_scan(a, [70, 71, 72])
        a(f"""
    v_mov_b32 v9, {LIST}
    v_readlane_b32 s24, v70, 63
    v_sub_u32 v70, v70, v68
    v_sub_u32 v71, v71, v69
    v_add_u32 v71, s24, v71
    v_lshl_add_u32 v80, v70, 3, v9
    v_lshl_add_u32 v4, v71, 3, v9
    s_cmp_eq_u32 s3, {wscan}
    s_cbranch_scc0 {L}_RANK
    ds_write_b32 v8, v80 offset:{POS}
    ds_write_b32 v8, v4 offset:{POS + 256}
    {f"ds_add_u32 v8, v68 offset:{DEGT}" if degt else ""}
    {f"ds_add_u32 v8, v69 offset:{DEGT + 256}" if degt else ""}
    s_branch {L}_SRDONE
{L}_RANK:
    v_sub_u32 v72, v72, v77
    ds_bpermute_b32 v73, v73, v72
    ds_bpermute_b32 v74, v74, v72
    v_mov_b32 v81, v68
    v_mul_u32_u24 v82, {ROWS}, v1
    v_add_u32 v82, {QH}, v82
    v_lshrrev_b32 v83, 16, v78
    v_mov_b32 v5, v69
    v_add_u32 v6, {64 * ROWS}, v82
    v_lshrrev_b32 v7, 16, v79
    s_waitcnt lgkmcnt(0)
    v_add_lshl_u32 v73, v73, v75, 4
    v_add_lshl_u32 v74, v74, v76, 4
    ds_write_b128 v73, v[80:83] offset:{INFO}
    s_mov_b32 exec_hi, 0xf
    ds_write_b128 v74, v[4:7] offset:{INFO}
    s_mov_b64 exec, -1
{L}_SRDONE:
        """)

    def fastrank(L, wrank):
        a(f"""
    s_cmp_lg_u32 s3, {wrank}
    s_cbranch_scc1 {L}_FRDONE
    s_setprio 3
    v_lshlrev_b32 v8, 2, v1
    ds_read_b32 v78, v8 offset:{CNT}
    ds_read_b32 v79, v8 offset:{CNT + 256}
    v_mov_b32 v9, 1
    v_mul_u32_u24 v80, {LROW}, v1
    v_add_u32 v80, {LIST}, v80
    v_add_u32 v4, {64 * LROW}, v80
    v_mul_u32_u24 v82, {ROWS}, v1
    v_add_u32 v82, {QH}, v82
    v_add_u32 v6, {64 * ROWS}, v82
    s_waitcnt lgkmcnt(0)
    v_and_b32 v81, 0xffff, v78
    v_and_b32 v5, 0xffff, v79
    v_min_u32 v73, 63, v81
    v_min_u32 v74, 63, v5
    v_sub_u32 v73, 63, v73
    v_sub_u32 v74, 63, v74
    v_lshlrev_b32 v73, 2, v73
    v_lshlrev_b32 v74, 2, v74
    ds_add_rtn_u32 v75, v73, v9 offset:{DH}
    s_mov_b32 exec_hi, 0xf               ; nodes 64..99
    ds_add_rtn_u32 v76, v74, v9 offset:{DH}
    s_mov_b64 exec, -1
    ds_read_b32 v77, v8 offset:{DH}
    ds_write_b32 v8, v81 offset:{DEGT}
    ds_write_b32 v8, v5 offset:{DEGT + 256}
    v_max_u32 v72, v81, v5
    v_cmp_lt_u32 vcc, {LCAP}, v72
    v_mov_b32 v71, 0
    s_mov_b64 exec, vcc
    ds_max_u32 v71, v72 offset:{MISC + 8}
    s_mov_b64 exec, -1
    v_lshrrev_b32 v83, 16, v78
    v_lshrrev_b32 v7, 16, v79
    s_waitcnt lgkmcnt(3)
    v_mov_b32 v72, v77
        """)
        wave_scan(a, [72])
        a(f"""
    v_sub_u32 v72, v72, v77
    ds_bpermute_b32 v73, v73, v72
    ds_bpermute_b32 v74, v74, v72
    s_waitcnt lgkmcnt(0)
    v_add_lshl_u32 v73, v73, v75, 4
    v_add_lshl_u32 v74, v74, v76, 4
    ds_write_b128 v73, v[80:83] offset:{INFO}
    s_mov_b32 exec_hi, 0xf
    ds_write_b128 v74, v[4:7] offset:{INFO}
    s_mov_b64 exec, -1
    s_setprio 0
{L}_FRDONE:
        """)

    def fastscatter(L):
        a(f"s_movk_i32 s24, {LROW // 4}")
        for k in range(6):
            m, o = k >> 1, k & 1
            r0 = vRec + 4 * m + 2 * o
            a(f"s_mov_b64 exec, s[{sM+2*k}:{sM+2*k+1}]")
            if k in (2, 4):
                a(f"s_cbranch_execz {L}_FSDONE")
            a(f"v_min_u16 v8, {LCAP - 1}, v{vRank+k}")
            a(f"v_mul_u32_u24 v9, s24, v{vPos+k}")
            a(f"v_mad_u32_u16 v9, v8, 8, v9")
            a(f"ds_write_b64 v9, v[{r0}:{r0+1}] offset:{LIST}")
        a(f"{L}_FSDONE:")
        a("s_mov_b64 exec, -1")

    def posread(L):
        for k in range(6):
            a(f"s_mov_b64 exec, s[{sM+2*k}:{sM+2*k+1}]")
            if k in (2, 4):
                a(f"s_cbranch_execz {L}_POSDONE")
            a(f"ds_read_b32 v{vPos+k}, v{vPos+k} offset:{POS}")
        a(f"{L}_POSDONE:")
        a("s_mov_b64 exec, -1")

    def scatter(L):
        for k in range(6):
            m, o = k >> 1, k & 1
            r0 = vRec + 4 * m + 2 * o
            a(f"s_mov_b64 exec, s[{sM+2*k}:{sM+2*k+1}]")
            if k in (2, 4):
                a(f"s_cbranch_execz {L}_SCATDONE")
            a(f"v_mad_u32_u16 v{vPos+k}, v{vRank+k}, 8, v{vPos+k}")
            a(f"ds_write_b64 v{vPos+k}, v[{r0}:{r0+1}]")
        a(f"{L}_SCATDONE:")
        a("s_mov_b64 exec, -1")

    if not OPT["reclate"]:
        rec_loads()
    gemm_addr(a, vb, vxa, 10, 24, QH, LIST)
    a(f"""
    s_mov_b32 s34, {NLOG2E:#x}
    s_lshr_b32 s27, s3, 3
    s_mul_i32 s27, s27, {64 * ROWS}
    s_bfe_u32 s24, s3, 0x10002
    s_lshl_b32 s24, s24, 9
    s_add_u32 s27, s27, s24
    s_and_b32 s24, s3, 3
    s_lshl_b32 s24, s24, 6
    s_add_u32 s27, s27, s24
    s_add_u32 s27, s27, {QH}
    v_mul_u32_u24 v18, {ROWS}, v2
    v_lshl_add_u32 v18, v3, 4, v18
    v_add_u32 v18, s27, v18
    v_mov_b32 v19, 0
    v_cmp_lt_u32 vcc, 24, v124
    s_mov_b64 exec, vcc
    ds_max_u32 v19, v124 offset:{MISC + 12}
    s_mov_b64 exec, -1
    s_waitcnt vmcnt({0 if OPT["reclate"] else 3})
    """)
    if OPT["reclate"]:
        rec_loads()
    for p in range(4):
        a(f"v_lshlrev_b32 v{vB1+2*p}, 16, v{112+p}")
        a(f"v_and_b32 v{vB1+2*p+1}, 0xffff0000, v{112+p}")
    a(f"""
    s_cmp_lt_u32 s3, 14
    s_cbranch_scc1 K2_B0
    v_lshlrev_b32 v24, 16, v122
    v_and_b32 v25, 0xffff0000, v122
    v_mul_f32 v24, s34, v24
    v_mul_f32 v25, s34, v25
    v_and_b32 v22, 1, v123
    v_lshlrev_b32 v22, 3, v22            ; (h&3)*4
    v_bfe_u32 v23, v123, 1, 2
    v_lshl_add_u32 v22, v23, 4, v22      ; + ((h>>2)&3)*16
    v_bfe_u32 v23, v123, 4, 2
    v_lshl_add_u32 v22, v23, 6, v22      ; + ((h>>5)&3)*64
    v_bfe_u32 v23, v123, 3, 1
    v_lshl_add_u32 v22, v23, 8, v22      ; + half*256
    v_lshrrev_b32 v23, 6, v123
    v_lshl_add_u32 v22, v23, 9, v22      ; + s*512
    ds_write_b64 v22, v[24:25] offset:{WT}
    v_max_f32 v21, v120, v121
    """)
    row_max(a, 21)
    a(f"""
    s_mov_b32 exec_lo, 0x80008000
    s_mov_b32 exec_hi, 0x80008000
    ds_max_u32 v19, v21 offset:{MISC}
    s_mov_b64 exec, -1
K2_B0:
    s_barrier
    """)
    stamp(a, 2)
    wreads, xreads, mf = gemm_parts(a, vW, vX, vAcc, vb, vxa, lambda aa: f"v[{vB1+4*aa}:{vB1+4*aa+3}]", acc2=True)

    def epi(i, last=False):
        o = vAcc + 8 * (i & 1)
        for r in range(8):
            a(f"v_mul_f32 v{o+r}, s34, v{o+r}")
        for r in range(0, 8, 2):
            a(f"v_max3_f32 v19, |v{o+r}|, |v{o+r+1}|, v19")
        if last:
            a("s_mov_b32 exec_lo, 0x00030003")
            a("s_mov_b32 exec_hi, 0x00030003")
        a(f"ds_write_b128 v18, v[{o}:{o+3}] offset:{i * 16 * ROWS}")
        a(f"ds_write_b128 v18, v[{o+4}:{o+7}] offset:{i * 16 * ROWS + 256}")
        if last:
            a("s_mov_b64 exec, -1")

    wreads(); xreads(0); xreads(1)
    a("s_waitcnt lgkmcnt(4)")
    mf(0)
    xreads(2)
    a("s_waitcnt lgkmcnt(4)")
    mf(1)
    a("s_cmp_ge_u32 s3, 8")
    a("s_cbranch_scc1 K2_NOX3")
    xreads(3)
    a("K2_NOX3:")
    stamp(a, 3)
    a("s_waitcnt vmcnt(0)")
    stamp(a, 4)
    hist("K2A")
    a("s_waitcnt lgkmcnt(0)")
    a("s_barrier")
    stamp(a, 5)
    assert U == 4
    vP = 100
    vPair = 116
    vE = 124
    vI = 52
    vAddr, vDeg, vH = vI, vI + 1, vI + 2
    vL16, vK1, vG16, vWT, vQI, vTmp = 56, 57, 58, 59, 60, 61
    vQ, vW, vT, vX, vN, vD = 20, 28, 36, 44, 64, 72
    sQ, sS, sD0, sD3, sSafe, sSl, sSEL = 27, 28, 29, 30, 31, 32, 33

    def gemm_tail(L):
        epi(1)
        a("s_cmp_ge_u32 s3, 8")
        a(f"s_cbranch_scc1 {L}_E2")
        mf(3)
        epi(2)
        epi(3)
        a(f"s_branch {L}_GD")
        a(f"{L}_E2:")
        epi(2, last=True)
        a(f"{L}_GD:")
        row_max(a, 19)
        a(f"""
    v_mov_b32 v4, 0
    s_mov_b32 exec_lo, 0x80008000
    s_mov_b32 exec_hi, 0x80008000
    ds_max_u32 v4, v19 offset:{MISC + 4}
    s_mov_b64 exec, -1
        """)

    def main_consts():
        a(f"""
    v_lshlrev_b32 v{vL16}, 4, v2
    v_mov_b32 v{vG16}, {INFO}
    v_lshl_add_u32 v{vG16}, v3, 4, v{vG16}
    v_add_u32 v{vWT}, {WT}, v{vL16}
    s_mov_b32 s{sSEL}, 0x00003f80
    s_mov_b32 s{sQ}, s3
        """)
        for j in range(U):
            a(f"v_mov_b32 v{vPair+2*j+1}, v{vL16}")

    def item_loads():
        for j in range(U):
            a(f"ds_read_b32 v{vPair+2*j}, v{vAddr} offset:{8*j}")
        a(f"""
    ds_read_b32 v{vE}, v{vAddr} offset:4
    v_add3_u32 v{vH}, v{vH}, s25, v{vL16}
    v_readlane_b32 s{sD0}, v{vDeg}, 0
    v_readlane_b32 s{sD3}, v{vDeg}, 48
    v_readlane_b32 s35, v{vDeg}, 16
    v_readlane_b32 s71, v{vDeg}, 32
        """)

    def item_issue(extra):
        for j in range(U):
            a(f"s_waitcnt lgkmcnt({U - j + extra})")
            a(f"buffer_load_dwordx4 v[{vP+4*j}:{vP+4*j+3}], v[{vPair+2*j}:{vPair+2*j+1}], s[{sP}:{sP+3}], s{sSl} idxen offen")
        a(f"ds_read_b32 v{vPair}, v{vAddr} offset:{8*U}")

    fastrank("K2A", 9)
    fastscatter("K2A")
    epi(0)
    mf(2)
    srd(a, sP, 22, 23, N, stride=256)
    a(f"""
    v_mov_b32 v4, 0
    s_mov_b32 s{sNBATCH}, 1
    s_waitcnt lgkmcnt(0)
    """)
    stamp(a, 6)
    a(f"""
    s_barrier
    ds_read_b64 v[6:7], v4 offset:{MISC + 8}
    s_lshl_b32 s24, s3, 6
    v_lshl_add_u32 v{vI}, v3, 4, s24
    ds_read_b128 v[{vI}:{vI+3}], v{vI} offset:{INFO}
    s_mov_b32 s25, 0
    s_mov_b32 s{sSl}, 0
    s_waitcnt lgkmcnt(1)
    v_or_b32 v6, v6, v7
    s_nop 0
    v_readfirstlane_b32 s24, v6
    s_cmp_lg_u32 s24, 0
    s_cbranch_scc1 K2_SLOW0
    """)
    main_consts()
    a("s_waitcnt lgkmcnt(0)")
    item_loads()
    item_issue(0)
    gemm_tail("K2F")
    a("s_waitcnt lgkmcnt(0)")
    a("s_barrier                            ; Q' complete")
    stamp(a, 7)
    cstamp(a, 0)
    a(f"""
    ds_read_b64 v[{vT}:{vT+1}], v4 offset:{MISC}
    ds_read_b128 v[{vW}:{vW+3}], v{vWT}
    ds_read_b128 v[{vW+4}:{vW+7}], v{vWT} offset:256
    ds_read_b128 v[{vQ}:{vQ+3}], v{vH}
    ds_read_b128 v[{vQ+4}:{vQ+7}], v{vH} offset:256
    s_waitcnt lgkmcnt(4)
    v_add_f32 v{vK1}, v{vT}, v{vT+1}
    v_fma_f32 v{vK1}, v{vK1}, 4.0, 4.0
    s_branch K2_GO
K2_SLOW0:
    """)
    gemm_tail("K2S")
    scanrank("K2S", 8, 9, degt=False)
    a("s_waitcnt lgkmcnt(0)")
    a("s_barrier")
    posread("K2S")
    a("s_waitcnt lgkmcnt(0)")
    scatter("K2S")
    a("""
    s_branch K2_MAIN
K2_BATCH:
    s_waitcnt vmcnt(0)
    """)
    hist("K2B")
    a("s_waitcnt lgkmcnt(0)")
    a("s_barrier")
    scanrank("K2B", 8, 9)
    a("s_waitcnt lgkmcnt(0)")
    a("s_barrier")
    posread("K2B")
    a("s_waitcnt lgkmcnt(0)")
    scatter("K2B")
    a(f"""
K2_MAIN:
    v_mov_b32 v4, 0
    s_waitcnt lgkmcnt(0)
    s_barrier
    ds_read_b128 v[{vI}:{vI+3}], v4 offset:{MISC}
    """)
    main_consts()
    a(f"""
    s_waitcnt lgkmcnt(0)
    v_readfirstlane_b32 s24, v{vI+3}
    v_add_f32 v{vK1}, v{vI}, v{vI+1}
    v_fma_f32 v{vK1}, v{vK1}, 4.0, 4.0
    s_add_u32 s24, s24, 23
    s_mul_i32 s24, s24, 2731
    s_lshr_b32 s{sNBATCH}, s24, 16
    s_cmp_le_u32 s{sNBATCH}, 1
    s_cbranch_scc1 K2_ITEM
    v_mov_b32 v{vK1}, 0x7f800000         ; several batches: every item takes the plain path
K2_ITEM:
    s_cmp_ge_u32 s{sQ}, 50
    s_cbranch_scc1 K2_DONE
    s_cmp_ge_u32 s{sQ}, 25
    s_cselect_b32 s24, 25, 0
    s_cselect_b32 s25, 512, 0
    s_cselect_b32 s{sSl}, {PS}, 0
    s_sub_u32 s24, s{sQ}, s24
    s_lshl_b32 s24, s24, 6
    v_add_u32 v{vTmp}, s24, v{vG16}
    ds_read_b128 v[{vI}:{vI+3}], v{vTmp}
    v_add_u32 v{vTmp}, s25, v{vWT}
    ds_read_b128 v[{vW}:{vW+3}], v{vTmp}
    ds_read_b128 v[{vW+4}:{vW+7}], v{vTmp} offset:256
    s_mov_b32 s{sP+2}, {N}
    s_waitcnt lgkmcnt(2)
    """)
    item_loads()
    a(f"""
    ds_read_b128 v[{vQ}:{vQ+3}], v{vH}
    ds_read_b128 v[{vQ+4}:{vQ+7}], v{vH} offset:256
    """)
    item_issue(2)
    a(f"""
K2_GO:
    v_cvt_f32_u32 v{vTmp}, v{vDeg}
    v_cvt_f32_u32 v{vI+3}, v{vI+3}
    v_fma_f32 v{vTmp}, v{vTmp}, v{vK1}, v{vI+3}
    s_max_u32 s24, s{sD0}, s{sD3}
    s_min_u32 s{sD3}, s{sD0}, s{sD3}
    v_cmp_nge_f32 vcc, {BOUND:#x}, v{vTmp}
    s_max_u32 s{sD0}, s35, s71
    s_min_u32 s35, s35, s71
    s_max_u32 s{sD0}, s{sD0}, s24
    s_min_u32 s{sD3}, s{sD3}, s35
    s_min_u32 s{sD0}, s{sD0}, {LISTCAP}
    s_sub_u32 s24, s{sD0}, {U}
    s_min_i32 s{sSafe}, s24, s{sD3}
    s_cmp_gt_i32 s24, 0
    s_cselect_b32 s{sP+2}, {N}, 0
    s_mov_b32 s{sS}, 0
    {"s_setprio 0" if OPT["prio"] else ""}
    s_cbranch_vccnz K2_P_START
    s_cmp_lg_u32 s{sD3}, 0
    s_cbranch_scc1 K2_F_FIRST
    """)
    for r in range(8):
        a(f"v_mov_b32 v{vN+r}, 0")
        a(f"v_mov_b32 v{vD+r}, 1.0")
    a(f"""
    s_cmp_eq_u32 s{sD0}, 0
    s_cbranch_scc1 K2_F_FLUSH
    v_cmpx_lt_u32 vcc, 0, v{vDeg}
    """)

    def step(j, mode):
        P = vP + 4 * j
        T = vN if mode == "first" else vT
        eh = j & 1
        jn = (j + 1) % U
        osel = "op_sel_hi:[1,0,1]" if eh == 0 else "op_sel:[0,1,0] op_sel_hi:[1,1,1]"
        a("s_waitcnt lgkmcnt(0)")
        for r in range(0, 8, 2):
            a(f"v_pk_fma_f32 v[{T+r}:{T+r+1}], v[{vW+r}:{vW+r+1}], v[{vE}:{vE+1}], v[{vQ+r}:{vQ+r+1}] {osel}")
        a(f"ds_read_b32 v{vE + (eh ^ 1)}, v{vAddr} offset:{8*(j+1)+4}")
        a(f"s_waitcnt vmcnt({U-1})")
        if mode != "plain":
            for p in range(4):
                a(f"v_dot2_f32_bf16 v{T+p}, v{P+p}, s{sSEL}, v{T+p}")
            a(f"v_pk_add_f32 v[{T+4}:{T+5}], v[{P}:{P+1}], v[{T+4}:{T+5}]")
            a(f"v_pk_add_f32 v[{T+6}:{T+7}], v[{P+2}:{P+3}], v[{T+6}:{T+7}]")
        else:
            for p in range(4):
                a(f"v_lshlrev_b32 v{vX+p}, 16, v{P+p}")
            a(f"v_pk_add_f32 v[{T+4}:{T+5}], v[{P}:{P+1}], v[{T+4}:{T+5}]")
            a(f"v_pk_add_f32 v[{T+6}:{T+7}], v[{P+2}:{P+3}], v[{T+6}:{T+7}]")
            a(f"v_pk_add_f32 v[{T}:{T+1}], v[{vX}:{vX+1}], v[{T}:{T+1}]")
            a(f"v_pk_add_f32 v[{T+2}:{T+3}], v[{vX+2}:{vX+3}], v[{T+2}:{T+3}]")
        a(f"buffer_load_dwordx4 v[{P}:{P+3}], v[{vPair+2*j}:{vPair+2*j+1}], s[{sP}:{sP+3}], s{sSl} idxen offen")
        a(f"ds_read_b32 v{vPair+2*jn}, v{vAddr} offset:{8*(j+1+U)}")
        for r in (4, 5, 6, 7, 0, 1, 2, 3):
            a(f"v_exp_f32 v{vX+r}, v{T+r}")
        order = (4, 6, 0, 2)
        if mode == "first":
            for r in order:
                a(f"v_pk_add_f32 v[{vD+r}:{vD+r+1}], v[{vX+r}:{vX+r+1}], 1.0 op_sel_hi:[1,0]")
        elif mode == "fast":
            for r in order:
                a(f"v_pk_fma_f32 v[{vN+r}:{vN+r+1}], v[{vN+r}:{vN+r+1}], v[{vX+r}:{vX+r+1}], v[{vN+r}:{vN+r+1}]")
            for r in order:
                a(f"v_pk_fma_f32 v[{vN+r}:{vN+r+1}], v[{T+r}:{T+r+1}], v[{vD+r}:{vD+r+1}], v[{vN+r}:{vN+r+1}]")
            for r in order:
                a(f"v_pk_fma_f32 v[{vD+r}:{vD+r+1}], v[{vD+r}:{vD+r+1}], v[{vX+r}:{vX+r+1}], v[{vD+r}:{vD+r+1}]")
        else:
            for r in order:
                a(f"v_pk_add_f32 v[{vX+r}:{vX+r+1}], v[{vX+r}:{vX+r+1}], 1.0 op_sel_hi:[1,0]")
            for r in (4, 5, 6, 7, 0, 1, 2, 3):
                a(f"v_rcp_f32 v{vX+r}, v{vX+r}")
            for r in order:
                a(f"v_pk_fma_f32 v[{vN+r}:{vN+r+1}], v[{T+r}:{T+r+1}], v[{vX+r}:{vX+r+1}], v[{vN+r}:{vN+r+1}]")
        if j == U - 1:
            a(f"v_add_u32 v{vAddr}, {8*U}, v{vAddr}")
            if OPT["prio"]:
                a("s_setprio 1")
        a(f"s_add_u32 s{sS}, s{sS}, 1")
        a(f"s_cmp_ge_i32 s{sS}, s{sSafe}")

    def loop(pfx, mode):
        tails = []
        if mode == "fast":
            a(f"{pfx}_FIRST:")
            step(0, "first")
            a(f"s_cbranch_scc1 {pfx}_T0")
            seq = list(range(1, U)) + [0]
        else:
            seq = list(range(U))
        for j in seq:
            a(f"{pfx}_S{j}:")
            step(j, mode)
            if j == seq[-1]:
                a(f"s_cbranch_scc0 {pfx}_S{seq[0]}")
            else:
                a(f"s_cbranch_scc1 {pfx}_T{j}")
        for j in [seq[-1]] + seq[:-1]:
            a(f"""
{pfx}_T{j}:
    {"s_setprio 2" if OPT["prio"] else ""}
    s_cmp_ge_u32 s{sS}, s{sD0}
    s_cbranch_scc1 {pfx}_FLUSH
    v_cmpx_lt_u32 vcc, s{sS}, v{vDeg}
    s_add_u32 s24, s{sS}, {U}
    s_cmp_lt_u32 s24, s{sD0}
    s_cselect_b32 s{sP+2}, {N}, 0
    s_branch {pfx}_S{(j+1) % U}
            """)

    loop("K2_F", "fast")
    a(f"""
K2_F_FLUSH:
    s_mov_b64 exec, 1
    v_mov_b32 v{vQI}, 0
    v_mov_b32 v{vTmp}, 1
    ds_add_rtn_u32 v{vQI}, v{vQI}, v{vTmp} offset:{MISC + 16}
    s_mov_b64 exec, -1
    """)
    for r in range(8):
        a(f"v_rcp_f32 v{vX+r}, v{vD+r}")
    for r in range(0, 8, 2):
        a(f"v_pk_mul_f32 v[{vN+r}:{vN+r+1}], v[{vN+r}:{vN+r+1}], v[{vX+r}:{vX+r+1}]")
    a("K2_WRH:")
    for r in range(4):
        a(f"v_cvt_pk_bf16_f32 v{vX+r}, v{vN+2*r}, v{vN+2*r+1}")
    a(f"""
    ds_write_b128 v{vH}, v[{vX}:{vX+3}]
K2_NEXT:
    s_waitcnt lgkmcnt(0)
    v_readfirstlane_b32 s{sQ}, v{vQI}
    s_branch K2_ITEM
K2_P_START:
    """)
    for r in range(8):
        a(f"v_mov_b32 v{vN+r}, 0")
    a(f"""
    s_cmp_eq_u32 s{sD0}, 0
    s_cbranch_scc1 K2_P_FLUSH
    v_cmpx_lt_u32 vcc, 0, v{vDeg}
    """)
    loop("K2_P", "plain")
    a(f"""
K2_P_FLUSH:
    s_mov_b64 exec, 1
    v_mov_b32 v{vQI}, 0
    v_mov_b32 v{vTmp}, 1
    ds_add_rtn_u32 v{vQI}, v{vQI}, v{vTmp} offset:{MISC + 16}
    s_mov_b64 exec, -1
    s_cmp_le_u32 s{sNBATCH}, 1
    s_cbranch_scc1 K2_WRH
    """)
    a(f"""
    s_mul_i32 s24, s2, {SCR_STRIDE}
    s_add_u32 s24, s24, {SCR_OFF - QH}
    s_mov_b32 s{sSCR}, s22
    s_mov_b32 s{sSCR+1}, s23
    s_mov_b32 s{sSCR+2}, {WS_USED}
    s_mov_b32 s{sSCR+3}, 0x00020000
    v_add_u32 v{vH}, v{vH}, v{vL16}
    s_cmp_eq_u32 s{sBATCH}, 0
    s_cbranch_scc1 K2_P_ST
    buffer_load_dwordx4 v[{vX}:{vX+3}], v{vH}, s[{sSCR}:{sSCR+3}], s24 offen
    buffer_load_dwordx4 v[{vX+4}:{vX+7}], v{vH}, s[{sSCR}:{sSCR+3}], s24 offen offset:16
    s_waitcnt vmcnt(0)
    """)
    for r in range(0, 8, 2):
        a(f"v_pk_add_f32 v[{vN+r}:{vN+r+1}], v[{vN+r}:{vN+r+1}], v[{vX+r}:{vX+r+1}]")
    a(f"""
K2_P_ST:
    buffer_store_dwordx4 v[{vN}:{vN+3}], v{vH}, s[{sSCR}:{sSCR+3}], s24 offen
    buffer_store_dwordx4 v[{vN+4}:{vN+7}], v{vH}, s[{sSCR}:{sSCR+3}], s24 offen offset:16
    s_waitcnt vmcnt(0)
    s_branch K2_NEXT
    """)
    vF = 32
    a(f"""
K2_DONE:
    s_add_u32 s{sBATCH}, s{sBATCH}, 1
    s_cmp_ge_u32 s{sBATCH}, s{sNBATCH}
    s_cbranch_scc1 K2_FINAL
    s_waitcnt vmcnt(0)
    s_add_u32 s{sRECB}, s{sRECB}, 192
    v_subrev_u32 v127, 24, v127
    """)
    rec_loads()
    a(f"""
    s_barrier
    v_mov_b32 v4, 0
    v_lshlrev_b32 v5, 2, v0
    v_cmp_gt_u32 vcc, {(DEGT - CNT) // 4}, v0
    s_mov_b64 exec, vcc
    ds_write_b32 v5, v4 offset:{CNT}
    s_mov_b64 exec, 1
    v_mov_b32 v5, {MISC}
    v_mov_b32 v6, 16
    ds_write_b32 v5, v6 offset:16
    s_mov_b64 exec, -1
    s_waitcnt lgkmcnt(0)
    s_barrier
    s_branch K2_BATCH
K2_FINAL:
    """)
    stamp(a, 8)
    cstamp(a, 1)
    a(f"""
    s_waitcnt vmcnt(0)
    s_and_b32 s24, s3, 3                 ; cp
    s_lshl_b32 s25, s24, 14
    s_add_u32 s25, s25, {W2F_OFF}
    v_lshlrev_b32 v4, 4, v1
    """)
    for f in range(16):
        if f and f % 4 == 0:
            a("s_add_u32 s25, s25, 4096")
        a(f"buffer_load_dwordx4 v[{vF+4*f}:{vF+4*f+3}], v4, s[{sWS}:{sWS+3}], s25 offen offset:{1024*(f%4)}")
    srd(a, sB2, 18, 19, 256)
    srd(a, sOUT, 20, 21, N * 256)
    a(f"""
    s_lshl_b32 s24, s24, 6
    v_lshlrev_b32 v5, 4, v3              ; g*16
    buffer_load_dwordx4 v[8:11], v5, s[{sB2}:{sB2+3}], s24 offen
    s_lshr_b32 s27, s3, 2
    s_lshl_b32 s27, s27, 4               ; first row tile * 16
    v_add_u32 v6, s27, v2
    v_mul_u32_u24 v7, {ROWS}, v6
    v_add_u32 v7, v7, v5
    v_add_u32 v7, {QH}, v7
    v_lshlrev_b32 v20, 2, v6
    v_add_u32 v21, s{sROW0}, v6
    v_lshl_add_u32 v21, v21, 8, v5
    s_mov_b32 s34, {NLN2:#x}
    s_barrier
    s_cmp_le_u32 s{sNBATCH}, 1
    s_cbranch_scc1 K2_GEMM2
    s_mul_i32 s28, s2, {SCR_STRIDE}
    s_add_u32 s28, s28, {SCR_OFF}
    s_mov_b32 s{sSCR}, s22
    s_mov_b32 s{sSCR+1}, s23
    s_mov_b32 s{sSCR+2}, {WS_USED}
    s_mov_b32 s{sSCR+3}, 0x00020000
    v_and_b32 v22, 1, v3
    v_lshlrev_b32 v22, 9, v22
    v_lshl_add_u32 v22, v2, 4, v22       ; s*512 + l*16
    v_lshl_add_u32 v23, v2, 4, v22       ; s*512 + l*32
    s_mov_b32 s29, s3
K2_CONV:
    s_mul_i32 s30, s29, {ROWS}
    s_add_u32 s31, s30, s28
    buffer_load_dwordx4 v[100:103], v23, s[{sSCR}:{sSCR+3}], s31 offen
    buffer_load_dwordx4 v[104:107], v23, s[{sSCR}:{sSCR+3}], s31 offen offset:16
    s_add_u32 s30, s30, {QH}
    v_add_u32 v24, s30, v22
    s_waitcnt vmcnt(0)
    v_cvt_pk_bf16_f32 v100, v100, v101
    v_cvt_pk_bf16_f32 v101, v102, v103
    v_cvt_pk_bf16_f32 v102, v104, v105
    v_cvt_pk_bf16_f32 v103, v106, v107
    ds_write_b128 v24, v[100:103]
    s_add_u32 s29, s29, 16
    s_cmp_lt_u32 s29, {NB}
    s_cbranch_scc1 K2_CONV
    s_waitcnt lgkmcnt(0)
    s_barrier
K2_GEMM2:
    """)
    stamp(a, 9)
    vHB = 96
    vO = 24
    for rt in range(2):
        off = rt * 64 * ROWS
        if rt == 1:
            a("s_cmp_ge_u32 s3, 12")
            a("s_cbranch_scc1 K2_FIN")
            a(f"v_add_u32 v7, {off}, v7")
            a(f"v_add_u32 v21, {64 * 256}, v21")
        a(f"ds_read_b32 v22, v20 offset:{DEGT + rt * 256}")
        for ks in range(8):
            a(f"ds_read_b128 v[{vHB+4*ks}:{vHB+4*ks+3}], v7 offset:{(ks >> 2) * 512 + (ks & 3) * 64}")
        if rt == 0:
            a("s_waitcnt vmcnt(0)")
            for p in range(4):
                a(f"v_lshlrev_b32 v{12+2*p}, 16, v{8+p}")
                a(f"v_and_b32 v{13+2*p}, 0xffff0000, v{8+p}")
        for ks in range(8):
            a(f"s_waitcnt lgkmcnt({7-ks})")
            for aa in range(2):
                f = vF + 4 * (aa * 8 + ks)
                c = "0" if ks == 0 else f"v[{vO+4*aa}:{vO+4*aa+3}]"
                a(f"v_mfma_f32_16x16x32_bf16 v[{vO+4*aa}:{vO+4*aa+3}], v[{f}:{f+3}], v[{vHB+4*ks}:{vHB+4*ks+3}], {c}")
        a("v_cvt_f32_u32 v22, v22")
        a(f"v_cmp_gt_u32 vcc, {NB - 64 * rt}, v6")
        a("s_nop 5")
        for r in range(8):
            a(f"v_mul_f32 v{vO+r}, s34, v{vO+r}")
        for r in range(8):
            a(f"v_fmac_f32 v{vO+r}, v22, v{12+r}")
        for r in range(4):
            a(f"v_cvt_pk_bf16_f32 v{vHB+r}, v{vO+2*r}, v{vO+2*r+1}")
        a("s_mov_b64 exec, vcc")
        a(f"buffer_store_dwordx4 v[{vHB}:{vHB+3}], v21, s[{sOUT}:{sOUT+3}], s24 offen")
        a("s_mov_b64 exec, -1")
        if rt == 0:
            a("s_nop 1")
    a("K2_FIN:")
    stamp(a, 10)
    if OPT["stamps"]:
        a("s_waitcnt vmcnt(0)")
    stamp(a, 11)
    stamp_flush(a, 1)
    a("""
K2_END:
    s_endpgm
    """)
    return a.text(), 128, (102 if OPT["stamps"] else 96)


HEADER = """; Kernarg layout for this problem (88 bytes, ptrs only, base s[0:1]):
"""


def kd(name, vgpr, sgpr):
    return f""".amdhsa_kernel {name}
  .amdhsa_next_free_vgpr {vgpr}
  .amdhsa_next_free_sgpr {sgpr}
  .amdhsa_accum_offset {(vgpr + 3) // 4 * 4}
  .amdhsa_group_segment_fixed_size 0
  .amdhsa_kernarg_size 88
  .amdhsa_user_sgpr_count 2
  .amdhsa_user_sgpr_kernarg_segment_ptr 1
  .amdhsa_system_sgpr_workgroup_id_x 1
.end_amdhsa_kernel
"""


def build():
    k1, v1, s1 = gen_k1()
    k2, v2, s2 = gen_k2()
    n1 = "mpnn_prep_kernel"
    n2 = "gather_scatter__edge_featured_mpnn_mpnn__graph_kernel"
    out = HEADER
    out += f"; @launch kernel={n1} grid=(256,1,1) block=(1024,1,1) lds={K1_LDS}\n"
    out += f"; @launch kernel={n2} grid=(256,1,1) block=(1024,1,1) lds={K2_LDS}\n"
    out += '.amdgcn_target "amdgcn-amd-amdhsa--gfx950"\n.text\n'
    for n, k in ((n1, k1), (n2, k2)):
        out += f".globl {n}\n.p2align 8\n.type {n},@function\n{n}:\n" + k
    out += '.section .rodata,"a"\n.p2align 6\n' + kd(n1, v1, s1) + ".p2align 6\n" + kd(n2, v2, s2)
    return out


if __name__ == "__main__":
    path = sys.argv[1] if len(sys.argv) > 1 else "gather_scatter__edge_featured_mpnn_mpnn__graph.s"
    for kv in sys.argv[2:]:
        k, v = kv.split("=")
        OPT[k] = int(v) if v.lstrip('-').isdigit() else v.replace('+', ' ')
    open(path, "w").write(build())
    print("wrote", path, "K1_LDS", K1_LDS, "K2_LDS", K2_LDS)
```

```python
import sys

N = 25000; E = 400000
NB = 98
CH = 1564
CHS = 12544
PS = N * 256
P_OFF = 0
REC_OFF = 2 * PS
TAB_OFF = REC_OFF + 256 * CHS
W2F_OFF = TAB_OFF + 256 * 1024
PMAX_OFF = W2F_OFF + 65536
SCR_OFF = 0x1000000
SCR_STRIDE = 104448
WS_USED = SCR_OFF + 256 * SCR_STRIDE
NLOG2E = 0xbfb8aa3b
NLN2 = 0xbf317218
BOUND = 0x43e00000

STAMP_OFF = 0x3000000
OPT = dict(U=4, stamps=False, pst="", rst="", prio=1, warm=1, reclate=0, tlb=0, diag=0)


class A:
    def __init__(self):
        self.l = []

    def __call__(self, s):
        for x in s.strip("\n").split("\n"):
            x = x.rstrip()
            if not x.strip():
                continue
            if x.strip().endswith(":") and not x.strip().startswith(";"):
                self.l.append(x.strip())
            else:
                self.l.append("    " + x.strip())

    def text(self):
        return "\n".join(self.l) + "\n"


def stamp(a, i):
    if OPT["stamps"]:
        a(f"""
        s_memrealtime s[98:99]
        s_waitcnt lgkmcnt(0)
        s_mov_b32 s{84+i}, s98
        """)


DIAG_OFF = 0x2f00000


def diag(a, slot, lab, cyc=False):
    if OPT["diag"]:
        a(f"""
        s_or_b32 s96, s2, s3
        s_cmp_lg_u32 s96, 0
        s_cbranch_scc1 {lab}
        {"s_memtime" if cyc else "s_memrealtime"} s[98:99]
        s_add_u32 s96, s22, {DIAG_OFF + 4 * slot}
        s_addc_u32 s97, s23, 0
        s_waitcnt lgkmcnt(0)
        v_mov_b32 v126, 0
        v_mov_b32 v127, s98
        global_store_dword v126, v127, s[96:97]
        s_nop 0
{lab}:
        """)


def gen_diag():
    a = A()
    m = OPT["diag"]
    a(f"""
    s_cmp_lg_u32 s2, 0
    s_cbranch_scc1 DG_END
    s_load_dwordx2 s[22:23], s[0:1], 80
    s_memrealtime s[10:11]
    s_waitcnt lgkmcnt(0)
    s_add_u32 s22, s22, {DIAG_OFF}
    s_addc_u32 s23, s23, 0
    s_load_dwordx8 s[24:31], s[22:23], 0
    s_waitcnt lgkmcnt(0)
    """)
    if m == 1: a("s_mov_b32 s12, 0")
    if m == 2: a("s_sub_u32 s12, s10, s24")
    if m == 3: a("s_sub_u32 s12, s25, s24")
    if m == 4: a("s_sub_u32 s12, s26, s25")
    if m == 5: a("s_sub_u32 s12, s27, s26")
    if m == 6: a("s_sub_u32 s12, s29, s28\ns_mul_i32 s12, s12, 6554\ns_lshr_b32 s12, s12, 16")
    a("""
    s_min_u32 s12, s12, 20000
DG_SPIN:
    s_memrealtime s[14:15]
    s_waitcnt lgkmcnt(0)
    s_sub_u32 s14, s14, s10
    s_cmp_lt_u32 s14, s12
    s_cbranch_scc1 DG_SPIN
DG_END:
    s_endpgm
    """)
    return a.text(), 8, 40


def cstamp(a, i):
    if OPT["stamps"]:
        a(f"""
        s_memtime s[98:99]
        s_waitcnt lgkmcnt(0)
        s_mov_b32 s{96+i}, s98
        """)


def stamp_init(a):
    if OPT["stamps"]:
        for i in range(14):
            a(f"s_mov_b32 s{84+i}, 0")


def stamp_flush(a, kern):
    if OPT["stamps"]:
        a(f"""
        s_mov_b64 exec, -1
        s_mov_b32 s4, s22
        s_mov_b32 s5, s23
        s_mov_b32 s6, 0x8000000
        s_mov_b32 s7, 0x00020000
        s_lshl_b32 s8, s2, 4
        s_add_u32 s8, s8, s3
        s_lshl_b32 s8, s8, 6
        s_add_u32 s8, s8, {STAMP_OFF + kern * 256 * 16 * 64}
        v_mov_b32 v0, 0
        s_mov_b64 exec, 1
        """)
        for i in range(14):
            a(f"v_mov_b32 v1, s{84+i}")
            a(f"buffer_store_dword v1, v0, s[4:7], s8 offen offset:{4*i}")


def srd(a, d, lo, hi, size, stride=0):
    a(f"s_mov_b32 s{d}, s{lo}")
    if stride:
        a(f"s_and_b32 s{d+1}, s{hi}, 0xffff")
        a(f"s_or_b32 s{d+1}, s{d+1}, {stride << 16:#x}")
    else:
        a(f"s_mov_b32 s{d+1}, s{hi}")
    a(f"s_mov_b32 s{d+2}, {size}")
    a(f"s_mov_b32 s{d+3}, 0x00020000")


def wave_scan(a, regs):
    steps = ["row_shr:1 row_mask:0xf", "row_shr:2 row_mask:0xf", "row_shr:4 row_mask:0xf", "row_shr:8 row_mask:0xf",
             "row_bcast:15 row_mask:0xa", "row_bcast:31 row_mask:0xc"]
    for st in steps:
        a("s_nop 1" if len(regs) == 1 else "s_nop 0")
        for r in regs:
            a(f"v_add_u32_dpp v{r}, v{r}, v{r} {st} bank_mask:0xf")


def row_max(a, r):
    for sh in (1, 2, 4, 8):
        a("s_nop 1")
        a(f"v_max_f32_dpp v{r}, v{r}, v{r} row_shr:{sh} row_mask:0xf bank_mask:0xf")


def common_ids(a):
    a("""
    v_lshrrev_b32 v1, 6, v0
    v_and_b32 v2, 15, v0               ; l16
    v_readfirstlane_b32 s3, v1         ; wave
    v_and_b32 v1, 63, v0               ; lane
    v_lshrrev_b32 v3, 4, v1            ; g
    """)


def dma_w_setup(a, vdst, vt, s0, s1):
    a(f"""
    s_and_b32 s{s0}, s3, 1
    s_lshl_b32 s{s0}, s{s0}, 1
    s_and_b32 s{s1}, s3, 2
    s_lshl_b32 s{s1}, s{s1}, 2
    s_or_b32 s{s0}, s{s0}, s{s1}
    s_and_b32 s{s1}, s3, 4
    s_or_b32 s{s0}, s{s0}, s{s1}
    s_and_b32 s{s1}, s3, 8
    s_lshl_b32 s{s1}, s{s1}, 3
    s_or_b32 s{s0}, s{s0}, s{s1}         ; k0
    s_lshl_b32 s{s0}, s{s0}, 9           ; k0*512
    s_and_b32 s{s1}, s3, 3
    s_lshl_b32 s{s1}, s{s1}, 6           ; (w&3)<<1 <<5
    v_lshrrev_b32 v{vt}, 5, v1           ; L>>5
    v_mul_u32_u24 v{vt}, 544, v{vt}      ; (L>>5)*512 + (L>>5)<<5
    v_and_b32 v{vdst}, 31, v1
    v_lshlrev_b32 v{vdst}, 4, v{vdst}    ; j*16
    v_xor_b32 v{vdst}, v{vt}, v{vdst}
    v_xor_b32 v{vdst}, s{s1}, v{vdst}
    """)


def dma_w_issue(a, vsrc, srdw, s0, s1, goff, wb):
    for i in range(4):
        a(f"s_add_u32 m0, s{s0}, {wb + i * 8192}")
        a(f"s_add_u32 s{s1}, s{s0}, {goff + i * 8192}")
        a(f"buffer_load_dwordx4 v{vsrc}, s[{srdw}:{srdw+3}], s{s1} offen lds")


def dma_x(a, srdx, srow0, vo, vt, st, xb):
    a(f"""
    s_and_b32 s{st}, s3, 1
    s_lshl_b32 s{st}, s{st}, 3
    v_add_u32 v{vt}, s{st}, v3           ; 8*(w&1)+g
    v_xor_b32 v{vt}, v2, v{vt}
    s_lshl_b32 s{st}, s3, 3
    s_add_u32 s{st}, s{st}, s{srow0}
    v_add_u32 v{vo}, s{st}, v3           ; row
    v_lshlrev_b32 v{vo}, 8, v{vo}
    v_lshl_add_u32 v{vo}, v{vt}, 4, v{vo}
    s_lshl_b32 s{st}, s3, 11
    s_add_u32 m0, s{st}, {xb}
    v_xor_b32 v{vt}, 64, v{vo}
    buffer_load_dwordx4 v{vo}, s[{srdx}:{srdx+3}], 0 offen lds
    buffer_load_dwordx4 v{vt}, s[{srdx}:{srdx+3}], 0 offen offset:1024 lds
    """)


def gemm_addr(a, vb, vxa, vt, st, wb, xb):
    a(f"""
    v_lshrrev_b32 v{vt}, 2, v2           ; r
    v_mul_u32_u24 v{vb}, 544, v{vt}      ; r*512 + r*32
    v_lshl_add_u32 v{vb}, v3, 12, v{vb}  ; + g*8*512
    v_and_b32 v{vt}, 1, v3
    v_lshl_add_u32 v{vb}, v{vt}, 7, v{vb} ; + (g&1)<<2<<5
    v_and_b32 v{vt}, 3, v2
    v_lshl_add_u32 v{vb}, v{vt}, 3, v{vb} ; + c*8
    s_and_b32 s{st}, s3, 7
    s_lshl_b32 s{st}, s{st}, 6
    v_xor_b32 v{vb}, s{st}, v{vb}
    v_add_u32 v{vb}, {wb}, v{vb}
    v_xor_b32 v{vb+1}, 32, v{vb}
    v_xor_b32 v{vt}, v2, v3
    v_lshlrev_b32 v{vt}, 4, v{vt}
    v_lshl_add_u32 v{vxa}, v2, 8, v{vt}
    s_lshr_b32 s{st}, s3, 3
    s_lshl_b32 s{st}, s{st}, 14
    s_add_u32 s{st}, s{st}, {xb}
    v_add_u32 v{vxa}, s{st}, v{vxa}
    v_xor_b32 v{vxa+1}, 64, v{vxa}
    v_xor_b32 v{vxa+2}, 0x80, v{vxa}
    v_xor_b32 v{vxa+3}, 0xc0, v{vxa}
    """)


def gemm_parts(a, vW, vX, vAcc, vb, vxa, cinit, acc2=False):
    def wreads():
        for ks in range(4):
            for aa in range(2):
                for h in range(2):
                    r = vW + 16 * aa + 4 * ks + 2 * h
                    a(f"ds_read_b64_tr_b16 v[{r}:{r+1}], v{vb+aa} offset:{ks * 16384 + h * 2048}")

    def xreads(i):
        for ks in range(4):
            r = vX + 16 * (i & 1) + 4 * ks
            a(f"ds_read_b128 v[{r}:{r+3}], v{vxa+ks} offset:{4096 * i}")

    def mf(i):
        for ks in range(4):
            for aa in range(2):
                acc = vAcc + 8 * ((i & 1) if acc2 else i) + 4 * aa
                c = cinit(aa) if ks == 0 else f"v[{acc}:{acc+3}]"
                w = vW + 16 * aa + 4 * ks
                x = vX + 16 * (i & 1) + 4 * ks
                a(f"v_mfma_f32_16x16x32_bf16 v[{acc}:{acc+3}], v[{w}:{w+3}], v[{x}:{x+3}], {c}")
    return wreads, xreads, mf


K1_HIST = 0
K1_START = K1_HIST + 1024
K1_PM = K1_START + 1024
K1_STAGE = K1_PM + 256
K1_XB = 15360
K1_WB = K1_XB + 32768
assert K1_STAGE + CHS <= K1_XB
K1_LDS = K1_WB + 65536
QCAP = 585


def gen_k1():
    a = A()
    vW, vX, vAcc = 20, 52, 84
    vb, vxa = 4, 16
    sX, sW1, sDST, sSRC, sE, sW2, sWS = 36, 40, 44, 48, 52, 56, 60
    pst, rst = OPT["pst"], OPT["rst"]
    a("""
    s_cmp_ge_u32 s2, 256
    s_cbranch_scc1 K1_END
    s_load_dwordx16 s[4:19], s[0:1], 0
    s_load_dwordx2 s[22:23], s[0:1], 80
    """)
    stamp_init(a)
    stamp(a, 0)
    common_ids(a)
    a(f"""
    s_mul_i32 s29, s2, {CH}
    s_sub_u32 s30, {E}, s29
    s_min_u32 s30, s30, {CH}
    s_lshr_b32 s30, s30, 1
    v_lshl_add_u32 v6, v0, 1, s29        ; first edge index
    v_lshlrev_b32 v7, 1, v6
    v_lshlrev_b32 v6, 2, v6
    v_cmp_gt_u32 s[32:33], s30, v0
    v_mov_b32 v11, 0
    v_lshlrev_b32 v12, 2, v0
    v_cmp_gt_u32 vcc, 256, v0
    s_mov_b64 exec, vcc
    ds_write_b32 v12, v11 offset:{K1_HIST}
    ds_write_b32 v11, v11 offset:{K1_PM}
    s_mov_b64 exec, -1
    v_lshlrev_b32 v13, 3, v1
    s_mov_b32 s68, {256 * 512}
    s_mul_i32 s26, s2, {NB}              ; first row of bucket
    s_waitcnt lgkmcnt(0)
    """)
    diag(a, 0, "K1_DG0")
    srd(a, sDST, 10, 11, E * 4)
    srd(a, sE, 6, 7, E * 2)
    srd(a, sSRC, 8, 9, E * 4)
    srd(a, sW1, 12, 13, 257 * 512)
    a(f"""
    buffer_load_dwordx2 v[14:15], v13, s[{sW1}:{sW1+3}], s68 offen
    s_mov_b64 exec, s[32:33]
    buffer_load_dwordx2 v[118:119], v6, s[{sDST}:{sDST+3}], 0 offen
    buffer_load_dword v10, v7, s[{sE}:{sE+3}], 0 offen
    buffer_load_dwordx2 v[8:9], v6, s[{sSRC}:{sSRC+3}], 0 offen
    s_mov_b64 exec, -1
    """)
    dma_w_setup(a, 4, 5, 24, 25)
    srd(a, sX, 4, 5, N * 256)
    srd(a, sWS, 22, 23, SCR_OFF)
    a("s_barrier")
    a("s_cmp_ge_u32 s3, 14")
    a("s_cbranch_scc1 K1_NOX")
    dma_x(a, sX, 26, 5, 6, 27, K1_XB)
    dma_w_issue(a, 4, sW1, 24, 25, 0, K1_WB)
    a("s_waitcnt vmcnt(9)")
    a("s_branch K1_WM")
    a("K1_NOX:")
    dma_w_issue(a, 4, sW1, 24, 25, 0, K1_WB)
    a("s_waitcnt vmcnt(7)")
    a(f"""
K1_WM:
    v_and_b32 v14, 0x7fff7fff, v14
    v_and_b32 v15, 0x7fff7fff, v15
    v_pk_max_u16 v14, v14, v15
    v_lshlrev_b32 v15, 16, v14
    v_and_b32 v14, 0xffff0000, v14
    v_max_u32 v14, v14, v15
    s_mov_b32 s64, 42800
    """)
    for st in ("row_shr:1 row_mask:0xf", "row_shr:2 row_mask:0xf", "row_shr:4 row_mask:0xf", "row_shr:8 row_mask:0xf",
               "row_bcast:15 row_mask:0xa", "row_bcast:31 row_mask:0xc"):
        a("s_nop 1")
        a(f"v_max_u32_dpp v14, v14, v14 {st} bank_mask:0xf")
    a(f"""
    v_mul_f32 v14, 0x40b8aa3b, v14       ; 4*log2(e)
    s_cmp_ge_u32 s3, 13
    s_cbranch_scc1 K1_NOH
    v_readlane_b32 s67, v14, 63
    s_waitcnt vmcnt(6)
    """)
    stamp(a, 1)
    a(f"""
    s_mov_b64 exec, s[32:33]
    v_mul_u32_u24 v116, s64, v118
    v_mul_u32_u24 v117, s64, v119
    v_lshrrev_b32 v116, 22, v116         ; bucket
    v_lshrrev_b32 v117, 22, v117
    v_mul_u32_u24 v125, {NB}, v116
    v_mul_u32_u24 v126, {NB}, v117
    v_lshlrev_b32 v116, 2, v116
    v_lshlrev_b32 v117, 2, v117
    v_sub_u32 v125, v118, v125           ; dloc
    v_sub_u32 v126, v119, v126
    v_mov_b32 v127, 1
    ds_add_rtn_u32 v118, v116, v127 offset:{K1_HIST}
    ds_add_rtn_u32 v119, v117, v127 offset:{K1_HIST}
    v_lshlrev_b32 v121, 16, v10
    v_and_b32 v123, 0xffff0000, v10
    v_fma_f32 v120, |v121|, s67, 1.0
    v_fma_f32 v122, |v123|, s67, 1.0
    v_lshl_or_b32 v121, v125, 2, v121    ; e<<16 | dloc*4
    v_lshl_or_b32 v123, v126, 2, v123
    v_cvt_u32_f32 v120, v120
    v_cvt_u32_f32 v122, v122
    v_min_u32 v120, {QCAP}, v120
    v_min_u32 v122, {QCAP}, v122
    v_lshl_or_b32 v120, v120, 16, v8     ; src | q<<16
    v_lshl_or_b32 v122, v122, 16, v9
    s_mov_b64 exec, -1
K1_NOH:
    """)
    if OPT["tlb"]:
        sh = OPT["tlb"]
        a(f"""
    s_cmp_lg_u32 s3, 13
    s_cbranch_scc1 K1_NOTLB
    s_load_dwordx2 s[20:21], s[0:1], 64
    v_lshlrev_b32 v20, {sh}, v1
    buffer_load_dword v21, v20, s[{sWS}:{sWS+3}], 0 offen
    v_mov_b32 v22, 0
    global_load_dword v23, v22, s[14:15]
    global_load_dword v24, v22, s[16:17]
    global_load_dword v25, v22, s[18:19]
    s_waitcnt lgkmcnt(0)
        """)
        srd(a, 56, 20, 21, N * 256)
        a(f"""
    buffer_load_dword v26, v20, s[56:59], 0 offen
K1_NOTLB:
        """)
    a("""
    s_waitcnt lgkmcnt(0)
    s_barrier
    """)
    stamp(a, 2)
    a(f"""
    s_cmp_lg_u32 s3, 15
    s_cbranch_scc1 K1_NOSCAN
    v_lshlrev_b32 v6, 4, v1
    ds_read_b128 v[52:55], v6 offset:{K1_HIST}
    s_and_b32 s24, s2, 7
    s_lshl_b32 s24, s24, 5
    s_lshr_b32 s68, s2, 3
    s_add_u32 s24, s24, s68
    s_lshl_b32 s24, s24, 2
    s_add_u32 s24, s24, {TAB_OFF}
    v_lshlrev_b32 v7, 12, v1
    s_waitcnt lgkmcnt(0)
    v_add_u32 v57, v52, v53              ; p2
    v_add_u32 v58, v57, v54              ; p3
    v_add_u32 v59, v58, v55              ; tot
    v_mov_b32 v60, v59
    """)
    wave_scan(a, [60])
    a(f"""
    v_sub_u32 v60, v60, v59              ; base
    v_add_u32 v61, v60, v52
    v_add_u32 v62, v60, v57
    v_add_u32 v63, v60, v58
    v_lshlrev_b32 v64, 3, v60
    v_lshlrev_b32 v65, 3, v61
    v_lshlrev_b32 v66, 3, v62
    v_lshlrev_b32 v67, 3, v63
    ds_write_b128 v6, v[64:67] offset:{K1_START}
    v_lshl_or_b32 v60, v52, 16, v60
    v_lshl_or_b32 v61, v53, 16, v61
    v_lshl_or_b32 v62, v54, 16, v62
    v_lshl_or_b32 v63, v55, 16, v63
    s_waitcnt lgkmcnt(0)
    s_barrier
    s_waitcnt vmcnt(0)
    buffer_store_dword v60, v7, s[{sWS}:{sWS+3}], s24 offen {rst}
    buffer_store_dword v61, v7, s[{sWS}:{sWS+3}], s24 offen offset:1024 {rst}
    buffer_store_dword v62, v7, s[{sWS}:{sWS+3}], s24 offen offset:2048 {rst}
    buffer_store_dword v63, v7, s[{sWS}:{sWS+3}], s24 offen offset:3072 {rst}
    s_branch K1_ADDR
K1_NOSCAN:
    s_cmp_lg_u32 s3, 14
    s_cbranch_scc1 K1_SCAT
    """)
    srd(a, sW2, 16, 17, 65536)
    a(f"""
    s_lshr_b32 s68, s2, 2                ; F = G>>6
    s_and_b32 s69, s2, 3                 ; g' = (G&63)>>4
    s_and_b32 s31, s68, 7
    s_lshl_b32 s31, s31, 5
    s_lshl_b32 s69, s69, 2
    s_add_u32 s31, s31, s69
    s_lshl_b32 s31, s31, 8               ; *256 bytes
    s_lshr_b32 s69, s68, 4               ; cp
    s_lshl_b32 s69, s69, 5
    s_bfe_u32 s68, s68, 0x10003          ; a
    s_lshl_b32 s68, s68, 2
    s_add_u32 s68, s68, s69              ; 32cp + 4a
    v_lshrrev_b32 v13, 2, v2
    v_lshlrev_b32 v13, 3, v13            ; 8*(m>>2)
    v_and_b32 v14, 3, v2
    v_add3_u32 v13, v13, v14, s68        ; col
    v_lshlrev_b32 v13, 1, v13
    s_mov_b64 exec, 0xffff
    """)
    for t in range(8):
        if t == 4:
            a("s_add_u32 s31, s31, 4096")
        r = vW + (t >> 1) + 4 * (t & 1)
        a(f"buffer_load_ushort v{r}, v13, s[{sW2}:{sW2+3}], s31 offen offset:{256 * (t & 3)}")
    a(f"""
    s_barrier
    s_lshl_b32 s68, s2, 8
    s_add_u32 s68, s68, {W2F_OFF}
    v_lshlrev_b32 v13, 4, v2
    s_waitcnt vmcnt(0)
    v_lshl_or_b32 v{vAcc}, v{vW+4}, 16, v{vW}
    v_lshl_or_b32 v{vAcc+1}, v{vW+5}, 16, v{vW+1}
    v_lshl_or_b32 v{vAcc+2}, v{vW+6}, 16, v{vW+2}
    v_lshl_or_b32 v{vAcc+3}, v{vW+7}, 16, v{vW+3}
    buffer_store_dwordx4 v[{vAcc}:{vAcc+3}], v13, s[{sWS}:{sWS+3}], s68 offen {rst}
    s_mov_b64 exec, -1
    s_branch K1_ADDR
K1_SCAT:
    s_barrier
    s_mov_b64 exec, s[32:33]
    ds_read_b32 v116, v116 offset:{K1_START}
    ds_read_b32 v117, v117 offset:{K1_START}
    s_waitcnt lgkmcnt(0)
    v_lshl_add_u32 v116, v118, 3, v116
    v_lshl_add_u32 v117, v119, 3, v117
    ds_write_b64 v116, v[120:121] offset:{K1_STAGE}
    ds_write_b64 v117, v[122:123] offset:{K1_STAGE}
    s_mov_b64 exec, -1
K1_ADDR:
    """)
    gemm_addr(a, vb, vxa, 11, 24, K1_WB, K1_XB)
    a(f"""
    s_mov_b32 s34, {NLOG2E:#x}
    s_mov_b32 s65, 0x07060100
    s_mov_b32 s66, 0x07060302
    s_lshr_b32 s27, s3, 3
    s_lshl_b32 s27, s27, 6               ; 64*rh
    s_sub_u32 s28, {N}, s26
    s_min_u32 s28, s28, {NB}
    s_sub_u32 s28, s28, s27              ; valid rows from this wave's first row
    s_add_u32 s27, s27, s26
    v_add_u32 v11, s27, v2
    v_lshlrev_b32 v11, 8, v11
    s_and_b32 s24, s3, 3
    s_lshl_b32 s24, s24, 2
    v_add_u32 v12, s24, v3
    v_lshl_add_u32 v11, v12, 4, v11
    s_bfe_u32 s25, s3, 0x10002
    s_mul_i32 s25, s25, {PS}
    v_mov_b32 v12, 0
    v_lshlrev_b32 v6, 4, v0
    v_cmp_gt_u32 vcc, {CHS // 16}, v0
    s_mov_b64 s[30:31], vcc
    s_mul_i32 s24, s2, {CHS}
    s_add_u32 s24, s24, {REC_OFF}
    s_cmp_ge_u32 s3, 14
    s_cbranch_scc1 K1_B0
    s_waitcnt vmcnt(0)
K1_B0:
    s_waitcnt lgkmcnt(0)
    """)
    stamp(a, 3)
    a("s_barrier")
    stamp(a, 4)
    cstamp(a, 0)
    wreads, xreads, mf = gemm_parts(a, vW, vX, vAcc, vb, vxa, lambda aa: "0")

    def epi(i):
        lo = vAcc + 8 * i; hi = lo + 4
        for r in range(8):
            a(f"v_fma_f32 v{lo+r}, v{lo+r}, s34, 0")
        a(f"v_cvt_pk_bf16_f32 v14, v{lo}, v{lo+1}")
        a(f"v_cvt_pk_bf16_f32 v15, v{lo+2}, v{lo+3}")
        for r in range(0, 8, 2):
            a(f"v_max3_f32 v12, |v{lo+r}|, |v{lo+r+1}|, v12")
        for r in range(4):
            a(f"v_add_u32 v{hi+r}, 0x8000, v{hi+r}")
        for r in range(4):
            a(f"v_sub_u32_sdwa v{hi+r}, v{hi+r}, v{14+(r>>1)} clamp dst_sel:DWORD dst_unused:UNUSED_PAD src0_sel:DWORD src1_sel:WORD_{r&1}")
        for r in range(4):
            a(f"v_perm_b32 v{lo+r}, v{hi+r}, v{14+(r>>1)}, s{65+(r&1)}")
        a(f"v_cmp_gt_i32 vcc, s28, v2")
        a(f"s_mov_b64 exec, vcc")
        a(f"buffer_store_dwordx4 v[{lo}:{lo+3}], v11, s[{sWS}:{sWS+3}], s25 offen {pst}")
        a(f"s_mov_b64 exec, -1")
        a("s_sub_u32 s28, s28, 16")
        a("s_add_u32 s25, s25, 4096")

    a(f"ds_read_b128 v[116:119], v6 offset:{K1_STAGE}")
    wreads(); xreads(0); xreads(1)
    a("s_waitcnt lgkmcnt(4)")
    a(f"""
    s_mov_b64 exec, s[30:31]
    buffer_store_dwordx4 v[116:119], v6, s[{sWS}:{sWS+3}], s24 offen {rst}
    s_mov_b64 exec, -1
    """)
    mf(0)
    xreads(2)
    a("s_waitcnt lgkmcnt(4)")
    mf(1)
    xreads(3)
    epi(0)
    a("s_waitcnt lgkmcnt(4)")
    mf(2)
    epi(1)
    a("""
    s_cmp_ge_u32 s3, 8
    s_cbranch_scc1 K1_RH1
    s_waitcnt lgkmcnt(0)
    """)
    mf(3)
    epi(2)
    epi(3)
    a(f"""
    s_branch K1_GD
K1_RH1:
    """)
    epi(2)
    if OPT["warm"]:
        a(f"""
    s_cmp_lg_u32 s3, 8
    s_cbranch_scc1 K1_GD
    s_lshr_b32 s68, s2, 3
    s_lshl_b32 s68, s68, 11
    s_add_u32 s68, s68, {128 * 512}
    v_lshlrev_b32 v13, 5, v1
    buffer_load_dword v14, v13, s[{sW1}:{sW1+3}], s68 offen
        """)
    a("K1_GD:")
    stamp(a, 5)
    cstamp(a, 1)
    row_max(a, 12)
    a(f"""
    v_mov_b32 v4, 0
    s_mov_b32 exec_lo, 0x80008000
    s_mov_b32 exec_hi, 0x80008000
    ds_max_u32 v4, v12 offset:{K1_PM}
    s_mov_b64 exec, -1
    s_waitcnt lgkmcnt(0)
    s_barrier
    s_cmp_lg_u32 s3, 15
    s_cbranch_scc1 K1_FIN
    ds_read_b32 v12, v4 offset:{K1_PM}
    s_lshl_b32 s24, s2, 2
    s_add_u32 s24, s24, {PMAX_OFF}
    s_mov_b64 exec, 1
    s_waitcnt lgkmcnt(0)
    buffer_store_dword v12, v4, s[{sWS}:{sWS+3}], s24 offen {rst}
K1_FIN:
    """)
    stamp(a, 6)
    if OPT["stamps"]:
        a("s_waitcnt vmcnt(0)")
    stamp(a, 7)
    stamp_flush(a, 0)
    a("""
K1_END:
    s_endpgm
    """)
    return a.text(), 128, (102 if OPT["stamps"] or OPT["diag"] else 72)


ROWS = 1040
CNT = 0
DH = CNT + 512
DEGT = DH + 256
POS = DEGT + 512
INFO = POS + 512
MISC = INFO + 1600
WT = MISC + 64
LIST = (WT + 1024 + 255) // 256 * 256
LISTCAP = 6144
LCAP = 60
LROW = LCAP * 8
QH = (LIST + LISTCAP * 8 + 128 + 255) // 256 * 256
K2_LDS = QH + 100 * ROWS
assert K2_LDS <= 163840
assert MISC % 16 == 0 and INFO % 16 == 0 and WT % 16 == 0


def gen_k2():
    U = OPT["U"]
    a = A()
    vW, vX, vAcc = 20, 52, 84
    vRec, vRank, vPos = 100, 112, 118
    vb, vxa, vB1 = 4, 6, 10
    sX, sW1, sB1, sWS, sP, sOUT, sB2, sSCR = 36, 40, 44, 48, 52, 56, 60, 64
    sROW0 = 26
    sBATCH = 68; sNBATCH = 69; sRECB = 70
    sM = 72
    a("""
    s_cmp_ge_u32 s2, 256
    s_cbranch_scc1 K2_END
    s_load_dwordx2 s[22:23], s[0:1], 80
    s_load_dwordx16 s[4:19], s[0:1], 0
    s_load_dwordx2 s[20:21], s[0:1], 64
    """)
    stamp_init(a)
    stamp(a, 0)
    common_ids(a)
    a(f"""
    v_lshrrev_b32 v126, 2, v0
    v_and_b32 v7, 0x3fc, v0
    s_lshl_b32 s30, s2, 10
    s_add_u32 s30, s30, {TAB_OFF}
    s_mul_i32 s{sROW0}, s2, {NB}
    v_mov_b32 v4, 0
    v_lshlrev_b32 v5, 2, v0
    v_cmp_gt_u32 vcc, {(POS - CNT) // 4}, v0
    s_mov_b64 exec, vcc
    ds_write_b32 v5, v4 offset:{CNT}
    s_mov_b64 exec, 31
    v_cmp_eq_u32 vcc, 4, v1
    v_lshlrev_b32 v5, 2, v1
    s_nop 0
    v_cndmask_b32 v6, 0, 16, vcc
    ds_write_b32 v5, v6 offset:{MISC}
    s_mov_b64 exec, -1
    s_waitcnt lgkmcnt(0)
    """)
    if OPT["diag"]:
        a("v_mov_b32 v125, v126")
    diag(a, 1, "K2_DG0")
    if OPT["diag"]:
        a("v_mov_b32 v126, v125")
    srd(a, sWS, 22, 23, SCR_OFF)
    a(f"buffer_load_dword v124, v7, s[{sWS}:{sWS+3}], s30 offen")
    dma_w_setup(a, 4, 5, 24, 25)
    srd(a, sX, 4, 5, N * 256)
    srd(a, sW1, 12, 13, 257 * 512)
    a("s_barrier")
    a("s_cmp_ge_u32 s3, 14")
    a("s_cbranch_scc1 K2_AUXLD")
    dma_x(a, sX, sROW0, 5, 6, 27, LIST)
    a(f"""
    s_branch K2_WLD
K2_AUXLD:
    v_subrev_u32 v123, 896, v0           ; 0..127
    v_lshlrev_b32 v8, 2, v123
    v_lshlrev_b32 v9, 3, v123
    s_mov_b32 s28, {256 * 512}
    s_mov_b32 s29, {PMAX_OFF}
    buffer_load_dword v122, v8, s[{sW1}:{sW1+3}], s28 offen
    buffer_load_dwordx2 v[120:121], v9, s[{sWS}:{sWS+3}], s29 offen
K2_WLD:
    """)
    dma_w_issue(a, 4, sW1, 24, 25, 128 * 512, QH)
    srd(a, sB1, 14, 15, 512)
    a(f"""
    s_and_b32 s24, s3, 7
    s_lshl_b32 s24, s24, 6
    v_lshlrev_b32 v5, 3, v3
    buffer_load_dwordx2 v[112:113], v5, s[{sB1}:{sB1+3}], s24 offen
    buffer_load_dwordx2 v[114:115], v5, s[{sB1}:{sB1+3}], s24 offen offset:32
    v_and_b32 v125, 31, v126
    v_lshrrev_b32 v126, 5, v126
    v_lshl_or_b32 v126, v125, 3, v126    ; chunk
    v_mul_u32_u24 v126, {CHS}, v126
    v_and_b32 v125, 3, v0
    v_lshlrev_b32 v125, 1, v125          ; slot0 = 2j
    s_mov_b32 s{sRECB}, {REC_OFF}
    s_mov_b32 s{sBATCH}, 0
    s_waitcnt vmcnt(8)
    """)
    stamp(a, 1)
    a(f"""
    v_and_b32 v7, 0xffff, v124           ; start
    v_lshrrev_b32 v124, 16, v124         ; cnt
    v_add_u32 v7, v7, v125
    v_lshl_add_u32 v126, v7, 3, v126
    v_sub_u32 v127, v124, v125
    """)

    def rec_loads():
        for k in range(6):
            a(f"v_cmp_lt_i32 s[{sM+2*k}:{sM+2*k+1}], {8*(k>>1)+(k&1)}, v127")
        for m in range(3):
            a(f"s_mov_b64 exec, s[{sM+4*m}:{sM+4*m+1}]")
            a(f"buffer_load_dwordx4 v[{vRec+4*m}:{vRec+4*m+3}], v126, s[{sWS}:{sWS+3}], s{sRECB} offen offset:{64*m}")
        a("s_mov_b64 exec, -1")

    def hist(L):
        a("s_mov_b32 s35, 0xffff0000")
        for k in range(6):
            m, o = k >> 1, k & 1
            r0 = vRec + 4 * m + 2 * o
            a(f"s_mov_b64 exec, s[{sM+2*k}:{sM+2*k+1}]")
            if k in (2, 4):
                a(f"s_cbranch_execz {L}_HISTDONE")
            a(f"v_and_b32 v{vPos+k}, 0xffff, v{r0+1}")
            a(f"v_and_or_b32 v8, v{r0}, s35, 1")
            a(f"ds_add_rtn_u32 v{vRank+k}, v{vPos+k}, v8 offset:{CNT}")
            a(f"v_and_b32 v{r0}, 0xffff, v{r0}")
            a(f"v_and_b32 v{r0+1}, s35, v{r0+1}")
        a(f"{L}_HISTDONE:")
        a("s_mov_b64 exec, -1")

    def scanrank(L, wscan, wrank, degt=True):
        a(f"""
    s_sub_u32 s24, s3, {wscan}
    s_cmp_ge_u32 s24, 2
    s_cbranch_scc1 {L}_SRDONE
    v_lshlrev_b32 v8, 2, v1
    ds_read_b32 v78, v8 offset:{CNT}
    ds_read_b32 v79, v8 offset:{CNT + 256}
    v_mov_b32 v9, 1
    s_waitcnt lgkmcnt(0)
    v_and_b32 v68, 0xffff, v78
    v_and_b32 v69, 0xffff, v79
    s_cmp_eq_u32 s3, {wscan}
    s_cbranch_scc1 {L}_SCAN
    v_mov_b32 v77, 0
    ds_write_b32 v8, v77 offset:{DH}
    v_min_u32 v73, 63, v68
    v_min_u32 v74, 63, v69
    v_sub_u32 v73, 63, v73
    v_sub_u32 v74, 63, v74
    v_lshlrev_b32 v73, 2, v73
    v_lshlrev_b32 v74, 2, v74
    ds_add_rtn_u32 v75, v73, v9 offset:{DH}
    s_mov_b32 exec_hi, 0xf               ; nodes 64..99
    ds_add_rtn_u32 v76, v74, v9 offset:{DH}
    s_mov_b64 exec, -1
    ds_read_b32 v77, v8 offset:{DH}
    s_waitcnt lgkmcnt(0)
{L}_SCAN:
    v_mov_b32 v70, v68
    v_mov_b32 v71, v69
    v_mov_b32 v72, v77
        """)
        wave_scan(a, [70, 71, 72])
        a(f"""
    v_mov_b32 v9, {LIST}
    v_readlane_b32 s24, v70, 63
    v_sub_u32 v70, v70, v68
    v_sub_u32 v71, v71, v69
    v_add_u32 v71, s24, v71
    v_lshl_add_u32 v80, v70, 3, v9
    v_lshl_add_u32 v4, v71, 3, v9
    s_cmp_eq_u32 s3, {wscan}
    s_cbranch_scc0 {L}_RANK
    ds_write_b32 v8, v80 offset:{POS}
    ds_write_b32 v8, v4 offset:{POS + 256}
    {f"ds_add_u32 v8, v68 offset:{DEGT}" if degt else ""}
    {f"ds_add_u32 v8, v69 offset:{DEGT + 256}" if degt else ""}
    s_branch {L}_SRDONE
{L}_RANK:
    v_sub_u32 v72, v72, v77
    ds_bpermute_b32 v73, v73, v72
    ds_bpermute_b32 v74, v74, v72
    v_mov_b32 v81, v68
    v_mul_u32_u24 v82, {ROWS}, v1
    v_add_u32 v82, {QH}, v82
    v_lshrrev_b32 v83, 16, v78
    v_mov_b32 v5, v69
    v_add_u32 v6, {64 * ROWS}, v82
    v_lshrrev_b32 v7, 16, v79
    s_waitcnt lgkmcnt(0)
    v_add_lshl_u32 v73, v73, v75, 4
    v_add_lshl_u32 v74, v74, v76, 4
    ds_write_b128 v73, v[80:83] offset:{INFO}
    s_mov_b32 exec_hi, 0xf
    ds_write_b128 v74, v[4:7] offset:{INFO}
    s_mov_b64 exec, -1
{L}_SRDONE:
        """)

    def fastrank(L, wrank):
        a(f"""
    s_cmp_lg_u32 s3, {wrank}
    s_cbranch_scc1 {L}_FRDONE
    s_setprio 3
    v_lshlrev_b32 v8, 2, v1
    ds_read_b32 v78, v8 offset:{CNT}
    ds_read_b32 v79, v8 offset:{CNT + 256}
    v_mov_b32 v9, 1
    v_mul_u32_u24 v80, {LROW}, v1
    v_add_u32 v80, {LIST}, v80
    v_add_u32 v4, {64 * LROW}, v80
    v_mul_u32_u24 v82, {ROWS}, v1
    v_add_u32 v82, {QH}, v82
    v_add_u32 v6, {64 * ROWS}, v82
    s_waitcnt lgkmcnt(0)
    v_and_b32 v81, 0xffff, v78
    v_and_b32 v5, 0xffff, v79
    v_min_u32 v73, 63, v81
    v_min_u32 v74, 63, v5
    v_sub_u32 v73, 63, v73
    v_sub_u32 v74, 63, v74
    v_lshlrev_b32 v73, 2, v73
    v_lshlrev_b32 v74, 2, v74
    ds_add_rtn_u32 v75, v73, v9 offset:{DH}
    s_mov_b32 exec_hi, 0xf               ; nodes 64..99
    ds_add_rtn_u32 v76, v74, v9 offset:{DH}
    s_mov_b64 exec, -1
    ds_read_b32 v77, v8 offset:{DH}
    ds_write_b32 v8, v81 offset:{DEGT}
    ds_write_b32 v8, v5 offset:{DEGT + 256}
    v_max_u32 v72, v81, v5
    v_cmp_lt_u32 vcc, {LCAP}, v72
    v_mov_b32 v71, 0
    s_mov_b64 exec, vcc
    ds_max_u32 v71, v72 offset:{MISC + 8}
    s_mov_b64 exec, -1
    v_lshrrev_b32 v83, 16, v78
    v_lshrrev_b32 v7, 16, v79
    s_waitcnt lgkmcnt(3)
    v_mov_b32 v72, v77
        """)
        wave_scan(a, [72])
        a(f"""
    v_sub_u32 v72, v72, v77
    ds_bpermute_b32 v73, v73, v72
    ds_bpermute_b32 v74, v74, v72
    s_waitcnt lgkmcnt(0)
    v_add_lshl_u32 v73, v73, v75, 4
    v_add_lshl_u32 v74, v74, v76, 4
    ds_write_b128 v73, v[80:83] offset:{INFO}
    s_mov_b32 exec_hi, 0xf
    ds_write_b128 v74, v[4:7] offset:{INFO}
    s_mov_b64 exec, -1
    s_setprio 0
{L}_FRDONE:
        """)

    def fastscatter(L):
        a(f"s_movk_i32 s24, {LROW // 4}")
        for k in range(6):
            m, o = k >> 1, k & 1
            r0 = vRec + 4 * m + 2 * o
            a(f"s_mov_b64 exec, s[{sM+2*k}:{sM+2*k+1}]")
            if k in (2, 4):
                a(f"s_cbranch_execz {L}_FSDONE")
            a(f"v_min_u16 v8, {LCAP - 1}, v{vRank+k}")
            a(f"v_mul_u32_u24 v9, s24, v{vPos+k}")
            a(f"v_mad_u32_u16 v9, v8, 8, v9")
            a(f"ds_write_b64 v9, v[{r0}:{r0+1}] offset:{LIST}")
        a(f"{L}_FSDONE:")
        a("s_mov_b64 exec, -1")

    def posread(L):
        for k in range(6):
            a(f"s_mov_b64 exec, s[{sM+2*k}:{sM+2*k+1}]")
            if k in (2, 4):
                a(f"s_cbranch_execz {L}_POSDONE")
            a(f"ds_read_b32 v{vPos+k}, v{vPos+k} offset:{POS}")
        a(f"{L}_POSDONE:")
        a("s_mov_b64 exec, -1")

    def scatter(L):
        for k in range(6):
            m, o = k >> 1, k & 1
            r0 = vRec + 4 * m + 2 * o
            a(f"s_mov_b64 exec, s[{sM+2*k}:{sM+2*k+1}]")
            if k in (2, 4):
                a(f"s_cbranch_execz {L}_SCATDONE")
            a(f"v_mad_u32_u16 v{vPos+k}, v{vRank+k}, 8, v{vPos+k}")
            a(f"ds_write_b64 v{vPos+k}, v[{r0}:{r0+1}]")
        a(f"{L}_SCATDONE:")
        a("s_mov_b64 exec, -1")

    if not OPT["reclate"]:
        rec_loads()
    gemm_addr(a, vb, vxa, 10, 24, QH, LIST)
    a(f"""
    s_mov_b32 s34, {NLOG2E:#x}
    s_lshr_b32 s27, s3, 3
    s_mul_i32 s27, s27, {64 * ROWS}
    s_bfe_u32 s24, s3, 0x10002
    s_lshl_b32 s24, s24, 9
    s_add_u32 s27, s27, s24
    s_and_b32 s24, s3, 3
    s_lshl_b32 s24, s24, 6
    s_add_u32 s27, s27, s24
    s_add_u32 s27, s27, {QH}
    v_mul_u32_u24 v18, {ROWS}, v2
    v_lshl_add_u32 v18, v3, 4, v18
    v_add_u32 v18, s27, v18
    v_mov_b32 v19, 0
    v_cmp_lt_u32 vcc, 24, v124
    s_mov_b64 exec, vcc
    ds_max_u32 v19, v124 offset:{MISC + 12}
    s_mov_b64 exec, -1
    s_waitcnt vmcnt({0 if OPT["reclate"] else 3})
    """)
    if OPT["reclate"]:
        rec_loads()
    for p in range(4):
        a(f"v_lshlrev_b32 v{vB1+2*p}, 16, v{112+p}")
        a(f"v_and_b32 v{vB1+2*p+1}, 0xffff0000, v{112+p}")
    a(f"""
    s_cmp_lt_u32 s3, 14
    s_cbranch_scc1 K2_B0
    v_lshlrev_b32 v24, 16, v122
    v_and_b32 v25, 0xffff0000, v122
    v_mul_f32 v24, s34, v24
    v_mul_f32 v25, s34, v25
    v_and_b32 v22, 1, v123
    v_lshlrev_b32 v22, 3, v22            ; (h&3)*4
    v_bfe_u32 v23, v123, 1, 2
    v_lshl_add_u32 v22, v23, 4, v22      ; + ((h>>2)&3)*16
    v_bfe_u32 v23, v123, 4, 2
    v_lshl_add_u32 v22, v23, 6, v22      ; + ((h>>5)&3)*64
    v_bfe_u32 v23, v123, 3, 1
    v_lshl_add_u32 v22, v23, 8, v22      ; + half*256
    v_lshrrev_b32 v23, 6, v123
    v_lshl_add_u32 v22, v23, 9, v22      ; + s*512
    ds_write_b64 v22, v[24:25] offset:{WT}
    v_max_f32 v21, v120, v121
    """)
    row_max(a, 21)
    a(f"""
    s_mov_b32 exec_lo, 0x80008000
    s_mov_b32 exec_hi, 0x80008000
    ds_max_u32 v19, v21 offset:{MISC}
    s_mov_b64 exec, -1
K2_B0:
    s_barrier
    """)
    stamp(a, 2)
    wreads, xreads, mf = gemm_parts(a, vW, vX, vAcc, vb, vxa, lambda aa: f"v[{vB1+4*aa}:{vB1+4*aa+3}]", acc2=True)

    def epi(i, last=False):
        o = vAcc + 8 * (i & 1)
        for r in range(8):
            a(f"v_mul_f32 v{o+r}, s34, v{o+r}")
        for r in range(0, 8, 2):
            a(f"v_max3_f32 v19, |v{o+r}|, |v{o+r+1}|, v19")
        if last:
            a("s_mov_b32 exec_lo, 0x00030003")
            a("s_mov_b32 exec_hi, 0x00030003")
        a(f"ds_write_b128 v18, v[{o}:{o+3}] offset:{i * 16 * ROWS}")
        a(f"ds_write_b128 v18, v[{o+4}:{o+7}] offset:{i * 16 * ROWS + 256}")
        if last:
            a("s_mov_b64 exec, -1")

    wreads(); xreads(0); xreads(1)
    a("s_waitcnt lgkmcnt(4)")
    mf(0)
    xreads(2)
    a("s_waitcnt lgkmcnt(4)")
    mf(1)
    a("s_cmp_ge_u32 s3, 8")
    a("s_cbranch_scc1 K2_NOX3")
    xreads(3)
    a("K2_NOX3:")
    stamp(a, 3)
    a("s_waitcnt vmcnt(0)")
    stamp(a, 4)
    hist("K2A")
    a("s_waitcnt lgkmcnt(0)")
    a("s_barrier")
    stamp(a, 5)
    assert U == 4
    vP = 100
    vPair = 116
    vE = 124
    vI = 52
    vAddr, vDeg, vH = vI, vI + 1, vI + 2
    vL16, vK1, vG16, vWT, vQI, vTmp = 56, 57, 58, 59, 60, 61
    vQ, vW, vT, vX, vN, vD = 20, 28, 36, 44, 64, 72
    sQ, sS, sD0, sD3, sSafe, sSl, sSEL = 27, 28, 29, 30, 31, 32, 33

    def gemm_tail(L):
        epi(1)
        a("s_cmp_ge_u32 s3, 8")
        a(f"s_cbranch_scc1 {L}_E2")
        mf(3)
        epi(2)
        epi(3)
        a(f"s_branch {L}_GD")
        a(f"{L}_E2:")
        epi(2, last=True)
        a(f"{L}_GD:")
        row_max(a, 19)
        a(f"""
    v_mov_b32 v4, 0
    s_mov_b32 exec_lo, 0x80008000
    s_mov_b32 exec_hi, 0x80008000
    ds_max_u32 v4, v19 offset:{MISC + 4}
    s_mov_b64 exec, -1
        """)

    def main_consts():
        a(f"""
    v_lshlrev_b32 v{vL16}, 4, v2
    v_mov_b32 v{vG16}, {INFO}
    v_lshl_add_u32 v{vG16}, v3, 4, v{vG16}
    v_add_u32 v{vWT}, {WT}, v{vL16}
    s_mov_b32 s{sSEL}, 0x00003f80
    s_mov_b32 s{sQ}, s3
        """)
        for j in range(U):
            a(f"v_mov_b32 v{vPair+2*j+1}, v{vL16}")

    def item_loads():
        for j in range(U):
            a(f"ds_read_b32 v{vPair+2*j}, v{vAddr} offset:{8*j}")
        a(f"""
    ds_read_b32 v{vE}, v{vAddr} offset:4
    v_add3_u32 v{vH}, v{vH}, s25, v{vL16}
    v_readlane_b32 s{sD0}, v{vDeg}, 0
    v_readlane_b32 s{sD3}, v{vDeg}, 48
    v_readlane_b32 s35, v{vDeg}, 16
    v_readlane_b32 s71, v{vDeg}, 32
        """)

    def item_issue(extra):
        for j in range(U):
            a(f"s_waitcnt lgkmcnt({U - j + extra})")
            a(f"buffer_load_dwordx4 v[{vP+4*j}:{vP+4*j+3}], v[{vPair+2*j}:{vPair+2*j+1}], s[{sP}:{sP+3}], s{sSl} idxen offen")
        a(f"ds_read_b32 v{vPair}, v{vAddr} offset:{8*U}")

    fastrank("K2A", 9)
    fastscatter("K2A")
    epi(0)
    mf(2)
    srd(a, sP, 22, 23, N, stride=256)
    a(f"""
    v_mov_b32 v4, 0
    s_mov_b32 s{sNBATCH}, 1
    s_waitcnt lgkmcnt(0)
    """)
    stamp(a, 6)
    a(f"""
    s_barrier
    ds_read_b64 v[6:7], v4 offset:{MISC + 8}
    s_lshl_b32 s24, s3, 6
    v_lshl_add_u32 v{vI}, v3, 4, s24
    ds_read_b128 v[{vI}:{vI+3}], v{vI} offset:{INFO}
    s_mov_b32 s25, 0
    s_mov_b32 s{sSl}, 0
    s_waitcnt lgkmcnt(1)
    v_or_b32 v6, v6, v7
    s_nop 0
    v_readfirstlane_b32 s24, v6
    s_cmp_lg_u32 s24, 0
    s_cbranch_scc1 K2_SLOW0
    """)
    main_consts()
    a("s_waitcnt lgkmcnt(0)")
    item_loads()
    item_issue(0)
    gemm_tail("K2F")
    a("s_waitcnt lgkmcnt(0)")
    a("s_barrier                            ; Q' complete")
    diag(a, 2, "K2_DG1")
    diag(a, 4, "K2_DG2", cyc=True)
    stamp(a, 7)
    cstamp(a, 0)
    a(f"""
    ds_read_b64 v[{vT}:{vT+1}], v4 offset:{MISC}
    ds_read_b128 v[{vW}:{vW+3}], v{vWT}
    ds_read_b128 v[{vW+4}:{vW+7}], v{vWT} offset:256
    ds_read_b128 v[{vQ}:{vQ+3}], v{vH}
    ds_read_b128 v[{vQ+4}:{vQ+7}], v{vH} offset:256
    s_waitcnt lgkmcnt(4)
    v_add_f32 v{vK1}, v{vT}, v{vT+1}
    v_fma_f32 v{vK1}, v{vK1}, 4.0, 4.0
    s_branch K2_GO
K2_SLOW0:
    """)
    gemm_tail("K2S")
    scanrank("K2S", 8, 9, degt=False)
    a("s_waitcnt lgkmcnt(0)")
    a("s_barrier")
    posread("K2S")
    a("s_waitcnt lgkmcnt(0)")
    scatter("K2S")
    a("""
    s_branch K2_MAIN
K2_BATCH:
    s_waitcnt vmcnt(0)
    """)
    hist("K2B")
    a("s_waitcnt lgkmcnt(0)")
    a("s_barrier")
    scanrank("K2B", 8, 9)
    a("s_waitcnt lgkmcnt(0)")
    a("s_barrier")
    posread("K2B")
    a("s_waitcnt lgkmcnt(0)")
    scatter("K2B")
    a(f"""
K2_MAIN:
    v_mov_b32 v4, 0
    s_waitcnt lgkmcnt(0)
    s_barrier
    ds_read_b128 v[{vI}:{vI+3}], v4 offset:{MISC}
    """)
    main_consts()
    a(f"""
    s_waitcnt lgkmcnt(0)
    v_readfirstlane_b32 s24, v{vI+3}
    v_add_f32 v{vK1}, v{vI}, v{vI+1}
    v_fma_f32 v{vK1}, v{vK1}, 4.0, 4.0
    s_add_u32 s24, s24, 23
    s_mul_i32 s24, s24, 2731
    s_lshr_b32 s{sNBATCH}, s24, 16
    s_cmp_le_u32 s{sNBATCH}, 1
    s_cbranch_scc1 K2_ITEM
    v_mov_b32 v{vK1}, 0x7f800000         ; several batches: every item takes the plain path
K2_ITEM:
    s_cmp_ge_u32 s{sQ}, 50
    s_cbranch_scc1 K2_DONE
    s_cmp_ge_u32 s{sQ}, 25
    s_cselect_b32 s24, 25, 0
    s_cselect_b32 s25, 512, 0
    s_cselect_b32 s{sSl}, {PS}, 0
    s_sub_u32 s24, s{sQ}, s24
    s_lshl_b32 s24, s24, 6
    v_add_u32 v{vTmp}, s24, v{vG16}
    ds_read_b128 v[{vI}:{vI+3}], v{vTmp}
    v_add_u32 v{vTmp}, s25, v{vWT}
    ds_read_b128 v[{vW}:{vW+3}], v{vTmp}
    ds_read_b128 v[{vW+4}:{vW+7}], v{vTmp} offset:256
    s_mov_b32 s{sP+2}, {N}
    s_waitcnt lgkmcnt(2)
    """)
    item_loads()
    a(f"""
    ds_read_b128 v[{vQ}:{vQ+3}], v{vH}
    ds_read_b128 v[{vQ+4}:{vQ+7}], v{vH} offset:256
    """)
    item_issue(2)
    a(f"""
K2_GO:
    v_cvt_f32_u32 v{vTmp}, v{vDeg}
    v_cvt_f32_u32 v{vI+3}, v{vI+3}
    v_fma_f32 v{vTmp}, v{vTmp}, v{vK1}, v{vI+3}
    s_max_u32 s24, s{sD0}, s{sD3}
    s_min_u32 s{sD3}, s{sD0}, s{sD3}
    v_cmp_nge_f32 vcc, {BOUND:#x}, v{vTmp}
    s_max_u32 s{sD0}, s35, s71
    s_min_u32 s35, s35, s71
    s_max_u32 s{sD0}, s{sD0}, s24
    s_min_u32 s{sD3}, s{sD3}, s35
    s_min_u32 s{sD0}, s{sD0}, {LISTCAP}
    s_sub_u32 s24, s{sD0}, {U}
    s_min_i32 s{sSafe}, s24, s{sD3}
    s_cmp_gt_i32 s24, 0
    s_cselect_b32 s{sP+2}, {N}, 0
    s_mov_b32 s{sS}, 0
    {"s_setprio 0" if OPT["prio"] else ""}
    s_cbranch_vccnz K2_P_START
    s_cmp_lg_u32 s{sD3}, 0
    s_cbranch_scc1 K2_F_FIRST
    """)
    for r in range(8):
        a(f"v_mov_b32 v{vN+r}, 0")
        a(f"v_mov_b32 v{vD+r}, 1.0")
    a(f"""
    s_cmp_eq_u32 s{sD0}, 0
    s_cbranch_scc1 K2_F_FLUSH
    v_cmpx_lt_u32 vcc, 0, v{vDeg}
    """)

    def step(j, mode):
        P = vP + 4 * j
        T = vN if mode == "first" else vT
        eh = j & 1
        jn = (j + 1) % U
        osel = "op_sel_hi:[1,0,1]" if eh == 0 else "op_sel:[0,1,0] op_sel_hi:[1,1,1]"
        a("s_waitcnt lgkmcnt(0)")
        for r in range(0, 8, 2):
            a(f"v_pk_fma_f32 v[{T+r}:{T+r+1}], v[{vW+r}:{vW+r+1}], v[{vE}:{vE+1}], v[{vQ+r}:{vQ+r+1}] {osel}")
        a(f"ds_read_b32 v{vE + (eh ^ 1)}, v{vAddr} offset:{8*(j+1)+4}")
        a(f"s_waitcnt vmcnt({U-1})")
        if mode != "plain":
            for p in range(4):
                a(f"v_dot2_f32_bf16 v{T+p}, v{P+p}, s{sSEL}, v{T+p}")
            a(f"v_pk_add_f32 v[{T+4}:{T+5}], v[{P}:{P+1}], v[{T+4}:{T+5}]")
            a(f"v_pk_add_f32 v[{T+6}:{T+7}], v[{P+2}:{P+3}], v[{T+6}:{T+7}]")
        else:
            for p in range(4):
                a(f"v_lshlrev_b32 v{vX+p}, 16, v{P+p}")
            a(f"v_pk_add_f32 v[{T+4}:{T+5}], v[{P}:{P+1}], v[{T+4}:{T+5}]")
            a(f"v_pk_add_f32 v[{T+6}:{T+7}], v[{P+2}:{P+3}], v[{T+6}:{T+7}]")
            a(f"v_pk_add_f32 v[{T}:{T+1}], v[{vX}:{vX+1}], v[{T}:{T+1}]")
            a(f"v_pk_add_f32 v[{T+2}:{T+3}], v[{vX+2}:{vX+3}], v[{T+2}:{T+3}]")
        a(f"buffer_load_dwordx4 v[{P}:{P+3}], v[{vPair+2*j}:{vPair+2*j+1}], s[{sP}:{sP+3}], s{sSl} idxen offen")
        a(f"ds_read_b32 v{vPair+2*jn}, v{vAddr} offset:{8*(j+1+U)}")
        for r in (4, 5, 6, 7, 0, 1, 2, 3):
            a(f"v_exp_f32 v{vX+r}, v{T+r}")
        order = (4, 6, 0, 2)
        if mode == "first":
            for r in order:
                a(f"v_pk_add_f32 v[{vD+r}:{vD+r+1}], v[{vX+r}:{vX+r+1}], 1.0 op_sel_hi:[1,0]")
        elif mode == "fast":
            for r in order:
                a(f"v_pk_fma_f32 v[{vN+r}:{vN+r+1}], v[{vN+r}:{vN+r+1}], v[{vX+r}:{vX+r+1}], v[{vN+r}:{vN+r+1}]")
            for r in order:
                a(f"v_pk_fma_f32 v[{vN+r}:{vN+r+1}], v[{T+r}:{T+r+1}], v[{vD+r}:{vD+r+1}], v[{vN+r}:{vN+r+1}]")
            for r in order:
                a(f"v_pk_fma_f32 v[{vD+r}:{vD+r+1}], v[{vD+r}:{vD+r+1}], v[{vX+r}:{vX+r+1}], v[{vD+r}:{vD+r+1}]")
        else:
            for r in order:
                a(f"v_pk_add_f32 v[{vX+r}:{vX+r+1}], v[{vX+r}:{vX+r+1}], 1.0 op_sel_hi:[1,0]")
            for r in (4, 5, 6, 7, 0, 1, 2, 3):
                a(f"v_rcp_f32 v{vX+r}, v{vX+r}")
            for r in order:
                a(f"v_pk_fma_f32 v[{vN+r}:{vN+r+1}], v[{T+r}:{T+r+1}], v[{vX+r}:{vX+r+1}], v[{vN+r}:{vN+r+1}]")
        if j == U - 1:
            a(f"v_add_u32 v{vAddr}, {8*U}, v{vAddr}")
            if OPT["prio"]:
                a("s_setprio 1")
        a(f"s_add_u32 s{sS}, s{sS}, 1")
        a(f"s_cmp_ge_i32 s{sS}, s{sSafe}")

    def loop(pfx, mode):
        tails = []
        if mode == "fast":
            a(f"{pfx}_FIRST:")
            step(0, "first")
            a(f"s_cbranch_scc1 {pfx}_T0")
            seq = list(range(1, U)) + [0]
        else:
            seq = list(range(U))
        for j in seq:
            a(f"{pfx}_S{j}:")
            step(j, mode)
            if j == seq[-1]:
                a(f"s_cbranch_scc0 {pfx}_S{seq[0]}")
            else:
                a(f"s_cbranch_scc1 {pfx}_T{j}")
        for j in [seq[-1]] + seq[:-1]:
            a(f"""
{pfx}_T{j}:
    {"s_setprio 2" if OPT["prio"] else ""}
    s_cmp_ge_u32 s{sS}, s{sD0}
    s_cbranch_scc1 {pfx}_FLUSH
    v_cmpx_lt_u32 vcc, s{sS}, v{vDeg}
    s_add_u32 s24, s{sS}, {U}
    s_cmp_lt_u32 s24, s{sD0}
    s_cselect_b32 s{sP+2}, {N}, 0
    s_branch {pfx}_S{(j+1) % U}
            """)

    loop("K2_F", "fast")
    a(f"""
K2_F_FLUSH:
    s_mov_b64 exec, 1
    v_mov_b32 v{vQI}, 0
    v_mov_b32 v{vTmp}, 1
    ds_add_rtn_u32 v{vQI}, v{vQI}, v{vTmp} offset:{MISC + 16}
    s_mov_b64 exec, -1
    """)
    for r in range(8):
        a(f"v_rcp_f32 v{vX+r}, v{vD+r}")
    for r in range(0, 8, 2):
        a(f"v_pk_mul_f32 v[{vN+r}:{vN+r+1}], v[{vN+r}:{vN+r+1}], v[{vX+r}:{vX+r+1}]")
    a("K2_WRH:")
    for r in range(4):
        a(f"v_cvt_pk_bf16_f32 v{vX+r}, v{vN+2*r}, v{vN+2*r+1}")
    a(f"""
    ds_write_b128 v{vH}, v[{vX}:{vX+3}]
K2_NEXT:
    s_waitcnt lgkmcnt(0)
    v_readfirstlane_b32 s{sQ}, v{vQI}
    s_branch K2_ITEM
K2_P_START:
    """)
    for r in range(8):
        a(f"v_mov_b32 v{vN+r}, 0")
    a(f"""
    s_cmp_eq_u32 s{sD0}, 0
    s_cbranch_scc1 K2_P_FLUSH
    v_cmpx_lt_u32 vcc, 0, v{vDeg}
    """)
    loop("K2_P", "plain")
    a(f"""
K2_P_FLUSH:
    s_mov_b64 exec, 1
    v_mov_b32 v{vQI}, 0
    v_mov_b32 v{vTmp}, 1
    ds_add_rtn_u32 v{vQI}, v{vQI}, v{vTmp} offset:{MISC + 16}
    s_mov_b64 exec, -1
    s_cmp_le_u32 s{sNBATCH}, 1
    s_cbranch_scc1 K2_WRH
    """)
    a(f"""
    s_mul_i32 s24, s2, {SCR_STRIDE}
    s_add_u32 s24, s24, {SCR_OFF - QH}
    s_mov_b32 s{sSCR}, s22
    s_mov_b32 s{sSCR+1}, s23
    s_mov_b32 s{sSCR+2}, {WS_USED}
    s_mov_b32 s{sSCR+3}, 0x00020000
    v_add_u32 v{vH}, v{vH}, v{vL16}
    s_cmp_eq_u32 s{sBATCH}, 0
    s_cbranch_scc1 K2_P_ST
    buffer_load_dwordx4 v[{vX}:{vX+3}], v{vH}, s[{sSCR}:{sSCR+3}], s24 offen
    buffer_load_dwordx4 v[{vX+4}:{vX+7}], v{vH}, s[{sSCR}:{sSCR+3}], s24 offen offset:16
    s_waitcnt vmcnt(0)
    """)
    for r in range(0, 8, 2):
        a(f"v_pk_add_f32 v[{vN+r}:{vN+r+1}], v[{vN+r}:{vN+r+1}], v[{vX+r}:{vX+r+1}]")
    a(f"""
K2_P_ST:
    buffer_store_dwordx4 v[{vN}:{vN+3}], v{vH}, s[{sSCR}:{sSCR+3}], s24 offen
    buffer_store_dwordx4 v[{vN+4}:{vN+7}], v{vH}, s[{sSCR}:{sSCR+3}], s24 offen offset:16
    s_waitcnt vmcnt(0)
    s_branch K2_NEXT
    """)
    vF = 32
    a(f"""
K2_DONE:
    s_add_u32 s{sBATCH}, s{sBATCH}, 1
    s_cmp_ge_u32 s{sBATCH}, s{sNBATCH}
    s_cbranch_scc1 K2_FINAL
    s_waitcnt vmcnt(0)
    s_add_u32 s{sRECB}, s{sRECB}, 192
    v_subrev_u32 v127, 24, v127
    """)
    rec_loads()
    a(f"""
    s_barrier
    v_mov_b32 v4, 0
    v_lshlrev_b32 v5, 2, v0
    v_cmp_gt_u32 vcc, {(DEGT - CNT) // 4}, v0
    s_mov_b64 exec, vcc
    ds_write_b32 v5, v4 offset:{CNT}
    s_mov_b64 exec, 1
    v_mov_b32 v5, {MISC}
    v_mov_b32 v6, 16
    ds_write_b32 v5, v6 offset:16
    s_mov_b64 exec, -1
    s_waitcnt lgkmcnt(0)
    s_barrier
    s_branch K2_BATCH
K2_FINAL:
    """)
    stamp(a, 8)
    cstamp(a, 1)
    a(f"""
    s_waitcnt vmcnt(0)
    s_and_b32 s24, s3, 3                 ; cp
    s_lshl_b32 s25, s24, 14
    s_add_u32 s25, s25, {W2F_OFF}
    v_lshlrev_b32 v4, 4, v1
    """)
    for f in range(16):
        if f and f % 4 == 0:
            a("s_add_u32 s25, s25, 4096")
        a(f"buffer_load_dwordx4 v[{vF+4*f}:{vF+4*f+3}], v4, s[{sWS}:{sWS+3}], s25 offen offset:{1024*(f%4)}")
    srd(a, sB2, 18, 19, 256)
    srd(a, sOUT, 20, 21, N * 256)
    a(f"""
    s_lshl_b32 s24, s24, 6
    v_lshlrev_b32 v5, 4, v3              ; g*16
    buffer_load_dwordx4 v[8:11], v5, s[{sB2}:{sB2+3}], s24 offen
    s_lshr_b32 s27, s3, 2
    s_lshl_b32 s27, s27, 4               ; first row tile * 16
    v_add_u32 v6, s27, v2
    v_mul_u32_u24 v7, {ROWS}, v6
    v_add_u32 v7, v7, v5
    v_add_u32 v7, {QH}, v7
    v_lshlrev_b32 v20, 2, v6
    v_add_u32 v21, s{sROW0}, v6
    v_lshl_add_u32 v21, v21, 8, v5
    s_mov_b32 s34, {NLN2:#x}
    s_barrier
    s_cmp_le_u32 s{sNBATCH}, 1
    s_cbranch_scc1 K2_GEMM2
    s_mul_i32 s28, s2, {SCR_STRIDE}
    s_add_u32 s28, s28, {SCR_OFF}
    s_mov_b32 s{sSCR}, s22
    s_mov_b32 s{sSCR+1}, s23
    s_mov_b32 s{sSCR+2}, {WS_USED}
    s_mov_b32 s{sSCR+3}, 0x00020000
    v_and_b32 v22, 1, v3
    v_lshlrev_b32 v22, 9, v22
    v_lshl_add_u32 v22, v2, 4, v22       ; s*512 + l*16
    v_lshl_add_u32 v23, v2, 4, v22       ; s*512 + l*32
    s_mov_b32 s29, s3
K2_CONV:
    s_mul_i32 s30, s29, {ROWS}
    s_add_u32 s31, s30, s28
    buffer_load_dwordx4 v[100:103], v23, s[{sSCR}:{sSCR+3}], s31 offen
    buffer_load_dwordx4 v[104:107], v23, s[{sSCR}:{sSCR+3}], s31 offen offset:16
    s_add_u32 s30, s30, {QH}
    v_add_u32 v24, s30, v22
    s_waitcnt vmcnt(0)
    v_cvt_pk_bf16_f32 v100, v100, v101
    v_cvt_pk_bf16_f32 v101, v102, v103
    v_cvt_pk_bf16_f32 v102, v104, v105
    v_cvt_pk_bf16_f32 v103, v106, v107
    ds_write_b128 v24, v[100:103]
    s_add_u32 s29, s29, 16
    s_cmp_lt_u32 s29, {NB}
    s_cbranch_scc1 K2_CONV
    s_waitcnt lgkmcnt(0)
    s_barrier
K2_GEMM2:
    """)
    stamp(a, 9)
    diag(a, 3, "K2_DG3")
    diag(a, 5, "K2_DG4", cyc=True)
    vHB = 96
    vO = 24
    for rt in range(2):
        off = rt * 64 * ROWS
        if rt == 1:
            a("s_cmp_ge_u32 s3, 12")
            a("s_cbranch_scc1 K2_FIN")
            a(f"v_add_u32 v7, {off}, v7")
            a(f"v_add_u32 v21, {64 * 256}, v21")
        a(f"ds_read_b32 v22, v20 offset:{DEGT + rt * 256}")
        for ks in range(8):
            a(f"ds_read_b128 v[{vHB+4*ks}:{vHB+4*ks+3}], v7 offset:{(ks >> 2) * 512 + (ks & 3) * 64}")
        if rt == 0:
            a("s_waitcnt vmcnt(0)")
            for p in range(4):
                a(f"v_lshlrev_b32 v{12+2*p}, 16, v{8+p}")
                a(f"v_and_b32 v{13+2*p}, 0xffff0000, v{8+p}")
        for ks in range(8):
            a(f"s_waitcnt lgkmcnt({7-ks})")
            for aa in range(2):
                f = vF + 4 * (aa * 8 + ks)
                c = "0" if ks == 0 else f"v[{vO+4*aa}:{vO+4*aa+3}]"
                a(f"v_mfma_f32_16x16x32_bf16 v[{vO+4*aa}:{vO+4*aa+3}], v[{f}:{f+3}], v[{vHB+4*ks}:{vHB+4*ks+3}], {c}")
        a("v_cvt_f32_u32 v22, v22")
        a(f"v_cmp_gt_u32 vcc, {NB - 64 * rt}, v6")
        a("s_nop 5")
        for r in range(8):
            a(f"v_mul_f32 v{vO+r}, s34, v{vO+r}")
        for r in range(8):
            a(f"v_fmac_f32 v{vO+r}, v22, v{12+r}")
        for r in range(4):
            a(f"v_cvt_pk_bf16_f32 v{vHB+r}, v{vO+2*r}, v{vO+2*r+1}")
        a("s_mov_b64 exec, vcc")
        a(f"buffer_store_dwordx4 v[{vHB}:{vHB+3}], v21, s[{sOUT}:{sOUT+3}], s24 offen")
        a("s_mov_b64 exec, -1")
        if rt == 0:
            a("s_nop 1")
    a("K2_FIN:")
    stamp(a, 10)
    if OPT["stamps"]:
        a("s_waitcnt vmcnt(0)")
    stamp(a, 11)
    stamp_flush(a, 1)
    a("""
K2_END:
    s_endpgm
    """)
    return a.text(), 128, (102 if OPT["stamps"] or OPT["diag"] else 96)


HEADER = """; Kernarg layout for this problem (88 bytes, ptrs only, base s[0:1]):
"""


def kd(name, vgpr, sgpr):
    return f""".amdhsa_kernel {name}
  .amdhsa_next_free_vgpr {vgpr}
  .amdhsa_next_free_sgpr {sgpr}
  .amdhsa_accum_offset {(vgpr + 3) // 4 * 4}
  .amdhsa_group_segment_fixed_size 0
  .amdhsa_kernarg_size 88
  .amdhsa_user_sgpr_count 2
  .amdhsa_user_sgpr_kernarg_segment_ptr 1
  .amdhsa_system_sgpr_workgroup_id_x 1
.end_amdhsa_kernel
"""


def build():
    k1, v1, s1 = gen_k1()
    k2, v2, s2 = gen_k2()
    n1 = "mpnn_prep_kernel"
    n2 = "gather_scatter__edge_featured_mpnn_mpnn__graph_kernel"
    out = HEADER
    out += f"; @launch kernel={n1} grid=(256,1,1) block=(1024,1,1) lds={K1_LDS}\n"
    out += f"; @launch kernel={n2} grid=(256,1,1) block=(1024,1,1) lds={K2_LDS}\n"
    ks = [(n1, k1, v1, s1), (n2, k2, v2, s2)]
    if OPT["diag"]:
        out += "; @launch kernel=diag_kernel grid=(1,1,1) block=(64,1,1) lds=0\n"
        ks.append(("diag_kernel",) + gen_diag())
    out += '.amdgcn_target "amdgcn-amd-amdhsa--gfx950"\n.text\n'
    for n, k, _, _ in ks:
        out += f".globl {n}\n.p2align 8\n.type {n},@function\n{n}:\n" + k
    out += '.section .rodata,"a"\n'
    for n, _, v, sg in ks:
        out += ".p2align 6\n" + kd(n, v, sg)
    return out


if __name__ == "__main__":
    path = sys.argv[1] if len(sys.argv) > 1 else "gather_scatter__edge_featured_mpnn_mpnn__graph.s"
    for kv in sys.argv[2:]:
        k, v = kv.split("=")
        OPT[k] = int(v) if v.lstrip('-').isdigit() else v.replace('+', ' ')
    open(path, "w").write(build())
    print("wrote", path, "K1_LDS", K1_LDS, "K2_LDS", K2_LDS)
```

```python
import sys

N = 25000; E = 400000
NB = 98
CH = 1564
CHS = 12544
PS = N * 256
P_OFF = 0
REC_OFF = 2 * PS
TAB_OFF = REC_OFF + 256 * CHS
W2F_OFF = TAB_OFF + 256 * 1024
PMAX_OFF = W2F_OFF + 65536
SCR_OFF = 0x1000000
SCR_STRIDE = 104448
WS_USED = SCR_OFF + 256 * SCR_STRIDE
NLOG2E = 0xbfb8aa3b
NLN2 = 0xbf317218
BOUND = 0x43e00000

STAMP_OFF = 0x3000000
OPT = dict(U=4, stamps=False, pst="", rst="", prio=1, warm=1, reclate=0, tlb=0, diag=0, ost="", pld="", nw=16)


class A:
    def __init__(self):
        self.l = []

    def __call__(self, s):
        for x in s.strip("\n").split("\n"):
            x = x.rstrip()
            if not x.strip():
                continue
            if x.strip().endswith(":") and not x.strip().startswith(";"):
                self.l.append(x.strip())
            else:
                self.l.append("    " + x.strip())

    def text(self):
        return "\n".join(self.l) + "\n"


def stamp(a, i):
    if OPT["stamps"]:
        a(f"""
        s_memrealtime s[98:99]
        s_waitcnt lgkmcnt(0)
        s_mov_b32 s{84+i}, s98
        """)


DIAG_OFF = 0x2f00000


def diag(a, slot, lab, cyc=False):
    if OPT["diag"]:
        a(f"""
        s_or_b32 s96, s2, s3
        s_cmp_lg_u32 s96, 0
        s_cbranch_scc1 {lab}
        {"s_memtime" if cyc else "s_memrealtime"} s[98:99]
        s_add_u32 s96, s22, {DIAG_OFF + 4 * slot}
        s_addc_u32 s97, s23, 0
        s_waitcnt lgkmcnt(0)
        v_mov_b32 v126, 0
        v_mov_b32 v127, s98
        global_store_dword v126, v127, s[96:97]
        s_nop 0
{lab}:
        """)


def gen_diag():
    a = A()
    m = OPT["diag"]
    a(f"""
    s_cmp_lg_u32 s2, 0
    s_cbranch_scc1 DG_END
    s_load_dwordx2 s[22:23], s[0:1], 80
    s_memrealtime s[10:11]
    s_waitcnt lgkmcnt(0)
    s_add_u32 s22, s22, {DIAG_OFF}
    s_addc_u32 s23, s23, 0
    s_load_dwordx8 s[24:31], s[22:23], 0
    s_waitcnt lgkmcnt(0)
    """)
    if m == 1: a("s_mov_b32 s12, 0")
    if m == 2: a("s_sub_u32 s12, s10, s24")
    if m == 3: a("s_sub_u32 s12, s25, s24")
    if m == 4: a("s_sub_u32 s12, s26, s25")
    if m == 5: a("s_sub_u32 s12, s27, s26")
    if m == 6: a("s_sub_u32 s12, s29, s28\ns_mul_i32 s12, s12, 6554\ns_lshr_b32 s12, s12, 16")
    a("""
    s_min_u32 s12, s12, 20000
DG_SPIN:
    s_memrealtime s[14:15]
    s_waitcnt lgkmcnt(0)
    s_sub_u32 s14, s14, s10
    s_cmp_lt_u32 s14, s12
    s_cbranch_scc1 DG_SPIN
DG_END:
    s_endpgm
    """)
    return a.text(), 8, 40


def cstamp(a, i):
    if OPT["stamps"]:
        a(f"""
        s_memtime s[98:99]
        s_waitcnt lgkmcnt(0)
        s_mov_b32 s{96+i}, s98
        """)


def stamp_init(a):
    if OPT["stamps"]:
        for i in range(14):
            a(f"s_mov_b32 s{84+i}, 0")


def stamp_flush(a, kern):
    if OPT["stamps"]:
        a(f"""
        s_mov_b64 exec, -1
        s_mov_b32 s4, s22
        s_mov_b32 s5, s23
        s_mov_b32 s6, 0x8000000
        s_mov_b32 s7, 0x00020000
        s_lshl_b32 s8, s2, 4
        s_add_u32 s8, s8, s3
        s_lshl_b32 s8, s8, 6
        s_add_u32 s8, s8, {STAMP_OFF + kern * 256 * 16 * 64}
        v_mov_b32 v0, 0
        s_mov_b64 exec, 1
        """)
        for i in range(14):
            a(f"v_mov_b32 v1, s{84+i}")
            a(f"buffer_store_dword v1, v0, s[4:7], s8 offen offset:{4*i}")


def srd(a, d, lo, hi, size, stride=0):
    a(f"s_mov_b32 s{d}, s{lo}")
    if stride:
        a(f"s_and_b32 s{d+1}, s{hi}, 0xffff")
        a(f"s_or_b32 s{d+1}, s{d+1}, {stride << 16:#x}")
    else:
        a(f"s_mov_b32 s{d+1}, s{hi}")
    a(f"s_mov_b32 s{d+2}, {size}")
    a(f"s_mov_b32 s{d+3}, 0x00020000")


def wave_scan(a, regs):
    steps = ["row_shr:1 row_mask:0xf", "row_shr:2 row_mask:0xf", "row_shr:4 row_mask:0xf", "row_shr:8 row_mask:0xf",
             "row_bcast:15 row_mask:0xa", "row_bcast:31 row_mask:0xc"]
    for st in steps:
        a("s_nop 1" if len(regs) == 1 else "s_nop 0")
        for r in regs:
            a(f"v_add_u32_dpp v{r}, v{r}, v{r} {st} bank_mask:0xf")


def row_max(a, r):
    for sh in (1, 2, 4, 8):
        a("s_nop 1")
        a(f"v_max_f32_dpp v{r}, v{r}, v{r} row_shr:{sh} row_mask:0xf bank_mask:0xf")


def common_ids(a):
    a("""
    v_lshrrev_b32 v1, 6, v0
    v_and_b32 v2, 15, v0               ; l16
    v_readfirstlane_b32 s3, v1         ; wave
    v_and_b32 v1, 63, v0               ; lane
    v_lshrrev_b32 v3, 4, v1            ; g
    """)


def dma_w_setup(a, vdst, vt, s0, s1):
    a(f"""
    s_and_b32 s{s0}, s3, 1
    s_lshl_b32 s{s0}, s{s0}, 1
    s_and_b32 s{s1}, s3, 2
    s_lshl_b32 s{s1}, s{s1}, 2
    s_or_b32 s{s0}, s{s0}, s{s1}
    s_and_b32 s{s1}, s3, 4
    s_or_b32 s{s0}, s{s0}, s{s1}
    s_and_b32 s{s1}, s3, 8
    s_lshl_b32 s{s1}, s{s1}, 3
    s_or_b32 s{s0}, s{s0}, s{s1}         ; k0
    s_lshl_b32 s{s0}, s{s0}, 9           ; k0*512
    s_and_b32 s{s1}, s3, 3
    s_lshl_b32 s{s1}, s{s1}, 6           ; (w&3)<<1 <<5
    v_lshrrev_b32 v{vt}, 5, v1           ; L>>5
    v_mul_u32_u24 v{vt}, 544, v{vt}      ; (L>>5)*512 + (L>>5)<<5
    v_and_b32 v{vdst}, 31, v1
    v_lshlrev_b32 v{vdst}, 4, v{vdst}    ; j*16
    v_xor_b32 v{vdst}, v{vt}, v{vdst}
    v_xor_b32 v{vdst}, s{s1}, v{vdst}
    """)


def dma_w_issue(a, vsrc, srdw, s0, s1, goff, wb):
    for i in range(4):
        a(f"s_add_u32 m0, s{s0}, {wb + i * 8192}")
        a(f"s_add_u32 s{s1}, s{s0}, {goff + i * 8192}")
        a(f"buffer_load_dwordx4 v{vsrc}, s[{srdw}:{srdw+3}], s{s1} offen lds")


def dma_x(a, srdx, srow0, vo, vt, st, xb):
    a(f"""
    s_and_b32 s{st}, s3, 1
    s_lshl_b32 s{st}, s{st}, 3
    v_add_u32 v{vt}, s{st}, v3           ; 8*(w&1)+g
    v_xor_b32 v{vt}, v2, v{vt}
    s_lshl_b32 s{st}, s3, 3
    s_add_u32 s{st}, s{st}, s{srow0}
    v_add_u32 v{vo}, s{st}, v3           ; row
    v_lshlrev_b32 v{vo}, 8, v{vo}
    v_lshl_add_u32 v{vo}, v{vt}, 4, v{vo}
    s_lshl_b32 s{st}, s3, 11
    s_add_u32 m0, s{st}, {xb}
    v_xor_b32 v{vt}, 64, v{vo}
    buffer_load_dwordx4 v{vo}, s[{srdx}:{srdx+3}], 0 offen lds
    buffer_load_dwordx4 v{vt}, s[{srdx}:{srdx+3}], 0 offen offset:1024 lds
    """)


def gemm_addr(a, vb, vxa, vt, st, wb, xb):
    a(f"""
    v_lshrrev_b32 v{vt}, 2, v2           ; r
    v_mul_u32_u24 v{vb}, 544, v{vt}      ; r*512 + r*32
    v_lshl_add_u32 v{vb}, v3, 12, v{vb}  ; + g*8*512
    v_and_b32 v{vt}, 1, v3
    v_lshl_add_u32 v{vb}, v{vt}, 7, v{vb} ; + (g&1)<<2<<5
    v_and_b32 v{vt}, 3, v2
    v_lshl_add_u32 v{vb}, v{vt}, 3, v{vb} ; + c*8
    s_and_b32 s{st}, s3, 7
    s_lshl_b32 s{st}, s{st}, 6
    v_xor_b32 v{vb}, s{st}, v{vb}
    v_add_u32 v{vb}, {wb}, v{vb}
    v_xor_b32 v{vb+1}, 32, v{vb}
    v_xor_b32 v{vt}, v2, v3
    v_lshlrev_b32 v{vt}, 4, v{vt}
    v_lshl_add_u32 v{vxa}, v2, 8, v{vt}
    s_lshr_b32 s{st}, s3, 3
    s_lshl_b32 s{st}, s{st}, 14
    s_add_u32 s{st}, s{st}, {xb}
    v_add_u32 v{vxa}, s{st}, v{vxa}
    v_xor_b32 v{vxa+1}, 64, v{vxa}
    v_xor_b32 v{vxa+2}, 0x80, v{vxa}
    v_xor_b32 v{vxa+3}, 0xc0, v{vxa}
    """)


def gemm_parts(a, vW, vX, vAcc, vb, vxa, cinit, acc2=False):
    def wreads():
        for ks in range(4):
            for aa in range(2):
                for h in range(2):
                    r = vW + 16 * aa + 4 * ks + 2 * h
                    a(f"ds_read_b64_tr_b16 v[{r}:{r+1}], v{vb+aa} offset:{ks * 16384 + h * 2048}")

    def xreads(i):
        for ks in range(4):
            r = vX + 16 * (i & 1) + 4 * ks
            a(f"ds_read_b128 v[{r}:{r+3}], v{vxa+ks} offset:{4096 * i}")

    def mf(i):
        for ks in range(4):
            for aa in range(2):
                acc = vAcc + 8 * ((i & 1) if acc2 else i) + 4 * aa
                c = cinit(aa) if ks == 0 else f"v[{acc}:{acc+3}]"
                w = vW + 16 * aa + 4 * ks
                x = vX + 16 * (i & 1) + 4 * ks
                a(f"v_mfma_f32_16x16x32_bf16 v[{acc}:{acc+3}], v[{w}:{w+3}], v[{x}:{x+3}], {c}")
    return wreads, xreads, mf


K1_HIST = 0
K1_START = K1_HIST + 1024
K1_PM = K1_START + 1024
K1_STAGE = K1_PM + 256
K1_XB = 15360
K1_WB = K1_XB + 32768
assert K1_STAGE + CHS <= K1_XB
K1_LDS = K1_WB + 65536
QCAP = 585


def gen_k1():
    a = A()
    vW, vX, vAcc = 20, 52, 84
    vb, vxa = 4, 16
    sX, sW1, sDST, sSRC, sE, sW2, sWS = 36, 40, 44, 48, 52, 56, 60
    pst, rst = OPT["pst"], OPT["rst"]
    a("""
    s_cmp_ge_u32 s2, 256
    s_cbranch_scc1 K1_END
    s_load_dwordx16 s[4:19], s[0:1], 0
    s_load_dwordx2 s[22:23], s[0:1], 80
    """)
    stamp_init(a)
    stamp(a, 0)
    common_ids(a)
    a(f"""
    s_mul_i32 s29, s2, {CH}
    s_sub_u32 s30, {E}, s29
    s_min_u32 s30, s30, {CH}
    s_lshr_b32 s30, s30, 1
    v_lshl_add_u32 v6, v0, 1, s29        ; first edge index
    v_lshlrev_b32 v7, 1, v6
    v_lshlrev_b32 v6, 2, v6
    v_cmp_gt_u32 s[32:33], s30, v0
    v_mov_b32 v11, 0
    v_lshlrev_b32 v12, 2, v0
    v_cmp_gt_u32 vcc, 256, v0
    s_mov_b64 exec, vcc
    ds_write_b32 v12, v11 offset:{K1_HIST}
    ds_write_b32 v11, v11 offset:{K1_PM}
    s_mov_b64 exec, -1
    v_lshlrev_b32 v13, 3, v1
    s_mov_b32 s68, {256 * 512}
    s_mul_i32 s26, s2, {NB}              ; first row of bucket
    s_waitcnt lgkmcnt(0)
    """)
    diag(a, 0, "K1_DG0")
    srd(a, sDST, 10, 11, E * 4)
    srd(a, sE, 6, 7, E * 2)
    srd(a, sSRC, 8, 9, E * 4)
    srd(a, sW1, 12, 13, 257 * 512)
    a(f"""
    buffer_load_dwordx2 v[14:15], v13, s[{sW1}:{sW1+3}], s68 offen
    s_mov_b64 exec, s[32:33]
    buffer_load_dwordx2 v[118:119], v6, s[{sDST}:{sDST+3}], 0 offen
    buffer_load_dword v10, v7, s[{sE}:{sE+3}], 0 offen
    buffer_load_dwordx2 v[8:9], v6, s[{sSRC}:{sSRC+3}], 0 offen
    s_mov_b64 exec, -1
    """)
    dma_w_setup(a, 4, 5, 24, 25)
    srd(a, sX, 4, 5, N * 256)
    srd(a, sWS, 22, 23, SCR_OFF)
    a("s_barrier")
    a("s_cmp_ge_u32 s3, 14")
    a("s_cbranch_scc1 K1_NOX")
    dma_x(a, sX, 26, 5, 6, 27, K1_XB)
    dma_w_issue(a, 4, sW1, 24, 25, 0, K1_WB)
    a("s_waitcnt vmcnt(9)")
    a("s_branch K1_WM")
    a("K1_NOX:")
    dma_w_issue(a, 4, sW1, 24, 25, 0, K1_WB)
    a("s_waitcnt vmcnt(7)")
    a(f"""
K1_WM:
    v_and_b32 v14, 0x7fff7fff, v14
    v_and_b32 v15, 0x7fff7fff, v15
    v_pk_max_u16 v14, v14, v15
    v_lshlrev_b32 v15, 16, v14
    v_and_b32 v14, 0xffff0000, v14
    v_max_u32 v14, v14, v15
    s_mov_b32 s64, 42800
    """)
    for st in ("row_shr:1 row_mask:0xf", "row_shr:2 row_mask:0xf", "row_shr:4 row_mask:0xf", "row_shr:8 row_mask:0xf",
               "row_bcast:15 row_mask:0xa", "row_bcast:31 row_mask:0xc"):
        a("s_nop 1")
        a(f"v_max_u32_dpp v14, v14, v14 {st} bank_mask:0xf")
    a(f"""
    v_mul_f32 v14, 0x40b8aa3b, v14       ; 4*log2(e)
    s_cmp_ge_u32 s3, 13
    s_cbranch_scc1 K1_NOH
    v_readlane_b32 s67, v14, 63
    s_waitcnt vmcnt(6)
    """)
    stamp(a, 1)
    a(f"""
    s_mov_b64 exec, s[32:33]
    v_mul_u32_u24 v116, s64, v118
    v_mul_u32_u24 v117, s64, v119
    v_lshrrev_b32 v116, 22, v116         ; bucket
    v_lshrrev_b32 v117, 22, v117
    v_mul_u32_u24 v125, {NB}, v116
    v_mul_u32_u24 v126, {NB}, v117
    v_lshlrev_b32 v116, 2, v116
    v_lshlrev_b32 v117, 2, v117
    v_sub_u32 v125, v118, v125           ; dloc
    v_sub_u32 v126, v119, v126
    v_mov_b32 v127, 1
    ds_add_rtn_u32 v118, v116, v127 offset:{K1_HIST}
    ds_add_rtn_u32 v119, v117, v127 offset:{K1_HIST}
    v_lshlrev_b32 v121, 16, v10
    v_and_b32 v123, 0xffff0000, v10
    v_fma_f32 v120, |v121|, s67, 1.0
    v_fma_f32 v122, |v123|, s67, 1.0
    v_lshl_or_b32 v121, v125, 2, v121    ; e<<16 | dloc*4
    v_lshl_or_b32 v123, v126, 2, v123
    v_cvt_u32_f32 v120, v120
    v_cvt_u32_f32 v122, v122
    v_min_u32 v120, {QCAP}, v120
    v_min_u32 v122, {QCAP}, v122
    v_lshl_or_b32 v120, v120, 16, v8     ; src | q<<16
    v_lshl_or_b32 v122, v122, 16, v9
    s_mov_b64 exec, -1
K1_NOH:
    """)
    if OPT["tlb"]:
        sh = OPT["tlb"]
        a(f"""
    s_cmp_lg_u32 s3, 13
    s_cbranch_scc1 K1_NOTLB
    s_load_dwordx2 s[20:21], s[0:1], 64
    v_lshlrev_b32 v20, {sh}, v1
    buffer_load_dword v21, v20, s[{sWS}:{sWS+3}], 0 offen
    v_mov_b32 v22, 0
    global_load_dword v23, v22, s[14:15]
    global_load_dword v24, v22, s[16:17]
    global_load_dword v25, v22, s[18:19]
    s_waitcnt lgkmcnt(0)
        """)
        srd(a, 56, 20, 21, N * 256)
        a(f"""
    buffer_load_dword v26, v20, s[56:59], 0 offen
K1_NOTLB:
        """)
    a("""
    s_waitcnt lgkmcnt(0)
    s_barrier
    """)
    stamp(a, 2)
    a(f"""
    s_cmp_lg_u32 s3, 15
    s_cbranch_scc1 K1_NOSCAN
    v_lshlrev_b32 v6, 4, v1
    ds_read_b128 v[52:55], v6 offset:{K1_HIST}
    s_and_b32 s24, s2, 7
    s_lshl_b32 s24, s24, 5
    s_lshr_b32 s68, s2, 3
    s_add_u32 s24, s24, s68
    s_lshl_b32 s24, s24, 2
    s_add_u32 s24, s24, {TAB_OFF}
    v_lshlrev_b32 v7, 12, v1
    s_waitcnt lgkmcnt(0)
    v_add_u32 v57, v52, v53              ; p2
    v_add_u32 v58, v57, v54              ; p3
    v_add_u32 v59, v58, v55              ; tot
    v_mov_b32 v60, v59
    """)
    wave_scan(a, [60])
    a(f"""
    v_sub_u32 v60, v60, v59              ; base
    v_add_u32 v61, v60, v52
    v_add_u32 v62, v60, v57
    v_add_u32 v63, v60, v58
    v_lshlrev_b32 v64, 3, v60
    v_lshlrev_b32 v65, 3, v61
    v_lshlrev_b32 v66, 3, v62
    v_lshlrev_b32 v67, 3, v63
    ds_write_b128 v6, v[64:67] offset:{K1_START}
    v_lshl_or_b32 v60, v52, 16, v60
    v_lshl_or_b32 v61, v53, 16, v61
    v_lshl_or_b32 v62, v54, 16, v62
    v_lshl_or_b32 v63, v55, 16, v63
    s_waitcnt lgkmcnt(0)
    s_barrier
    s_waitcnt vmcnt(0)
    buffer_store_dword v60, v7, s[{sWS}:{sWS+3}], s24 offen {rst}
    buffer_store_dword v61, v7, s[{sWS}:{sWS+3}], s24 offen offset:1024 {rst}
    buffer_store_dword v62, v7, s[{sWS}:{sWS+3}], s24 offen offset:2048 {rst}
    buffer_store_dword v63, v7, s[{sWS}:{sWS+3}], s24 offen offset:3072 {rst}
    s_branch K1_ADDR
K1_NOSCAN:
    s_cmp_lg_u32 s3, 14
    s_cbranch_scc1 K1_SCAT
    """)
    srd(a, sW2, 16, 17, 65536)
    a(f"""
    s_lshr_b32 s68, s2, 2                ; F = G>>6
    s_and_b32 s69, s2, 3                 ; g' = (G&63)>>4
    s_and_b32 s31, s68, 7
    s_lshl_b32 s31, s31, 5
    s_lshl_b32 s69, s69, 2
    s_add_u32 s31, s31, s69
    s_lshl_b32 s31, s31, 8               ; *256 bytes
    s_lshr_b32 s69, s68, 4               ; cp
    s_lshl_b32 s69, s69, 5
    s_bfe_u32 s68, s68, 0x10003          ; a
    s_lshl_b32 s68, s68, 2
    s_add_u32 s68, s68, s69              ; 32cp + 4a
    v_lshrrev_b32 v13, 2, v2
    v_lshlrev_b32 v13, 3, v13            ; 8*(m>>2)
    v_and_b32 v14, 3, v2
    v_add3_u32 v13, v13, v14, s68        ; col
    v_lshlrev_b32 v13, 1, v13
    s_mov_b64 exec, 0xffff
    """)
    for t in range(8):
        if t == 4:
            a("s_add_u32 s31, s31, 4096")
        r = vW + (t >> 1) + 4 * (t & 1)
        a(f"buffer_load_ushort v{r}, v13, s[{sW2}:{sW2+3}], s31 offen offset:{256 * (t & 3)}")
    a(f"""
    s_barrier
    s_lshl_b32 s68, s2, 8
    s_add_u32 s68, s68, {W2F_OFF}
    v_lshlrev_b32 v13, 4, v2
    s_waitcnt vmcnt(0)
    v_lshl_or_b32 v{vAcc}, v{vW+4}, 16, v{vW}
    v_lshl_or_b32 v{vAcc+1}, v{vW+5}, 16, v{vW+1}
    v_lshl_or_b32 v{vAcc+2}, v{vW+6}, 16, v{vW+2}
    v_lshl_or_b32 v{vAcc+3}, v{vW+7}, 16, v{vW+3}
    buffer_store_dwordx4 v[{vAcc}:{vAcc+3}], v13, s[{sWS}:{sWS+3}], s68 offen {rst}
    s_mov_b64 exec, -1
    s_branch K1_ADDR
K1_SCAT:
    s_barrier
    s_mov_b64 exec, s[32:33]
    ds_read_b32 v116, v116 offset:{K1_START}
    ds_read_b32 v117, v117 offset:{K1_START}
    s_waitcnt lgkmcnt(0)
    v_lshl_add_u32 v116, v118, 3, v116
    v_lshl_add_u32 v117, v119, 3, v117
    ds_write_b64 v116, v[120:121] offset:{K1_STAGE}
    ds_write_b64 v117, v[122:123] offset:{K1_STAGE}
    s_mov_b64 exec, -1
K1_ADDR:
    """)
    gemm_addr(a, vb, vxa, 11, 24, K1_WB, K1_XB)
    a(f"""
    s_mov_b32 s34, {NLOG2E:#x}
    s_mov_b32 s65, 0x07060100
    s_mov_b32 s66, 0x07060302
    s_lshr_b32 s27, s3, 3
    s_lshl_b32 s27, s27, 6               ; 64*rh
    s_sub_u32 s28, {N}, s26
    s_min_u32 s28, s28, {NB}
    s_sub_u32 s28, s28, s27              ; valid rows from this wave's first row
    s_add_u32 s27, s27, s26
    v_add_u32 v11, s27, v2
    v_lshlrev_b32 v11, 8, v11
    s_and_b32 s24, s3, 3
    s_lshl_b32 s24, s24, 2
    v_add_u32 v12, s24, v3
    v_lshl_add_u32 v11, v12, 4, v11
    s_bfe_u32 s25, s3, 0x10002
    s_mul_i32 s25, s25, {PS}
    v_mov_b32 v12, 0
    v_lshlrev_b32 v6, 4, v0
    v_cmp_gt_u32 vcc, {CHS // 16}, v0
    s_mov_b64 s[30:31], vcc
    s_mul_i32 s24, s2, {CHS}
    s_add_u32 s24, s24, {REC_OFF}
    s_cmp_ge_u32 s3, 14
    s_cbranch_scc1 K1_B0
    s_waitcnt vmcnt(0)
K1_B0:
    s_waitcnt lgkmcnt(0)
    """)
    stamp(a, 3)
    a("s_barrier")
    stamp(a, 4)
    cstamp(a, 0)
    wreads, xreads, mf = gemm_parts(a, vW, vX, vAcc, vb, vxa, lambda aa: "0")

    def epi(i):
        lo = vAcc + 8 * i; hi = lo + 4
        for r in range(8):
            a(f"v_fma_f32 v{lo+r}, v{lo+r}, s34, 0")
        a(f"v_cvt_pk_bf16_f32 v14, v{lo}, v{lo+1}")
        a(f"v_cvt_pk_bf16_f32 v15, v{lo+2}, v{lo+3}")
        for r in range(0, 8, 2):
            a(f"v_max3_f32 v12, |v{lo+r}|, |v{lo+r+1}|, v12")
        for r in range(4):
            a(f"v_add_u32 v{hi+r}, 0x8000, v{hi+r}")
        for r in range(4):
            a(f"v_sub_u32_sdwa v{hi+r}, v{hi+r}, v{14+(r>>1)} clamp dst_sel:DWORD dst_unused:UNUSED_PAD src0_sel:DWORD src1_sel:WORD_{r&1}")
        for r in range(4):
            a(f"v_perm_b32 v{lo+r}, v{hi+r}, v{14+(r>>1)}, s{65+(r&1)}")
        a(f"v_cmp_gt_i32 vcc, s28, v2")
        a(f"s_mov_b64 exec, vcc")
        a(f"buffer_store_dwordx4 v[{lo}:{lo+3}], v11, s[{sWS}:{sWS+3}], s25 offen {pst}")
        a(f"s_mov_b64 exec, -1")
        a("s_sub_u32 s28, s28, 16")
        a("s_add_u32 s25, s25, 4096")

    a(f"ds_read_b128 v[116:119], v6 offset:{K1_STAGE}")
    wreads(); xreads(0); xreads(1)
    a("s_waitcnt lgkmcnt(4)")
    a(f"""
    s_mov_b64 exec, s[30:31]
    buffer_store_dwordx4 v[116:119], v6, s[{sWS}:{sWS+3}], s24 offen {rst}
    s_mov_b64 exec, -1
    """)
    mf(0)
    xreads(2)
    a("s_waitcnt lgkmcnt(4)")
    mf(1)
    xreads(3)
    epi(0)
    a("s_waitcnt lgkmcnt(4)")
    mf(2)
    epi(1)
    a("""
    s_cmp_ge_u32 s3, 8
    s_cbranch_scc1 K1_RH1
    s_waitcnt lgkmcnt(0)
    """)
    mf(3)
    epi(2)
    epi(3)
    a(f"""
    s_branch K1_GD
K1_RH1:
    """)
    epi(2)
    if OPT["warm"]:
        a(f"""
    s_cmp_lg_u32 s3, 8
    s_cbranch_scc1 K1_GD
    s_lshr_b32 s68, s2, 3
    s_lshl_b32 s68, s68, 11
    s_add_u32 s68, s68, {128 * 512}
    v_lshlrev_b32 v13, 5, v1
    buffer_load_dword v14, v13, s[{sW1}:{sW1+3}], s68 offen
        """)
    a("K1_GD:")
    stamp(a, 5)
    cstamp(a, 1)
    row_max(a, 12)
    a(f"""
    v_mov_b32 v4, 0
    s_mov_b32 exec_lo, 0x80008000
    s_mov_b32 exec_hi, 0x80008000
    ds_max_u32 v4, v12 offset:{K1_PM}
    s_mov_b64 exec, -1
    s_waitcnt lgkmcnt(0)
    s_barrier
    s_cmp_lg_u32 s3, 15
    s_cbranch_scc1 K1_FIN
    ds_read_b32 v12, v4 offset:{K1_PM}
    s_lshl_b32 s24, s2, 2
    s_add_u32 s24, s24, {PMAX_OFF}
    s_mov_b64 exec, 1
    s_waitcnt lgkmcnt(0)
    buffer_store_dword v12, v4, s[{sWS}:{sWS+3}], s24 offen {rst}
K1_FIN:
    """)
    stamp(a, 6)
    if OPT["stamps"]:
        a("s_waitcnt vmcnt(0)")
    stamp(a, 7)
    stamp_flush(a, 0)
    a("""
K1_END:
    s_endpgm
    """)
    return a.text(), 128, (102 if OPT["stamps"] or OPT["diag"] else 72)


ROWS = 1040
CNT = 0
DH = CNT + 512
DEGT = DH + 256
POS = DEGT + 512
INFO = POS + 512
MISC = INFO + 1600
WT = MISC + 64
LIST = (WT + 1024 + 255) // 256 * 256
LISTCAP = 6144
LCAP = 60
LROW = LCAP * 8
QH = (LIST + LISTCAP * 8 + 128 + 255) // 256 * 256
K2_LDS = QH + 100 * ROWS
assert K2_LDS <= 163840
assert MISC % 16 == 0 and INFO % 16 == 0 and WT % 16 == 0


def gen_k2():
    U = OPT["U"]
    a = A()
    vW, vX, vAcc = 20, 52, 84
    vRec, vRank, vPos = 100, 112, 118
    vb, vxa, vB1 = 4, 6, 10
    sX, sW1, sB1, sWS, sP, sOUT, sB2, sSCR = 36, 40, 44, 48, 52, 56, 60, 64
    sROW0 = 26
    sBATCH = 68; sNBATCH = 69; sRECB = 70
    sM = 72
    a("""
    s_cmp_ge_u32 s2, 256
    s_cbranch_scc1 K2_END
    s_load_dwordx2 s[22:23], s[0:1], 80
    s_load_dwordx16 s[4:19], s[0:1], 0
    s_load_dwordx2 s[20:21], s[0:1], 64
    """)
    stamp_init(a)
    stamp(a, 0)
    common_ids(a)
    a(f"""
    v_lshrrev_b32 v126, 2, v0
    v_and_b32 v7, 0x3fc, v0
    s_lshl_b32 s30, s2, 10
    s_add_u32 s30, s30, {TAB_OFF}
    s_mul_i32 s{sROW0}, s2, {NB}
    v_mov_b32 v4, 0
    v_lshlrev_b32 v5, 2, v0
    v_cmp_gt_u32 vcc, {(POS - CNT) // 4}, v0
    s_mov_b64 exec, vcc
    ds_write_b32 v5, v4 offset:{CNT}
    s_mov_b64 exec, 31
    v_cmp_eq_u32 vcc, 4, v1
    v_lshlrev_b32 v5, 2, v1
    s_nop 0
    v_cndmask_b32 v6, 0, {OPT['nw']}, vcc
    ds_write_b32 v5, v6 offset:{MISC}
    s_mov_b64 exec, -1
    s_waitcnt lgkmcnt(0)
    """)
    if OPT["diag"]:
        a("v_mov_b32 v125, v126")
    diag(a, 1, "K2_DG0")
    if OPT["diag"]:
        a("v_mov_b32 v126, v125")
    srd(a, sWS, 22, 23, SCR_OFF)
    a(f"buffer_load_dword v124, v7, s[{sWS}:{sWS+3}], s30 offen")
    dma_w_setup(a, 4, 5, 24, 25)
    srd(a, sX, 4, 5, N * 256)
    srd(a, sW1, 12, 13, 257 * 512)
    a("s_barrier")
    a("s_cmp_ge_u32 s3, 14")
    a("s_cbranch_scc1 K2_AUXLD")
    dma_x(a, sX, sROW0, 5, 6, 27, LIST)
    a(f"""
    s_branch K2_WLD
K2_AUXLD:
    v_subrev_u32 v123, 896, v0           ; 0..127
    v_lshlrev_b32 v8, 2, v123
    v_lshlrev_b32 v9, 3, v123
    s_mov_b32 s28, {256 * 512}
    s_mov_b32 s29, {PMAX_OFF}
    buffer_load_dword v122, v8, s[{sW1}:{sW1+3}], s28 offen
    buffer_load_dwordx2 v[120:121], v9, s[{sWS}:{sWS+3}], s29 offen
K2_WLD:
    """)
    dma_w_issue(a, 4, sW1, 24, 25, 128 * 512, QH)
    srd(a, sB1, 14, 15, 512)
    a(f"""
    s_and_b32 s24, s3, 7
    s_lshl_b32 s24, s24, 6
    v_lshlrev_b32 v5, 3, v3
    buffer_load_dwordx2 v[112:113], v5, s[{sB1}:{sB1+3}], s24 offen
    buffer_load_dwordx2 v[114:115], v5, s[{sB1}:{sB1+3}], s24 offen offset:32
    v_and_b32 v125, 31, v126
    v_lshrrev_b32 v126, 5, v126
    v_lshl_or_b32 v126, v125, 3, v126    ; chunk
    v_mul_u32_u24 v126, {CHS}, v126
    v_and_b32 v125, 3, v0
    v_lshlrev_b32 v125, 1, v125          ; slot0 = 2j
    s_mov_b32 s{sRECB}, {REC_OFF}
    s_mov_b32 s{sBATCH}, 0
    s_waitcnt vmcnt(8)
    """)
    stamp(a, 1)
    a(f"""
    v_and_b32 v7, 0xffff, v124           ; start
    v_lshrrev_b32 v124, 16, v124         ; cnt
    v_add_u32 v7, v7, v125
    v_lshl_add_u32 v126, v7, 3, v126
    v_sub_u32 v127, v124, v125
    """)

    def rec_loads():
        for k in range(6):
            a(f"v_cmp_lt_i32 s[{sM+2*k}:{sM+2*k+1}], {8*(k>>1)+(k&1)}, v127")
        for m in range(3):
            a(f"s_mov_b64 exec, s[{sM+4*m}:{sM+4*m+1}]")
            a(f"buffer_load_dwordx4 v[{vRec+4*m}:{vRec+4*m+3}], v126, s[{sWS}:{sWS+3}], s{sRECB} offen offset:{64*m}")
        a("s_mov_b64 exec, -1")

    def hist(L):
        a("s_mov_b32 s35, 0xffff0000")
        for k in range(6):
            m, o = k >> 1, k & 1
            r0 = vRec + 4 * m + 2 * o
            a(f"s_mov_b64 exec, s[{sM+2*k}:{sM+2*k+1}]")
            if k in (2, 4):
                a(f"s_cbranch_execz {L}_HISTDONE")
            a(f"v_and_b32 v{vPos+k}, 0xffff, v{r0+1}")
            a(f"v_and_or_b32 v8, v{r0}, s35, 1")
            a(f"ds_add_rtn_u32 v{vRank+k}, v{vPos+k}, v8 offset:{CNT}")
            a(f"v_and_b32 v{r0}, 0xffff, v{r0}")
            a(f"v_and_b32 v{r0+1}, s35, v{r0+1}")
        a(f"{L}_HISTDONE:")
        a("s_mov_b64 exec, -1")

    def scanrank(L, wscan, wrank, degt=True):
        a(f"""
    s_sub_u32 s24, s3, {wscan}
    s_cmp_ge_u32 s24, 2
    s_cbranch_scc1 {L}_SRDONE
    v_lshlrev_b32 v8, 2, v1
    ds_read_b32 v78, v8 offset:{CNT}
    ds_read_b32 v79, v8 offset:{CNT + 256}
    v_mov_b32 v9, 1
    s_waitcnt lgkmcnt(0)
    v_and_b32 v68, 0xffff, v78
    v_and_b32 v69, 0xffff, v79
    s_cmp_eq_u32 s3, {wscan}
    s_cbranch_scc1 {L}_SCAN
    v_mov_b32 v77, 0
    ds_write_b32 v8, v77 offset:{DH}
    v_min_u32 v73, 63, v68
    v_min_u32 v74, 63, v69
    v_sub_u32 v73, 63, v73
    v_sub_u32 v74, 63, v74
    v_lshlrev_b32 v73, 2, v73
    v_lshlrev_b32 v74, 2, v74
    ds_add_rtn_u32 v75, v73, v9 offset:{DH}
    s_mov_b32 exec_hi, 0xf               ; nodes 64..99
    ds_add_rtn_u32 v76, v74, v9 offset:{DH}
    s_mov_b64 exec, -1
    ds_read_b32 v77, v8 offset:{DH}
    s_waitcnt lgkmcnt(0)
{L}_SCAN:
    v_mov_b32 v70, v68
    v_mov_b32 v71, v69
    v_mov_b32 v72, v77
        """)
        wave_scan(a, [70, 71, 72])
        a(f"""
    v_mov_b32 v9, {LIST}
    v_readlane_b32 s24, v70, 63
    v_sub_u32 v70, v70, v68
    v_sub_u32 v71, v71, v69
    v_add_u32 v71, s24, v71
    v_lshl_add_u32 v80, v70, 3, v9
    v_lshl_add_u32 v4, v71, 3, v9
    s_cmp_eq_u32 s3, {wscan}
    s_cbranch_scc0 {L}_RANK
    ds_write_b32 v8, v80 offset:{POS}
    ds_write_b32 v8, v4 offset:{POS + 256}
    {f"ds_add_u32 v8, v68 offset:{DEGT}" if degt else ""}
    {f"ds_add_u32 v8, v69 offset:{DEGT + 256}" if degt else ""}
    s_branch {L}_SRDONE
{L}_RANK:
    v_sub_u32 v72, v72, v77
    ds_bpermute_b32 v73, v73, v72
    ds_bpermute_b32 v74, v74, v72
    v_mov_b32 v81, v68
    v_mul_u32_u24 v82, {ROWS}, v1
    v_add_u32 v82, {QH}, v82
    v_lshrrev_b32 v83, 16, v78
    v_mov_b32 v5, v69
    v_add_u32 v6, {64 * ROWS}, v82
    v_lshrrev_b32 v7, 16, v79
    s_waitcnt lgkmcnt(0)
    v_add_lshl_u32 v73, v73, v75, 4
    v_add_lshl_u32 v74, v74, v76, 4
    ds_write_b128 v73, v[80:83] offset:{INFO}
    s_mov_b32 exec_hi, 0xf
    ds_write_b128 v74, v[4:7] offset:{INFO}
    s_mov_b64 exec, -1
{L}_SRDONE:
        """)

    def fastrank(L, wrank):
        a(f"""
    s_cmp_lg_u32 s3, {wrank}
    s_cbranch_scc1 {L}_FRDONE
    s_setprio 3
    v_lshlrev_b32 v8, 2, v1
    ds_read_b32 v78, v8 offset:{CNT}
    ds_read_b32 v79, v8 offset:{CNT + 256}
    v_mov_b32 v9, 1
    v_mul_u32_u24 v80, {LROW}, v1
    v_add_u32 v80, {LIST}, v80
    v_add_u32 v4, {64 * LROW}, v80
    v_mul_u32_u24 v82, {ROWS}, v1
    v_add_u32 v82, {QH}, v82
    v_add_u32 v6, {64 * ROWS}, v82
    s_waitcnt lgkmcnt(0)
    v_and_b32 v81, 0xffff, v78
    v_and_b32 v5, 0xffff, v79
    v_min_u32 v73, 63, v81
    v_min_u32 v74, 63, v5
    v_sub_u32 v73, 63, v73
    v_sub_u32 v74, 63, v74
    v_lshlrev_b32 v73, 2, v73
    v_lshlrev_b32 v74, 2, v74
    ds_add_rtn_u32 v75, v73, v9 offset:{DH}
    s_mov_b32 exec_hi, 0xf               ; nodes 64..99
    ds_add_rtn_u32 v76, v74, v9 offset:{DH}
    s_mov_b64 exec, -1
    ds_read_b32 v77, v8 offset:{DH}
    ds_write_b32 v8, v81 offset:{DEGT}
    ds_write_b32 v8, v5 offset:{DEGT + 256}
    v_max_u32 v72, v81, v5
    v_cmp_lt_u32 vcc, {LCAP}, v72
    v_mov_b32 v71, 0
    s_mov_b64 exec, vcc
    ds_max_u32 v71, v72 offset:{MISC + 8}
    s_mov_b64 exec, -1
    v_lshrrev_b32 v83, 16, v78
    v_lshrrev_b32 v7, 16, v79
    s_waitcnt lgkmcnt(3)
    v_mov_b32 v72, v77
        """)
        wave_scan(a, [72])
        a(f"""
    v_sub_u32 v72, v72, v77
    ds_bpermute_b32 v73, v73, v72
    ds_bpermute_b32 v74, v74, v72
    s_waitcnt lgkmcnt(0)
    v_add_lshl_u32 v73, v73, v75, 4
    v_add_lshl_u32 v74, v74, v76, 4
    ds_write_b128 v73, v[80:83] offset:{INFO}
    s_mov_b32 exec_hi, 0xf
    ds_write_b128 v74, v[4:7] offset:{INFO}
    s_mov_b64 exec, -1
    s_setprio 0
{L}_FRDONE:
        """)

    def fastscatter(L):
        a(f"s_movk_i32 s24, {LROW // 4}")
        for k in range(6):
            m, o = k >> 1, k & 1
            r0 = vRec + 4 * m + 2 * o
            a(f"s_mov_b64 exec, s[{sM+2*k}:{sM+2*k+1}]")
            if k in (2, 4):
                a(f"s_cbranch_execz {L}_FSDONE")
            a(f"v_min_u16 v8, {LCAP - 1}, v{vRank+k}")
            a(f"v_mul_u32_u24 v9, s24, v{vPos+k}")
            a(f"v_mad_u32_u16 v9, v8, 8, v9")
            a(f"ds_write_b64 v9, v[{r0}:{r0+1}] offset:{LIST}")
        a(f"{L}_FSDONE:")
        a("s_mov_b64 exec, -1")

    def posread(L):
        for k in range(6):
            a(f"s_mov_b64 exec, s[{sM+2*k}:{sM+2*k+1}]")
            if k in (2, 4):
                a(f"s_cbranch_execz {L}_POSDONE")
            a(f"ds_read_b32 v{vPos+k}, v{vPos+k} offset:{POS}")
        a(f"{L}_POSDONE:")
        a("s_mov_b64 exec, -1")

    def scatter(L):
        for k in range(6):
            m, o = k >> 1, k & 1
            r0 = vRec + 4 * m + 2 * o
            a(f"s_mov_b64 exec, s[{sM+2*k}:{sM+2*k+1}]")
            if k in (2, 4):
                a(f"s_cbranch_execz {L}_SCATDONE")
            a(f"v_mad_u32_u16 v{vPos+k}, v{vRank+k}, 8, v{vPos+k}")
            a(f"ds_write_b64 v{vPos+k}, v[{r0}:{r0+1}]")
        a(f"{L}_SCATDONE:")
        a("s_mov_b64 exec, -1")

    if not OPT["reclate"]:
        rec_loads()
    gemm_addr(a, vb, vxa, 10, 24, QH, LIST)
    a(f"""
    s_mov_b32 s34, {NLOG2E:#x}
    s_lshr_b32 s27, s3, 3
    s_mul_i32 s27, s27, {64 * ROWS}
    s_bfe_u32 s24, s3, 0x10002
    s_lshl_b32 s24, s24, 9
    s_add_u32 s27, s27, s24
    s_and_b32 s24, s3, 3
    s_lshl_b32 s24, s24, 6
    s_add_u32 s27, s27, s24
    s_add_u32 s27, s27, {QH}
    v_mul_u32_u24 v18, {ROWS}, v2
    v_lshl_add_u32 v18, v3, 4, v18
    v_add_u32 v18, s27, v18
    v_mov_b32 v19, 0
    v_cmp_lt_u32 vcc, 24, v124
    s_mov_b64 exec, vcc
    ds_max_u32 v19, v124 offset:{MISC + 12}
    s_mov_b64 exec, -1
    s_waitcnt vmcnt({0 if OPT["reclate"] else 3})
    """)
    if OPT["reclate"]:
        rec_loads()
    for p in range(4):
        a(f"v_lshlrev_b32 v{vB1+2*p}, 16, v{112+p}")
        a(f"v_and_b32 v{vB1+2*p+1}, 0xffff0000, v{112+p}")
    a(f"""
    s_cmp_lt_u32 s3, 14
    s_cbranch_scc1 K2_B0
    v_lshlrev_b32 v24, 16, v122
    v_and_b32 v25, 0xffff0000, v122
    v_mul_f32 v24, s34, v24
    v_mul_f32 v25, s34, v25
    v_and_b32 v22, 1, v123
    v_lshlrev_b32 v22, 3, v22            ; (h&3)*4
    v_bfe_u32 v23, v123, 1, 2
    v_lshl_add_u32 v22, v23, 4, v22      ; + ((h>>2)&3)*16
    v_bfe_u32 v23, v123, 4, 2
    v_lshl_add_u32 v22, v23, 6, v22      ; + ((h>>5)&3)*64
    v_bfe_u32 v23, v123, 3, 1
    v_lshl_add_u32 v22, v23, 8, v22      ; + half*256
    v_lshrrev_b32 v23, 6, v123
    v_lshl_add_u32 v22, v23, 9, v22      ; + s*512
    ds_write_b64 v22, v[24:25] offset:{WT}
    v_max_f32 v21, v120, v121
    """)
    row_max(a, 21)
    a(f"""
    s_mov_b32 exec_lo, 0x80008000
    s_mov_b32 exec_hi, 0x80008000
    ds_max_u32 v19, v21 offset:{MISC}
    s_mov_b64 exec, -1
K2_B0:
    s_barrier
    """)
    stamp(a, 2)
    wreads, xreads, mf = gemm_parts(a, vW, vX, vAcc, vb, vxa, lambda aa: f"v[{vB1+4*aa}:{vB1+4*aa+3}]", acc2=True)

    def epi(i, last=False):
        o = vAcc + 8 * (i & 1)
        for r in range(8):
            a(f"v_mul_f32 v{o+r}, s34, v{o+r}")
        for r in range(0, 8, 2):
            a(f"v_max3_f32 v19, |v{o+r}|, |v{o+r+1}|, v19")
        if last:
            a("s_mov_b32 exec_lo, 0x00030003")
            a("s_mov_b32 exec_hi, 0x00030003")
        a(f"ds_write_b128 v18, v[{o}:{o+3}] offset:{i * 16 * ROWS}")
        a(f"ds_write_b128 v18, v[{o+4}:{o+7}] offset:{i * 16 * ROWS + 256}")
        if last:
            a("s_mov_b64 exec, -1")

    wreads(); xreads(0); xreads(1)
    a("s_waitcnt lgkmcnt(4)")
    mf(0)
    xreads(2)
    a("s_waitcnt lgkmcnt(4)")
    mf(1)
    a("s_cmp_ge_u32 s3, 8")
    a("s_cbranch_scc1 K2_NOX3")
    xreads(3)
    a("K2_NOX3:")
    stamp(a, 3)
    a("s_waitcnt vmcnt(0)")
    stamp(a, 4)
    hist("K2A")
    a("s_waitcnt lgkmcnt(0)")
    a("s_barrier")
    stamp(a, 5)
    assert U in (2, 4, 6, 8)
    U0 = min(U, 4)
    PB = [100, 104, 108, 112, 80, 84, 88, 92][:U]
    PR = [116, 118, 120, 122, 4, 6, 8, 10][:U]
    vE = 124
    vI = 52
    vAddr, vDeg, vH = vI, vI + 1, vI + 2
    vL16, vK1, vG16, vWT, vQI, vTmp = 56, 57, 58, 59, 60, 61
    vQ, vW, vT, vX, vN, vD = 20, 28, 36, 44, 64, 72
    sQ, sS, sD0, sD3, sSafe, sSl, sSEL = 27, 28, 29, 30, 31, 32, 33

    def gemm_tail(L):
        epi(1)
        a("s_cmp_ge_u32 s3, 8")
        a(f"s_cbranch_scc1 {L}_E2")
        mf(3)
        epi(2)
        epi(3)
        a(f"s_branch {L}_GD")
        a(f"{L}_E2:")
        epi(2, last=True)
        a(f"{L}_GD:")
        row_max(a, 19)
        a(f"""
    v_mov_b32 v4, 0
    s_mov_b32 exec_lo, 0x80008000
    s_mov_b32 exec_hi, 0x80008000
    ds_max_u32 v4, v19 offset:{MISC + 4}
    s_mov_b64 exec, -1
        """)

    def main_consts(n=U):
        a(f"""
    v_lshlrev_b32 v{vL16}, 4, v2
    v_mov_b32 v{vG16}, {INFO}
    v_lshl_add_u32 v{vG16}, v3, 4, v{vG16}
    v_add_u32 v{vWT}, {WT}, v{vL16}
    s_mov_b32 s{sSEL}, 0x00003f80
    s_cmp_lt_u32 s3, {OPT['nw']}
    s_cselect_b32 s{sQ}, s3, 50
        """)
        for j in range(n):
            a(f"v_mov_b32 v{PR[j]+1}, v{vL16}")

    def item_loads(n=U):
        for j in range(n):
            a(f"ds_read_b32 v{PR[j]}, v{vAddr} offset:{8*j}")
        a(f"""
    ds_read_b32 v{vE}, v{vAddr} offset:4
    v_add3_u32 v{vH}, v{vH}, s25, v{vL16}
    v_readlane_b32 s{sD0}, v{vDeg}, 0
    v_readlane_b32 s{sD3}, v{vDeg}, 48
    v_readlane_b32 s35, v{vDeg}, 16
    v_readlane_b32 s71, v{vDeg}, 32
        """)

    def item_issue(extra, j0=0, j1=U):
        for j in range(j0, j1):
            a(f"s_waitcnt lgkmcnt({j1 - 1 - j + extra})")
            a(f"buffer_load_dwordx4 v[{PB[j]}:{PB[j]+3}], v[{PR[j]}:{PR[j]+1}], s[{sP}:{sP+3}], s{sSl} idxen offen {OPT['pld']}")
        if j1 == U:
            a(f"ds_read_b32 v{PR[0]}, v{vAddr} offset:{8*U}")

    fastrank("K2A", 9)
    fastscatter("K2A")
    epi(0)
    mf(2)
    srd(a, sP, 22, 23, N, stride=256)
    a(f"""
    v_mov_b32 v4, 0
    s_mov_b32 s{sNBATCH}, 1
    s_waitcnt lgkmcnt(0)
    """)
    stamp(a, 6)
    a(f"""
    s_barrier
    ds_read_b64 v[6:7], v4 offset:{MISC + 8}
    s_lshl_b32 s24, s3, 6
    v_lshl_add_u32 v{vI}, v3, 4, s24
    ds_read_b128 v[{vI}:{vI+3}], v{vI} offset:{INFO}
    s_mov_b32 s25, 0
    s_mov_b32 s{sSl}, 0
    s_waitcnt lgkmcnt(1)
    v_or_b32 v6, v6, v7
    s_nop 0
    v_readfirstlane_b32 s24, v6
    s_cmp_lg_u32 s24, 0
    s_cbranch_scc1 K2_SLOW0
    """)
    main_consts(U0)
    a("s_waitcnt lgkmcnt(0)")
    item_loads(U0)
    item_issue(1, 0, U0)
    gemm_tail("K2F")
    a("s_waitcnt lgkmcnt(0)")
    a("s_barrier                            ; Q' complete")
    diag(a, 2, "K2_DG1")
    diag(a, 4, "K2_DG2", cyc=True)
    stamp(a, 7)
    cstamp(a, 0)
    a(f"ds_read_b64 v[{vT}:{vT+1}], v4 offset:{MISC}")
    for j in range(U0, U):
        a(f"ds_read_b32 v{PR[j]}, v{vAddr} offset:{8*j}")
    a(f"""
    ds_read_b128 v[{vW}:{vW+3}], v{vWT}
    ds_read_b128 v[{vW+4}:{vW+7}], v{vWT} offset:256
    ds_read_b128 v[{vQ}:{vQ+3}], v{vH}
    ds_read_b128 v[{vQ+4}:{vQ+7}], v{vH} offset:256
    """)
    for j in range(U0, U):
        a(f"v_mov_b32 v{PR[j]+1}, v{vL16}")
    item_issue(4, U0, U)
    a(f"""
    {f"s_waitcnt lgkmcnt(4)" if U == U0 else ""}
    v_add_f32 v{vK1}, v{vT}, v{vT+1}
    v_fma_f32 v{vK1}, v{vK1}, 4.0, 4.0
    {"s_cmp_ge_u32 s3, " + str(OPT['nw']) if OPT['nw'] < 16 else ""}
    {"s_cbranch_scc1 K2_DONE" if OPT['nw'] < 16 else ""}
    s_branch K2_GO
K2_SLOW0:
    """)
    gemm_tail("K2S")
    scanrank("K2S", 8, 9, degt=False)
    a("s_waitcnt lgkmcnt(0)")
    a("s_barrier")
    posread("K2S")
    a("s_waitcnt lgkmcnt(0)")
    scatter("K2S")
    a("""
    s_branch K2_MAIN
K2_BATCH:
    s_waitcnt vmcnt(0)
    """)
    hist("K2B")
    a("s_waitcnt lgkmcnt(0)")
    a("s_barrier")
    scanrank("K2B", 8, 9)
    a("s_waitcnt lgkmcnt(0)")
    a("s_barrier")
    posread("K2B")
    a("s_waitcnt lgkmcnt(0)")
    scatter("K2B")
    a(f"""
K2_MAIN:
    v_mov_b32 v4, 0
    s_waitcnt lgkmcnt(0)
    s_barrier
    ds_read_b128 v[{vI}:{vI+3}], v4 offset:{MISC}
    """)
    main_consts()
    a(f"""
    s_waitcnt lgkmcnt(0)
    v_readfirstlane_b32 s24, v{vI+3}
    v_add_f32 v{vK1}, v{vI}, v{vI+1}
    v_fma_f32 v{vK1}, v{vK1}, 4.0, 4.0
    s_add_u32 s24, s24, 23
    s_mul_i32 s24, s24, 2731
    s_lshr_b32 s{sNBATCH}, s24, 16
    s_cmp_le_u32 s{sNBATCH}, 1
    s_cbranch_scc1 K2_ITEM
    v_mov_b32 v{vK1}, 0x7f800000         ; several batches: every item takes the plain path
K2_ITEM:
    s_cmp_ge_u32 s{sQ}, 50
    s_cbranch_scc1 K2_DONE
    s_cmp_ge_u32 s{sQ}, 25
    s_cselect_b32 s24, 25, 0
    s_cselect_b32 s25, 512, 0
    s_cselect_b32 s{sSl}, {PS}, 0
    s_sub_u32 s24, s{sQ}, s24
    s_lshl_b32 s24, s24, 6
    v_add_u32 v{vTmp}, s24, v{vG16}
    ds_read_b128 v[{vI}:{vI+3}], v{vTmp}
    v_add_u32 v{vTmp}, s25, v{vWT}
    ds_read_b128 v[{vW}:{vW+3}], v{vTmp}
    ds_read_b128 v[{vW+4}:{vW+7}], v{vTmp} offset:256
    s_mov_b32 s{sP+2}, {N}
    s_waitcnt lgkmcnt(2)
    """)
    item_loads()
    a(f"""
    ds_read_b128 v[{vQ}:{vQ+3}], v{vH}
    ds_read_b128 v[{vQ+4}:{vQ+7}], v{vH} offset:256
    """)
    item_issue(3)
    a(f"""
K2_GO:
    v_cvt_f32_u32 v{vTmp}, v{vDeg}
    v_cvt_f32_u32 v{vI+3}, v{vI+3}
    v_fma_f32 v{vTmp}, v{vTmp}, v{vK1}, v{vI+3}
    s_max_u32 s24, s{sD0}, s{sD3}
    s_min_u32 s{sD3}, s{sD0}, s{sD3}
    v_cmp_nge_f32 vcc, {BOUND:#x}, v{vTmp}
    s_max_u32 s{sD0}, s35, s71
    s_min_u32 s35, s35, s71
    s_max_u32 s{sD0}, s{sD0}, s24
    s_min_u32 s{sD3}, s{sD3}, s35
    s_min_u32 s{sD0}, s{sD0}, {LISTCAP}
    s_sub_u32 s{sSafe}, s{sD0}, {U}
    s_cmp_gt_i32 s{sSafe}, 0
    s_cselect_b32 s{sP+2}, {N}, 0
    s_mov_b32 s{sS}, 0
    {"s_setprio 0" if OPT["prio"] else ""}
    s_cbranch_vccnz K2_P_START
    s_cmp_lg_u32 s{sD3}, 0
    s_cbranch_scc1 K2_F_FIRST
    """)
    for r in range(8):
        a(f"v_mov_b32 v{vN+r}, 0")
        a(f"v_mov_b32 v{vD+r}, 1.0")
    a(f"""
    s_cmp_eq_u32 s{sD0}, 0
    s_cbranch_scc1 K2_F_FLUSH
    v_cmpx_lt_u32 vcc, 0, v{vDeg}
    """)

    def step(j, mode):
        P = PB[j]
        T = vN if mode == "first" else vT
        eh = j & 1
        jn = (j + 1) % U
        osel = "op_sel_hi:[1,0,1]" if eh == 0 else "op_sel:[0,1,0] op_sel_hi:[1,1,1]"
        a("s_waitcnt lgkmcnt(0)")
        for r in range(0, 8, 2):
            a(f"v_pk_fma_f32 v[{T+r}:{T+r+1}], v[{vW+r}:{vW+r+1}], v[{vE}:{vE+1}], v[{vQ+r}:{vQ+r+1}] {osel}")
        a(f"ds_read_b32 v{vE + (eh ^ 1)}, v{vAddr} offset:{8*(j+1)+4}")
        a(f"s_waitcnt vmcnt({U-1})")
        if mode != "plain":
            for p in range(4):
                a(f"v_dot2_f32_bf16 v{T+p}, v{P+p}, s{sSEL}, v{T+p}")
            a(f"v_pk_add_f32 v[{T+4}:{T+5}], v[{P}:{P+1}], v[{T+4}:{T+5}]")
            a(f"v_pk_add_f32 v[{T+6}:{T+7}], v[{P+2}:{P+3}], v[{T+6}:{T+7}]")
        else:
            for p in range(4):
                a(f"v_lshlrev_b32 v{vX+p}, 16, v{P+p}")
            a(f"v_pk_add_f32 v[{T+4}:{T+5}], v[{P}:{P+1}], v[{T+4}:{T+5}]")
            a(f"v_pk_add_f32 v[{T+6}:{T+7}], v[{P+2}:{P+3}], v[{T+6}:{T+7}]")
            a(f"v_pk_add_f32 v[{T}:{T+1}], v[{vX}:{vX+1}], v[{T}:{T+1}]")
            a(f"v_pk_add_f32 v[{T+2}:{T+3}], v[{vX+2}:{vX+3}], v[{T+2}:{T+3}]")
        a(f"buffer_load_dwordx4 v[{P}:{P+3}], v[{PR[j]}:{PR[j]+1}], s[{sP}:{sP+3}], s{sSl} idxen offen {OPT['pld']}")
        a(f"ds_read_b32 v{PR[jn]}, v{vAddr} offset:{8*(j+1+U)}")
        a(f"s_add_u32 s{sS}, s{sS}, 1")
        a(f"s_cmp_lt_i32 s{sS}, s{sSafe}")
        a(f"s_cselect_b32 s{sP+2}, {N}, 0")
        a(f"s_cmp_ge_u32 s{sS}, s{sD3}")
        for r in (4, 5, 6, 7, 0, 1, 2, 3):
            a(f"v_exp_f32 v{vX+r}, v{T+r}")
        order = (4, 6, 0, 2)
        if mode == "first":
            for r in order:
                a(f"v_pk_add_f32 v[{vD+r}:{vD+r+1}], v[{vX+r}:{vX+r+1}], 1.0 op_sel_hi:[1,0]")
        elif mode == "fast":
            for r in order:
                a(f"v_pk_fma_f32 v[{vN+r}:{vN+r+1}], v[{vN+r}:{vN+r+1}], v[{vX+r}:{vX+r+1}], v[{vN+r}:{vN+r+1}]")
            for r in order:
                a(f"v_pk_fma_f32 v[{vN+r}:{vN+r+1}], v[{T+r}:{T+r+1}], v[{vD+r}:{vD+r+1}], v[{vN+r}:{vN+r+1}]")
            for r in order:
                a(f"v_pk_fma_f32 v[{vD+r}:{vD+r+1}], v[{vD+r}:{vD+r+1}], v[{vX+r}:{vX+r+1}], v[{vD+r}:{vD+r+1}]")
        else:
            for r in order:
                a(f"v_pk_add_f32 v[{vX+r}:{vX+r+1}], v[{vX+r}:{vX+r+1}], 1.0 op_sel_hi:[1,0]")
            for r in (4, 5, 6, 7, 0, 1, 2, 3):
                a(f"v_rcp_f32 v{vX+r}, v{vX+r}")
            for r in order:
                a(f"v_pk_fma_f32 v[{vN+r}:{vN+r+1}], v[{T+r}:{T+r+1}], v[{vX+r}:{vX+r+1}], v[{vN+r}:{vN+r+1}]")
        if j == U - 1:
            a(f"v_add_u32 v{vAddr}, {8*U}, v{vAddr}")
        if j == U0 - 1 and OPT["prio"]:
            a("s_setprio 1")

    def loop(pfx, mode):
        tails = []
        if mode == "fast":
            a(f"{pfx}_FIRST:")
            step(0, "first")
            a(f"s_cbranch_scc1 {pfx}_T0")
            seq = list(range(1, U)) + [0]
        else:
            seq = list(range(U))
        for j in seq:
            a(f"{pfx}_S{j}:")
            step(j, mode)
            if j == seq[-1]:
                a(f"s_cbranch_scc0 {pfx}_S{seq[0]}")
            else:
                a(f"s_cbranch_scc1 {pfx}_T{j}")
        for j in [seq[-1]] + seq[:-1]:
            a(f"""
{pfx}_T{j}:
    {"s_setprio 2" if OPT["prio"] else ""}
    s_cmp_ge_u32 s{sS}, s{sD0}
    s_cbranch_scc1 {pfx}_FLUSH
    v_cmpx_lt_u32 vcc, s{sS}, v{vDeg}
    s_branch {pfx}_S{(j+1) % U}
            """)

    loop("K2_F", "fast")
    a(f"""
K2_F_FLUSH:
    s_mov_b64 exec, 1
    v_mov_b32 v{vQI}, 0
    v_mov_b32 v{vTmp}, 1
    ds_add_rtn_u32 v{vQI}, v{vQI}, v{vTmp} offset:{MISC + 16}
    s_mov_b64 exec, -1
    """)
    for r in range(8):
        a(f"v_rcp_f32 v{vX+r}, v{vD+r}")
    for r in range(0, 8, 2):
        a(f"v_pk_mul_f32 v[{vN+r}:{vN+r+1}], v[{vN+r}:{vN+r+1}], v[{vX+r}:{vX+r+1}]")
    a("K2_WRH:")
    for r in range(4):
        a(f"v_cvt_pk_bf16_f32 v{vX+r}, v{vN+2*r}, v{vN+2*r+1}")
    a(f"""
    ds_write_b128 v{vH}, v[{vX}:{vX+3}]
K2_NEXT:
    s_waitcnt lgkmcnt(0)
    v_readfirstlane_b32 s{sQ}, v{vQI}
    s_branch K2_ITEM
K2_P_START:
    """)
    for r in range(8):
        a(f"v_mov_b32 v{vN+r}, 0")
    a(f"""
    s_cmp_eq_u32 s{sD0}, 0
    s_cbranch_scc1 K2_P_FLUSH
    v_cmpx_lt_u32 vcc, 0, v{vDeg}
    """)
    loop("K2_P", "plain")
    a(f"""
K2_P_FLUSH:
    s_mov_b64 exec, 1
    v_mov_b32 v{vQI}, 0
    v_mov_b32 v{vTmp}, 1
    ds_add_rtn_u32 v{vQI}, v{vQI}, v{vTmp} offset:{MISC + 16}
    s_mov_b64 exec, -1
    s_cmp_le_u32 s{sNBATCH}, 1
    s_cbranch_scc1 K2_WRH
    """)
    a(f"""
    s_mul_i32 s24, s2, {SCR_STRIDE}
    s_add_u32 s24, s24, {SCR_OFF - QH}
    s_mov_b32 s{sSCR}, s22
    s_mov_b32 s{sSCR+1}, s23
    s_mov_b32 s{sSCR+2}, {WS_USED}
    s_mov_b32 s{sSCR+3}, 0x00020000
    v_add_u32 v{vH}, v{vH}, v{vL16}
    s_cmp_eq_u32 s{sBATCH}, 0
    s_cbranch_scc1 K2_P_ST
    buffer_load_dwordx4 v[{vX}:{vX+3}], v{vH}, s[{sSCR}:{sSCR+3}], s24 offen
    buffer_load_dwordx4 v[{vX+4}:{vX+7}], v{vH}, s[{sSCR}:{sSCR+3}], s24 offen offset:16
    s_waitcnt vmcnt(0)
    """)
    for r in range(0, 8, 2):
        a(f"v_pk_add_f32 v[{vN+r}:{vN+r+1}], v[{vN+r}:{vN+r+1}], v[{vX+r}:{vX+r+1}]")
    a(f"""
K2_P_ST:
    buffer_store_dwordx4 v[{vN}:{vN+3}], v{vH}, s[{sSCR}:{sSCR+3}], s24 offen
    buffer_store_dwordx4 v[{vN+4}:{vN+7}], v{vH}, s[{sSCR}:{sSCR+3}], s24 offen offset:16
    s_waitcnt vmcnt(0)
    s_branch K2_NEXT
    """)
    vF = 32
    a(f"""
K2_DONE:
    s_add_u32 s{sBATCH}, s{sBATCH}, 1
    s_cmp_ge_u32 s{sBATCH}, s{sNBATCH}
    s_cbranch_scc1 K2_FINAL
    s_waitcnt vmcnt(0)
    s_add_u32 s{sRECB}, s{sRECB}, 192
    v_subrev_u32 v127, 24, v127
    """)
    rec_loads()
    a(f"""
    s_barrier
    v_mov_b32 v4, 0
    v_lshlrev_b32 v5, 2, v0
    v_cmp_gt_u32 vcc, {(DEGT - CNT) // 4}, v0
    s_mov_b64 exec, vcc
    ds_write_b32 v5, v4 offset:{CNT}
    s_mov_b64 exec, 1
    v_mov_b32 v5, {MISC}
    v_mov_b32 v6, {OPT['nw']}
    ds_write_b32 v5, v6 offset:16
    s_mov_b64 exec, -1
    s_waitcnt lgkmcnt(0)
    s_barrier
    s_branch K2_BATCH
K2_FINAL:
    """)
    stamp(a, 8)
    cstamp(a, 1)
    a(f"""
    s_waitcnt vmcnt(0)
    s_and_b32 s24, s3, 3                 ; cp
    s_lshl_b32 s25, s24, 14
    s_add_u32 s25, s25, {W2F_OFF}
    v_lshlrev_b32 v4, 4, v1
    """)
    for f in range(16):
        if f and f % 4 == 0:
            a("s_add_u32 s25, s25, 4096")
        a(f"buffer_load_dwordx4 v[{vF+4*f}:{vF+4*f+3}], v4, s[{sWS}:{sWS+3}], s25 offen offset:{1024*(f%4)}")
    srd(a, sB2, 18, 19, 256)
    srd(a, sOUT, 20, 21, N * 256)
    a(f"""
    s_lshl_b32 s24, s24, 6
    v_lshlrev_b32 v5, 4, v3              ; g*16
    buffer_load_dwordx4 v[8:11], v5, s[{sB2}:{sB2+3}], s24 offen
    s_lshr_b32 s27, s3, 2
    s_lshl_b32 s27, s27, 4               ; first row tile * 16
    v_add_u32 v6, s27, v2
    v_mul_u32_u24 v7, {ROWS}, v6
    v_add_u32 v7, v7, v5
    v_add_u32 v7, {QH}, v7
    v_lshlrev_b32 v20, 2, v6
    v_add_u32 v21, s{sROW0}, v6
    v_lshl_add_u32 v21, v21, 8, v5
    s_mov_b32 s34, {NLN2:#x}
    s_barrier
    s_cmp_le_u32 s{sNBATCH}, 1
    s_cbranch_scc1 K2_GEMM2
    s_mul_i32 s28, s2, {SCR_STRIDE}
    s_add_u32 s28, s28, {SCR_OFF}
    s_mov_b32 s{sSCR}, s22
    s_mov_b32 s{sSCR+1}, s23
    s_mov_b32 s{sSCR+2}, {WS_USED}
    s_mov_b32 s{sSCR+3}, 0x00020000
    v_and_b32 v22, 1, v3
    v_lshlrev_b32 v22, 9, v22
    v_lshl_add_u32 v22, v2, 4, v22       ; s*512 + l*16
    v_lshl_add_u32 v23, v2, 4, v22       ; s*512 + l*32
    s_mov_b32 s29, s3
K2_CONV:
    s_mul_i32 s30, s29, {ROWS}
    s_add_u32 s31, s30, s28
    buffer_load_dwordx4 v[100:103], v23, s[{sSCR}:{sSCR+3}], s31 offen
    buffer_load_dwordx4 v[104:107], v23, s[{sSCR}:{sSCR+3}], s31 offen offset:16
    s_add_u32 s30, s30, {QH}
    v_add_u32 v24, s30, v22
    s_waitcnt vmcnt(0)
    v_cvt_pk_bf16_f32 v100, v100, v101
    v_cvt_pk_bf16_f32 v101, v102, v103
    v_cvt_pk_bf16_f32 v102, v104, v105
    v_cvt_pk_bf16_f32 v103, v106, v107
    ds_write_b128 v24, v[100:103]
    s_add_u32 s29, s29, 16
    s_cmp_lt_u32 s29, {NB}
    s_cbranch_scc1 K2_CONV
    s_waitcnt lgkmcnt(0)
    s_barrier
K2_GEMM2:
    """)
    stamp(a, 9)
    diag(a, 3, "K2_DG3")
    diag(a, 5, "K2_DG4", cyc=True)
    vHB = 96
    vO = 24
    for rt in range(2):
        off = rt * 64 * ROWS
        if rt == 1:
            a("s_cmp_ge_u32 s3, 12")
            a("s_cbranch_scc1 K2_FIN")
            a(f"v_add_u32 v7, {off}, v7")
            a(f"v_add_u32 v21, {64 * 256}, v21")
        a(f"ds_read_b32 v22, v20 offset:{DEGT + rt * 256}")
        for ks in range(8):
            a(f"ds_read_b128 v[{vHB+4*ks}:{vHB+4*ks+3}], v7 offset:{(ks >> 2) * 512 + (ks & 3) * 64}")
        if rt == 0:
            a("s_waitcnt vmcnt(0)")
            for p in range(4):
                a(f"v_lshlrev_b32 v{12+2*p}, 16, v{8+p}")
                a(f"v_and_b32 v{13+2*p}, 0xffff0000, v{8+p}")
        for ks in range(8):
            a(f"s_waitcnt lgkmcnt({7-ks})")
            for aa in range(2):
                f = vF + 4 * (aa * 8 + ks)
                c = "0" if ks == 0 else f"v[{vO+4*aa}:{vO+4*aa+3}]"
                a(f"v_mfma_f32_16x16x32_bf16 v[{vO+4*aa}:{vO+4*aa+3}], v[{f}:{f+3}], v[{vHB+4*ks}:{vHB+4*ks+3}], {c}")
        a("v_cvt_f32_u32 v22, v22")
        a(f"v_cmp_gt_u32 vcc, {NB - 64 * rt}, v6")
        a("s_nop 5")
        for r in range(8):
            a(f"v_mul_f32 v{vO+r}, s34, v{vO+r}")
        for r in range(8):
            a(f"v_fmac_f32 v{vO+r}, v22, v{12+r}")
        for r in range(4):
            a(f"v_cvt_pk_bf16_f32 v{vHB+r}, v{vO+2*r}, v{vO+2*r+1}")
        a("s_mov_b64 exec, vcc")
        a(f"buffer_store_dwordx4 v[{vHB}:{vHB+3}], v21, s[{sOUT}:{sOUT+3}], s24 offen {OPT['ost']}")
        a("s_mov_b64 exec, -1")
        if rt == 0:
            a("s_nop 1")
    a("K2_FIN:")
    stamp(a, 10)
    if OPT["stamps"]:
        a("s_waitcnt vmcnt(0)")
    stamp(a, 11)
    stamp_flush(a, 1)
    a("""
K2_END:
    s_endpgm
    """)
    return a.text(), 128, (102 if OPT["stamps"] or OPT["diag"] else 96)


HEADER = """; Kernarg layout for this problem (88 bytes, ptrs only, base s[0:1]):
"""


def kd(name, vgpr, sgpr):
    return f""".amdhsa_kernel {name}
  .amdhsa_next_free_vgpr {vgpr}
  .amdhsa_next_free_sgpr {sgpr}
  .amdhsa_accum_offset {(vgpr + 3) // 4 * 4}
  .amdhsa_group_segment_fixed_size 0
  .amdhsa_kernarg_size 88
  .amdhsa_user_sgpr_count 2
  .amdhsa_user_sgpr_kernarg_segment_ptr 1
  .amdhsa_system_sgpr_workgroup_id_x 1
.end_amdhsa_kernel
"""


def build():
    k1, v1, s1 = gen_k1()
    k2, v2, s2 = gen_k2()
    n1 = "mpnn_prep_kernel"
    n2 = "gather_scatter__edge_featured_mpnn_mpnn__graph_kernel"
    out = HEADER
    out += f"; @launch kernel={n1} grid=(256,1,1) block=(1024,1,1) lds={K1_LDS}\n"
    out += f"; @launch kernel={n2} grid=(256,1,1) block=(1024,1,1) lds={K2_LDS}\n"
    ks = [(n1, k1, v1, s1), (n2, k2, v2, s2)]
    if OPT["diag"]:
        out += "; @launch kernel=diag_kernel grid=(1,1,1) block=(64,1,1) lds=0\n"
        ks.append(("diag_kernel",) + gen_diag())
    out += '.amdgcn_target "amdgcn-amd-amdhsa--gfx950"\n.text\n'
    for n, k, _, _ in ks:
        out += f".globl {n}\n.p2align 8\n.type {n},@function\n{n}:\n" + k
    out += '.section .rodata,"a"\n'
    for n, _, v, sg in ks:
        out += ".p2align 6\n" + kd(n, v, sg)
    return out


if __name__ == "__main__":
    path = sys.argv[1] if len(sys.argv) > 1 else "gather_scatter__edge_featured_mpnn_mpnn__graph.s"
    for kv in sys.argv[2:]:
        k, v = kv.split("=")
        OPT[k] = int(v) if v.lstrip('-').isdigit() else v.replace('+', ' ')
    open(path, "w").write(build())
    print("wrote", path, "K1_LDS", K1_LDS, "K2_LDS", K2_LDS)
```

```python
import sys

N = 25000; E = 400000
NB = 98
CH = 1564
CHS = 12544
PS = N * 256
P_OFF = 0
CELL_OFF = 0x0C40000
REC_OFF = 0x1C40000
TAB_OFF = 0x1F50000
W2F_OFF = 0x1F90000
PMAX_OFF = 0x1FA0000
SCR_OFF = 0x2000000
SCR_STRIDE = 104448
WS_USED = SCR_OFF + 256 * SCR_STRIDE
assert 2 * PS <= CELL_OFF and REC_OFF + 256 * CHS <= TAB_OFF
NLOG2E = 0xbfb8aa3b
NLN2 = 0xbf317218
BOUND = 0x43e00000

STAMP_OFF = 0x3c00000
OPT = dict(U=4, stamps=False, pst="", rst="", prio=1, warm=1, reclate=0, tlb=0, diag=0, ost="sc1", pld="sc1", nw=16, sleep=2, list=0)


class A:
    def __init__(self):
        self.l = []

    def __call__(self, s):
        for x in s.strip("\n").split("\n"):
            x = x.rstrip()
            if not x.strip():
                continue
            if x.strip().endswith(":") and not x.strip().startswith(";"):
                self.l.append(x.strip())
            else:
                self.l.append("    " + x.strip())

    def text(self):
        return "\n".join(self.l) + "\n"


def stamp(a, i):
    if OPT["stamps"]:
        a(f"""
        s_memrealtime s[98:99]
        s_waitcnt lgkmcnt(0)
        s_mov_b32 s{84+i}, s98
        """)


DIAG_OFF = 0x3b00000


def diag(a, slot, lab, cyc=False):
    if OPT["diag"]:
        a(f"""
        s_or_b32 s96, s2, s3
        s_cmp_lg_u32 s96, 0
        s_cbranch_scc1 {lab}
        {"s_memtime" if cyc else "s_memrealtime"} s[98:99]
        s_add_u32 s96, s22, {DIAG_OFF + 4 * slot}
        s_addc_u32 s97, s23, 0
        s_waitcnt lgkmcnt(0)
        v_mov_b32 v126, 0
        v_mov_b32 v127, s98
        global_store_dword v126, v127, s[96:97]
        s_nop 0
{lab}:
        """)


def gen_diag():
    a = A()
    m = OPT["diag"]
    a(f"""
    s_cmp_lg_u32 s2, 0
    s_cbranch_scc1 DG_END
    s_load_dwordx2 s[22:23], s[0:1], 80
    s_memrealtime s[10:11]
    s_waitcnt lgkmcnt(0)
    s_add_u32 s22, s22, {DIAG_OFF}
    s_addc_u32 s23, s23, 0
    s_load_dwordx8 s[24:31], s[22:23], 0
    s_waitcnt lgkmcnt(0)
    """)
    if m == 1: a("s_mov_b32 s12, 0")
    if m == 2: a("s_sub_u32 s12, s10, s24")
    if m == 3: a("s_sub_u32 s12, s25, s24")
    if m == 4: a("s_sub_u32 s12, s26, s25")
    if m == 5: a("s_sub_u32 s12, s27, s26")
    if m == 6: a("s_sub_u32 s12, s29, s28\ns_mul_i32 s12, s12, 6554\ns_lshr_b32 s12, s12, 16")
    a("""
    s_min_u32 s12, s12, 20000
DG_SPIN:
    s_memrealtime s[14:15]
    s_waitcnt lgkmcnt(0)
    s_sub_u32 s14, s14, s10
    s_cmp_lt_u32 s14, s12
    s_cbranch_scc1 DG_SPIN
DG_END:
    s_endpgm
    """)
    return a.text(), 8, 40


def cstamp(a, i):
    if OPT["stamps"]:
        a(f"""
        s_memtime s[98:99]
        s_waitcnt lgkmcnt(0)
        s_mov_b32 s{96+i}, s98
        """)


def stamp_init(a):
    if OPT["stamps"]:
        for i in range(14):
            a(f"s_mov_b32 s{84+i}, 0")


def stamp_flush(a, kern):
    if OPT["stamps"]:
        a(f"""
        s_mov_b64 exec, -1
        s_mov_b32 s4, s22
        s_mov_b32 s5, s23
        s_mov_b32 s6, 0x8000000
        s_mov_b32 s7, 0x00020000
        s_lshl_b32 s8, s2, 4
        s_add_u32 s8, s8, s3
        s_lshl_b32 s8, s8, 6
        s_add_u32 s8, s8, {STAMP_OFF + kern * 256 * 16 * 64}
        v_mov_b32 v0, 0
        s_mov_b64 exec, 1
        """)
        for i in range(14):
            a(f"v_mov_b32 v1, s{84+i}")
            a(f"buffer_store_dword v1, v0, s[4:7], s8 offen offset:{4*i}")


def srd(a, d, lo, hi, size, stride=0):
    a(f"s_mov_b32 s{d}, s{lo}")
    if stride:
        a(f"s_and_b32 s{d+1}, s{hi}, 0xffff")
        a(f"s_or_b32 s{d+1}, s{d+1}, {stride << 16:#x}")
    else:
        a(f"s_mov_b32 s{d+1}, s{hi}")
    a(f"s_mov_b32 s{d+2}, {size}")
    a(f"s_mov_b32 s{d+3}, 0x00020000")


def wave_scan(a, regs):
    steps = ["row_shr:1 row_mask:0xf", "row_shr:2 row_mask:0xf", "row_shr:4 row_mask:0xf", "row_shr:8 row_mask:0xf",
             "row_bcast:15 row_mask:0xa", "row_bcast:31 row_mask:0xc"]
    for st in steps:
        a("s_nop 1" if len(regs) == 1 else "s_nop 0")
        for r in regs:
            a(f"v_add_u32_dpp v{r}, v{r}, v{r} {st} bank_mask:0xf")


def row_max(a, r):
    for sh in (1, 2, 4, 8):
        a("s_nop 1")
        a(f"v_max_f32_dpp v{r}, v{r}, v{r} row_shr:{sh} row_mask:0xf bank_mask:0xf")


def common_ids(a):
    a("""
    v_lshrrev_b32 v1, 6, v0
    v_and_b32 v2, 15, v0               ; l16
    v_readfirstlane_b32 s3, v1         ; wave
    v_and_b32 v1, 63, v0               ; lane
    v_lshrrev_b32 v3, 4, v1            ; g
    """)


def dma_w_setup(a, vdst, vt, st):
    a(f"""
    s_and_b32 s{st}, s3, 1
    s_lshl_b32 s{st}, s{st}, 7
    v_lshrrev_b32 v{vt}, 5, v1           ; L>>5
    v_mul_u32_u24 v{vt}, 544, v{vt}      ; (L>>5)*512 + (L>>5)<<5
    v_and_b32 v{vdst}, 31, v1
    v_lshlrev_b32 v{vdst}, 4, v{vdst}    ; j*16
    v_xor_b32 v{vdst}, v{vt}, v{vdst}
    v_xor_b32 v{vdst}, s{st}, v{vdst}
    v_xor_b32 v{vdst+1}, 64, v{vdst}
    s_lshl_b32 s{st}, s3, 12
    """)


def dma_w_issue(a, vsrc, srdw, st, st2, goff, wb):
    a(f"s_add_u32 m0, s{st}, {wb}")
    a(f"s_add_u32 s{st2}, s{st}, {goff}")
    for i in range(4):
        a(f"buffer_load_dwordx4 v{vsrc + (i & 1)}, s[{srdw}:{srdw+3}], s{st2} offen offset:{1024 * i} lds")


def dma_x(a, srdx, srow0, vo, vt, st, xb):
    a(f"""
    s_and_b32 s{st}, s3, 1
    s_lshl_b32 s{st}, s{st}, 3
    v_add_u32 v{vt}, s{st}, v3           ; 8*(w&1)+g
    v_xor_b32 v{vt}, v2, v{vt}
    s_lshl_b32 s{st}, s3, 3
    s_add_u32 s{st}, s{st}, s{srow0}
    v_add_u32 v{vo}, s{st}, v3           ; row
    v_lshlrev_b32 v{vo}, 8, v{vo}
    v_lshl_add_u32 v{vo}, v{vt}, 4, v{vo}
    s_lshl_b32 s{st}, s3, 11
    s_add_u32 m0, s{st}, {xb}
    v_xor_b32 v{vt}, 64, v{vo}
    buffer_load_dwordx4 v{vo}, s[{srdx}:{srdx+3}], 0 offen lds
    buffer_load_dwordx4 v{vt}, s[{srdx}:{srdx+3}], 0 offen offset:1024 lds
    """)


def gemm_addr(a, vb, vxa, vt, st, wb, xb):
    a(f"""
    v_lshrrev_b32 v{vt}, 2, v2           ; r
    v_mul_u32_u24 v{vb}, 544, v{vt}      ; r*512 + r*32
    v_lshl_add_u32 v{vb}, v3, 12, v{vb}  ; + g*8*512
    v_and_b32 v{vt}, 1, v3
    v_lshl_add_u32 v{vb}, v{vt}, 7, v{vb} ; + (g&1)<<2<<5
    v_and_b32 v{vt}, 3, v2
    v_lshl_add_u32 v{vb}, v{vt}, 3, v{vb} ; + c*8
    s_and_b32 s{st}, s3, 7
    s_lshl_b32 s{st}, s{st}, 6
    v_xor_b32 v{vb}, s{st}, v{vb}
    v_add_u32 v{vb}, {wb}, v{vb}
    v_xor_b32 v{vb+1}, 32, v{vb}
    v_xor_b32 v{vt}, v2, v3
    v_lshlrev_b32 v{vt}, 4, v{vt}
    v_lshl_add_u32 v{vxa}, v2, 8, v{vt}
    s_lshr_b32 s{st}, s3, 3
    s_lshl_b32 s{st}, s{st}, 14
    s_add_u32 s{st}, s{st}, {xb}
    v_add_u32 v{vxa}, s{st}, v{vxa}
    v_xor_b32 v{vxa+1}, 64, v{vxa}
    v_xor_b32 v{vxa+2}, 0x80, v{vxa}
    v_xor_b32 v{vxa+3}, 0xc0, v{vxa}
    """)


def gemm_parts(a, vW, vX, vAcc, vb, vxa, cinit, acc2=False):
    def wreads():
        for ks in range(4):
            for aa in range(2):
                for h in range(2):
                    r = vW + 16 * aa + 4 * ks + 2 * h
                    a(f"ds_read_b64_tr_b16 v[{r}:{r+1}], v{vb+aa} offset:{ks * 16384 + h * 2048}")

    def xreads(i):
        for ks in range(4):
            r = vX + 16 * (i & 1) + 4 * ks
            a(f"ds_read_b128 v[{r}:{r+3}], v{vxa+ks} offset:{4096 * i}")

    def mf(i):
        for ks in range(4):
            for aa in range(2):
                acc = vAcc + 8 * ((i & 1) if acc2 else i) + 4 * aa
                c = cinit(aa) if ks == 0 else f"v[{acc}:{acc+3}]"
                w = vW + 16 * aa + 4 * ks
                x = vX + 16 * (i & 1) + 4 * ks
                a(f"v_mfma_f32_16x16x32_bf16 v[{acc}:{acc+3}], v[{w}:{w+3}], v[{x}:{x+3}], {c}")
    return wreads, xreads, mf


ROWS = 1040
CNT = 0
DH = CNT + 512
DEGT = DH + 256
HIST = DEGT + 512
POS = HIST + 1024
INFO = POS + 512
MISC = INFO + 1600
WT = MISC + 64
START = WT + 1024
LIST = (START + 1024 + 255) // 256 * 256
LISTCAP = 6144
LCAP = 60
LROW = LCAP * 8
QH = (LIST + LISTCAP * 8 + 128 + 255) // 256 * 256
K_LDS = QH + 100 * ROWS
XB = LIST
STAGE = LIST + 32768
CST = QH + 65536
assert K_LDS <= 163840 and STAGE + CHS <= QH and CST + 32768 <= K_LDS
assert MISC % 16 == 0 and INFO % 16 == 0 and WT % 16 == 0
QCAP = 585
SPIN = 40000


def gen_k2():
    U = OPT["U"]
    a = A()
    vW, vX, vAcc = 20, 52, 84
    vRec, vRank, vPos = 100, 112, 118
    vb, vxa, vB1 = 4, 6, 10
    sX, sW1, sB1, sWS, sP, sOUT, sB2, sSCR = 36, 40, 44, 48, 52, 56, 60, 64
    sDST, sSRC, sE, sW2 = 52, 56, 60, 64
    sROW0 = 26
    sBATCH = 68; sNBATCH = 69; sRECB = 70
    sM = 72
    sDBG = 100; sPM = 34
    a(f"""
    s_cmp_ge_u32 s2, 256
    s_cbranch_scc1 K2_END
    s_load_dwordx16 s[4:19], s[0:1], 0
    s_load_dwordx2 s[20:21], s[0:1], 64
    s_load_dwordx2 s[22:23], s[0:1], 80
    s_load_dwordx2 s[{sDBG}:{sDBG+1}], s[0:1], 72
    """)
    stamp_init(a)
    stamp(a, 0)
    common_ids(a)
    a(f"""
    s_mul_i32 s29, s2, {CH}
    s_sub_u32 s30, {E}, s29
    s_min_u32 s30, s30, {CH}
    s_lshr_b32 s30, s30, 1
    v_lshl_add_u32 v6, v0, 1, s29        ; first edge index
    v_lshlrev_b32 v7, 1, v6
    v_lshlrev_b32 v6, 2, v6
    v_cmp_gt_u32 s[32:33], s30, v0
    v_mov_b32 v11, 0
    v_lshlrev_b32 v12, 2, v0
    v_cmp_gt_u32 vcc, {(POS - CNT) // 4}, v0
    s_mov_b64 exec, vcc
    ds_write_b32 v12, v11 offset:{CNT}
    s_mov_b64 exec, 0xff
    v_cmp_eq_u32 vcc, 4, v1
    v_lshlrev_b32 v12, 2, v1
    s_mul_i32 s{sROW0}, s2, {NB}
    v_cndmask_b32 v11, 0, {OPT['nw']}, vcc
    ds_write_b32 v12, v11 offset:{MISC}
    s_mov_b64 exec, -1
    v_lshlrev_b32 v13, 3, v1
    s_mov_b32 s68, {256 * 512}
    s_waitcnt lgkmcnt(0)
    """)
    diag(a, 0, "K1_DG0")
    srd(a, sDST, 10, 11, E * 4)
    srd(a, sE, 6, 7, E * 2)
    srd(a, sSRC, 8, 9, E * 4)
    srd(a, sW1, 12, 13, 257 * 512)
    a(f"""
    s_mov_b64 exec, s[32:33]
    buffer_load_dwordx2 v[118:119], v6, s[{sDST}:{sDST+3}], 0 offen
    buffer_load_dword v10, v7, s[{sE}:{sE+3}], 0 offen
    buffer_load_dwordx2 v[8:9], v6, s[{sSRC}:{sSRC+3}], 0 offen
    s_mov_b64 exec, -1
    buffer_load_dwordx2 v[14:15], v13, s[{sW1}:{sW1+3}], s68 offen
    """)
    a("""
    s_cmp_lg_u32 s3, 14
    s_cbranch_scc1 K1_NOW2L
    """)
    srd(a, sW2, 16, 17, 65536)
    a(f"""
    s_lshr_b32 s68, s2, 2                ; F = G>>6
    s_and_b32 s69, s2, 3                 ; g' = (G&63)>>4
    s_and_b32 s24, s68, 7
    s_lshl_b32 s24, s24, 5
    s_lshl_b32 s69, s69, 2
    s_add_u32 s24, s24, s69
    s_lshl_b32 s24, s24, 8               ; *256 bytes
    s_lshr_b32 s69, s68, 4               ; cp
    s_lshl_b32 s69, s69, 5
    s_bfe_u32 s68, s68, 0x10003          ; a
    s_lshl_b32 s68, s68, 2
    s_add_u32 s68, s68, s69              ; 32cp + 4a
    v_lshrrev_b32 v28, 2, v2
    v_lshlrev_b32 v28, 3, v28            ; 8*(m>>2)
    v_and_b32 v29, 3, v2
    v_add3_u32 v28, v28, v29, s68        ; col
    v_lshlrev_b32 v28, 1, v28
    s_mov_b64 exec, 0xffff
    """)
    for t in range(8):
        if t == 4:
            a("s_add_u32 s24, s24, 4096")
        r = vW + (t >> 1) + 4 * (t & 1)
        a(f"buffer_load_ushort v{r}, v28, s[{sW2}:{sW2+3}], s24 offen offset:{256 * (t & 3)}")
    a(f"""
    s_mov_b64 exec, -1
K1_NOW2L:
    s_cmp_lg_u32 s3, 13
    s_cbranch_scc1 K1_NOWARM
    s_lshr_b32 s24, s2, 3
    s_lshl_b32 s24, s24, 11
    s_add_u32 s24, s24, {128 * 512}
    v_lshlrev_b32 v28, 5, v1
    buffer_load_dword v29, v28, s[{sW1}:{sW1+3}], s24 offen
K1_NOWARM:
    """)
    dma_w_setup(a, 16, 5, 27)
    srd(a, sX, 4, 5, N * 256)
    srd(a, sWS, 22, 23, SCR_OFF)
    srd(a, sB1, 14, 15, 512)
    a("s_barrier")
    a("s_cmp_ge_u32 s3, 14")
    a("s_cbranch_scc1 K1_NOX")
    dma_x(a, sX, sROW0, 5, 6, 24, XB)
    a("K1_NOX:")
    dma_w_issue(a, 16, sW1, 27, 24, 0, QH)
    a(f"""
    s_and_b32 s24, s3, 7
    s_lshl_b32 s24, s24, 6
    v_lshlrev_b32 v5, 3, v3
    buffer_load_dwordx2 v[112:113], v5, s[{sB1}:{sB1+3}], s24 offen
    buffer_load_dwordx2 v[114:115], v5, s[{sB1}:{sB1+3}], s24 offen offset:32
    s_mov_b32 s71, 42800
    s_mov_b32 s34, {NLOG2E:#x}
    s_lshl_b32 s31, s2, 8
    s_add_u32 s31, s31, {CELL_OFF}
    s_cmp_ge_u32 s3, 13
    s_cbranch_scc1 K1_AUX
    s_waitcnt vmcnt(8)
    """)
    a(f"""
    ; 4*log2e*max|w1[256,:]|
    v_and_b32 v14, 0x7fff7fff, v14
    v_and_b32 v15, 0x7fff7fff, v15
    v_pk_max_u16 v14, v14, v15
    s_mov_b64 exec, s[32:33]
    v_mul_u32_u24 v116, s71, v118
    v_mul_u32_u24 v117, s71, v119
    v_lshrrev_b32 v116, 22, v116         ; bucket
    v_lshrrev_b32 v117, 22, v117
    v_mul_u32_u24 v125, {NB}, v116
    v_mul_u32_u24 v126, {NB}, v117
    v_lshlrev_b32 v116, 2, v116
    v_lshlrev_b32 v117, 2, v117
    v_sub_u32 v125, v118, v125           ; dloc
    v_sub_u32 v126, v119, v126
    v_mov_b32 v127, 1
    ds_add_rtn_u32 v118, v116, v127 offset:{HIST}
    ds_add_rtn_u32 v119, v117, v127 offset:{HIST}
    s_mov_b64 exec, -1
    v_lshlrev_b32 v15, 16, v14
    v_and_b32 v14, 0xffff0000, v14
    v_max_u32 v14, v14, v15
    """)
    for st in ("row_shr:1 row_mask:0xf", "row_shr:2 row_mask:0xf", "row_shr:4 row_mask:0xf", "row_shr:8 row_mask:0xf",
               "row_bcast:15 row_mask:0xa", "row_bcast:31 row_mask:0xc"):
        a("s_nop 1")
        a(f"v_max_u32_dpp v14, v14, v14 {st} bank_mask:0xf")
    a(f"""
    v_mul_f32 v14, 0x40b8aa3b, v14       ; 4*log2(e)
    v_lshlrev_b32 v121, 16, v10
    v_readlane_b32 s67, v14, 63
    v_and_b32 v123, 0xffff0000, v10
    s_mov_b64 exec, s[32:33]
    v_fma_f32 v120, |v121|, s67, 1.0
    v_fma_f32 v122, |v123|, s67, 1.0
    v_lshl_or_b32 v121, v125, 2, v121    ; e<<16 | dloc*4
    v_lshl_or_b32 v123, v126, 2, v123
    v_cvt_u32_f32 v120, v120
    v_cvt_u32_f32 v122, v122
    v_min_u32 v120, {QCAP}, v120
    v_min_u32 v122, {QCAP}, v122
    v_lshl_or_b32 v120, v120, 16, v8     ; src | q<<16
    v_lshl_or_b32 v122, v122, 16, v9
    v_lshlrev_b32 v125, 5, v116          ; bucket*128
    v_lshlrev_b32 v126, 5, v117
    v_add_u32 v125, {CST}, v125
    v_add_u32 v126, {CST}, v126
    s_waitcnt lgkmcnt(0)
    v_lshl_add_u32 v125, v118, 3, v125
    v_lshl_add_u32 v126, v119, 3, v126
    v_cmp_gt_u32 s[72:73], 16, v118
    v_cmp_gt_u32 s[74:75], 16, v119
    v_max_u32 v124, v118, v119
    s_mov_b64 exec, s[72:73]
    ds_write_b64 v125, v[120:121]
    s_mov_b64 exec, s[74:75]
    ds_write_b64 v126, v[122:123]
    s_and_b64 s[76:77], s[72:73], s[74:75]
    s_andn2_b64 exec, s[32:33], s[76:77]
    s_cbranch_execz K1_BAR1
    v_lshlrev_b32 v125, 14, v116
    v_lshlrev_b32 v126, 14, v117
    v_lshl_add_u32 v125, v118, 3, v125
    v_lshl_add_u32 v126, v119, 3, v126
    v_cmp_gt_u32 s[76:77], 24, v118
    v_cmp_gt_u32 s[78:79], 24, v119
    v_cmp_le_u32 vcc, 24, v124
    v_mov_b32 v127, 0
    s_andn2_b64 exec, s[76:77], s[72:73]
    buffer_store_dwordx2 v[120:121], v125, s[{sWS}:{sWS+3}], s31 offen sc1
    s_andn2_b64 exec, s[78:79], s[74:75]
    buffer_store_dwordx2 v[122:123], v126, s[{sWS}:{sWS+3}], s31 offen sc1
    s_mov_b64 exec, vcc
    ds_max_u32 v127, v124 offset:{MISC + 24}
    s_branch K1_BAR1
K1_AUX:
    s_cmp_lg_u32 s3, 15
    s_cbranch_scc1 K1_BAR1
    s_waitcnt vmcnt(6)
    v_lshlrev_b32 v20, 16, v14
    v_and_b32 v21, 0xffff0000, v14
    v_lshlrev_b32 v22, 16, v15
    v_and_b32 v23, 0xffff0000, v15
    v_mul_f32 v20, s34, v20
    v_mul_f32 v21, s34, v21
    v_mul_f32 v22, s34, v22
    v_mul_f32 v23, s34, v23
    v_and_b32 v24, 3, v1
    v_lshlrev_b32 v24, 4, v24            ; ((h>>2)&3)*16
    v_bfe_u32 v25, v1, 3, 2
    v_lshl_add_u32 v24, v25, 6, v24      ; + ((h>>5)&3)*64
    v_bfe_u32 v25, v1, 2, 1
    v_lshl_add_u32 v24, v25, 8, v24      ; + half*256
    v_lshrrev_b32 v25, 5, v1
    v_lshl_add_u32 v24, v25, 9, v24      ; + s*512
    ds_write_b128 v24, v[20:23] offset:{WT}
K1_BAR1:
    s_mov_b64 exec, -1
    v_lshrrev_b32 v6, 2, v0
    v_and_b32 v7, 3, v0
    v_lshlrev_b32 v127, 1, v7            ; 2j
    v_lshlrev_b32 v7, 4, v7
    v_lshl_add_u32 v5, v6, 7, v7
    v_add_u32 v5, {CST}, v5
    v_lshl_add_u32 v126, v6, 8, v7
    v_lshl_add_u32 v7, v6, 16, v7
    v_and_b32 v6, 0x3fc, v0
    v_mov_b32 v4, 0
    s_waitcnt lgkmcnt(0)
    s_barrier
    """)
    stamp(a, 1)
    a(f"""
    ds_read_b32 v108, v6 offset:{HIST}
    ds_read_b128 v[100:103], v5
    ds_read_b128 v[104:107], v5 offset:64
    ds_read_b32 v109, v4 offset:{MISC + 24}
    s_mov_b32 s24, 0x11111111
    s_mov_b32 s25, 0x11111111
    s_movk_i32 s28, 0x3e00
    s_waitcnt lgkmcnt(3)
    v_sub_u32 v110, v108, v127
    v_min_u32 v108, 31, v108
    v_lshlrev_b32 v108, 9, v108
    v_cmp_lt_i32 vcc, 0, v110
    v_cmp_lt_i32 s[72:73], 8, v110
    s_waitcnt lgkmcnt(0)
    v_readfirstlane_b32 s29, v109
    s_mov_b64 exec, s[24:25]
    v_bfi_b32 v101, s28, v108, v101
    s_or_b64 exec, vcc, s[24:25]
    buffer_store_dwordx4 v[100:103], v7, s[{sWS}:{sWS+3}], s31 offen sc1
    s_mov_b64 exec, s[72:73]
    buffer_store_dwordx4 v[104:107], v7, s[{sWS}:{sWS+3}], s31 offen offset:64 sc1
    s_mov_b64 exec, -1
    s_cmp_eq_u32 s29, 0
    s_cbranch_scc1 K1_NOPACK
    s_cmp_lg_u32 s3, 15
    s_cbranch_scc1 K1_NOSCAN
    v_lshlrev_b32 v6, 4, v1
    ds_read_b128 v[52:55], v6 offset:{HIST}
    s_lshl_b32 s24, s2, 10
    s_add_u32 s24, s24, {TAB_OFF}
    s_waitcnt lgkmcnt(0)
    v_add_u32 v57, v52, v53              ; p2
    v_add_u32 v58, v57, v54              ; p3
    v_add_u32 v59, v58, v55              ; tot
    v_mov_b32 v60, v59
    """)
    wave_scan(a, [60])
    a(f"""
    v_sub_u32 v60, v60, v59              ; base
    v_add_u32 v61, v60, v52
    v_add_u32 v62, v60, v57
    v_add_u32 v63, v60, v58
    v_lshlrev_b32 v64, 3, v60
    v_lshlrev_b32 v65, 3, v61
    v_lshlrev_b32 v66, 3, v62
    v_lshlrev_b32 v67, 3, v63
    ds_write_b128 v6, v[64:67] offset:{START}
    v_lshl_or_b32 v60, v52, 16, v60
    v_lshl_or_b32 v61, v53, 16, v61
    v_lshl_or_b32 v62, v54, 16, v62
    v_lshl_or_b32 v63, v55, 16, v63
    buffer_store_dwordx4 v[60:63], v6, s[{sWS}:{sWS+3}], s24 offen sc1
    s_waitcnt lgkmcnt(0)
K1_NOSCAN:
    s_barrier
    s_mov_b64 exec, s[32:33]
    ds_read_b32 v116, v116 offset:{START}
    ds_read_b32 v117, v117 offset:{START}
    s_waitcnt lgkmcnt(0)
    v_lshl_add_u32 v116, v118, 3, v116
    v_lshl_add_u32 v117, v119, 3, v117
    ds_write_b64 v116, v[120:121] offset:{STAGE}
    ds_write_b64 v117, v[122:123] offset:{STAGE}
    s_mov_b64 exec, -1
    v_lshlrev_b32 v6, 4, v0
    v_cmp_gt_u32 vcc, {CHS // 16}, v0
    s_mul_i32 s24, s2, {CHS}
    s_add_u32 s24, s24, {REC_OFF}
    s_waitcnt lgkmcnt(0)
    s_barrier
    s_mov_b64 exec, vcc
    ds_read_b128 v[52:55], v6 offset:{STAGE}
    s_waitcnt lgkmcnt(0)
    buffer_store_dwordx4 v[52:55], v6, s[{sWS}:{sWS+3}], s24 offen sc1
    s_mov_b64 exec, -1
    s_waitcnt vmcnt(0)
K1_NOPACK:
K1_ADDR:
    """)
    gemm_addr(a, vb, vxa, 11, 24, QH, XB)
    a(f"""
    s_mov_b32 s65, 0x07060100
    s_mov_b32 s66, 0x07060302
    s_lshr_b32 s29, s3, 3
    s_lshl_b32 s30, s29, 6               ; 64*rh
    s_sub_u32 s28, {N}, s{sROW0}
    s_min_u32 s28, s28, {NB}
    s_sub_u32 s28, s28, s30              ; valid rows from this wave's first row
    s_add_u32 s30, s30, s{sROW0}
    v_add_u32 v119, s30, v2
    v_lshlrev_b32 v119, 8, v119
    s_and_b32 s24, s3, 3
    s_lshl_b32 s24, s24, 6
    v_lshl_add_u32 v18, v3, 4, s24       ; (4*(cp&3)+g)*16
    v_add_u32 v119, v119, v18
    s_bfe_u32 s30, s3, 0x10002
    s_mul_i32 s25, s30, {PS}
    s_mul_i32 s29, s29, {64 * ROWS}
    s_lshl_b32 s30, s30, 9
    s_add_u32 s29, s29, s30
    s_add_u32 s29, s29, {QH}
    v_mul_u32_u24 v19, {ROWS}, v2
    v_add3_u32 v18, v18, v19, s29
    v_mov_b32 v118, 0                    ; max|P'|
    v_mov_b32 v19, 0                     ; max|Q'|
    s_waitcnt vmcnt(2)
    s_cmp_lg_u32 s3, 14
    s_cbranch_scc1 K1_NOW2S
    """)
    a(f"""
    s_lshl_b32 s68, s2, 8
    s_add_u32 s68, s68, {W2F_OFF}
    v_lshlrev_b32 v13, 4, v2
    s_mov_b64 exec, 0xffff
    v_lshl_or_b32 v{vAcc}, v{vW+4}, 16, v{vW}
    v_lshl_or_b32 v{vAcc+1}, v{vW+5}, 16, v{vW+1}
    v_lshl_or_b32 v{vAcc+2}, v{vW+6}, 16, v{vW+2}
    v_lshl_or_b32 v{vAcc+3}, v{vW+7}, 16, v{vW+3}
    buffer_store_dwordx4 v[{vAcc}:{vAcc+3}], v13, s[{sWS}:{sWS+3}], s68 offen sc1
    s_mov_b64 exec, -1
K1_NOW2S:
    """)
    a("v_mov_b32 v120, v16")
    a("v_mov_b32 v121, v17")
    a("s_barrier")
    stamp(a, 2)
    wreads, xreads, mfp = gemm_parts(a, vW, vX, vAcc, vb, vxa, lambda aa: "0", acc2=True)
    _, _, mf = gemm_parts(a, vW, vX, vAcc, vb, vxa, lambda aa: f"v[{vB1+4*aa}:{vB1+4*aa+3}]", acc2=True)

    def epp(i):
        lo = vAcc + 8 * (i & 1); hi = lo + 4
        for r in range(8):
            a(f"v_fma_f32 v{lo+r}, v{lo+r}, s34, 0")
        a(f"v_cvt_pk_bf16_f32 v116, v{lo}, v{lo+1}")
        a(f"v_cvt_pk_bf16_f32 v117, v{lo+2}, v{lo+3}")
        for r in range(0, 8, 2):
            a(f"v_max3_f32 v118, |v{lo+r}|, |v{lo+r+1}|, v118")
        for r in range(4):
            a(f"v_add_u32 v{hi+r}, 0x8000, v{hi+r}")
        for r in range(4):
            a(f"v_sub_u32_sdwa v{hi+r}, v{hi+r}, v{116+(r>>1)} clamp dst_sel:DWORD dst_unused:UNUSED_PAD src0_sel:DWORD src1_sel:WORD_{r&1}")
        for r in range(4):
            a(f"v_perm_b32 v{lo+r}, v{hi+r}, v{116+(r>>1)}, s{65+(r&1)}")
        a(f"v_cmp_gt_i32 vcc, s28, v2")
        a(f"s_mov_b64 exec, vcc")
        a(f"buffer_store_dwordx4 v[{lo}:{lo+3}], v119, s[{sWS}:{sWS+3}], s25 offen sc1")
        a(f"s_mov_b64 exec, -1")
        a("s_sub_u32 s28, s28, 16")
        a("s_add_u32 s25, s25, 4096")

    def epi(i, last=False):
        o = vAcc + 8 * (i & 1)
        for r in range(8):
            a(f"v_mul_f32 v{o+r}, s34, v{o+r}")
        for r in range(0, 8, 2):
            a(f"v_max3_f32 v19, |v{o+r}|, |v{o+r+1}|, v19")
        if last:
            a("s_mov_b32 exec_lo, 0x00030003")
            a("s_mov_b32 exec_hi, 0x00030003")
        a(f"ds_write_b128 v18, v[{o}:{o+3}] offset:{i * 16 * ROWS}")
        a(f"ds_write_b128 v18, v[{o+4}:{o+7}] offset:{i * 16 * ROWS + 256}")
        if last:
            a("s_mov_b64 exec, -1")

    def signal(val, L):
        a(f"""
    s_cmp_lg_u32 s3, 0
    s_cbranch_scc1 {L}
    s_and_b32 s24, s2, 7
    s_lshl_b32 s24, s24, 5
    v_mov_b32 v124, s24
    v_mov_b32 v125, {val}
    s_mov_b64 exec, 1
    global_atomic_add v124, v125, s[{sDBG}:{sDBG+1}] sc1
    s_mov_b64 exec, -1
{L}:
        """)

    def poll(L, wave, shift, t):
        a(f"""
    s_cmp_lg_u32 s3, {wave}
    s_cbranch_scc1 {L}_OK
    v_lshlrev_b32 v{t}, 5, v1
    s_mov_b64 exec, 0xff
    s_movk_i32 s24, {SPIN - 65536 if SPIN > 32767 else SPIN}
    s_and_b32 s24, s24, 0xffff
{L}_SPIN:
    global_load_dword v{t+1}, v{t}, s[{sDBG}:{sDBG+1}] sc1
    s_sub_u32 s24, s24, 1
    s_waitcnt vmcnt(0)
    v_bfe_u32 v{t+1}, v{t+1}, {shift}, 16
    v_cmp_ne_u32 vcc, 32, v{t+1}
    s_cbranch_vccz {L}_DONE
    s_sleep {OPT["sleep"]}
    s_cmp_lg_u32 s24, 0
    s_cbranch_scc1 {L}_SPIN
    v_mov_b32 v{t}, 0
    v_mov_b32 v{t+1}, 1
    ds_write_b32 v{t}, v{t+1} offset:{MISC + 20}
    s_waitcnt lgkmcnt(0)
{L}_DONE:
    s_mov_b64 exec, -1
{L}_OK:
        """)

    wreads(); xreads(0); xreads(1)
    for p in range(4):
        a(f"v_lshlrev_b32 v{vB1+2*p}, 16, v{112+p}")
        a(f"v_and_b32 v{vB1+2*p+1}, 0xffff0000, v{112+p}")
    a("s_waitcnt lgkmcnt(8)")
    a("s_barrier")
    dma_w_issue(a, 120, sW1, 27, 24, 128 * 512, QH)
    a("s_waitcnt lgkmcnt(4)")
    mfp(0)
    xreads(2)
    a("s_waitcnt vmcnt(4)")
    a("s_barrier")
    signal(1, "K1_SIGA")
    stamp(a, 3)
    a("s_waitcnt lgkmcnt(4)")
    mfp(1)
    xreads(3)
    epp(0)
    a("s_waitcnt lgkmcnt(4)")
    mfp(2)
    epp(1)
    a("""
    s_cmp_ge_u32 s3, 8
    s_cbranch_scc1 K1_RH1
    s_waitcnt lgkmcnt(0)
    """)
    mfp(3)
    epp(2)
    epp(3)
    a("""
    s_waitcnt vmcnt(5)
    s_cmp_eq_u32 s3, 0
    s_cbranch_scc1 K1_GD
    s_waitcnt vmcnt(4)
    s_branch K1_GD
K1_RH1:
    """)
    epp(2)
    a("s_waitcnt vmcnt(3)")
    a("K1_GD:")
    row_max(a, 118)
    a(f"""
    v_mov_b32 v116, 0
    s_mov_b32 exec_lo, 0x80008000
    s_mov_b32 exec_hi, 0x80008000
    ds_max_u32 v116, v118 offset:{MISC}
    s_mov_b64 exec, -1
    s_waitcnt lgkmcnt(0)
    """)
    stamp(a, 4)
    a(f"""
    s_barrier
    s_cmp_lg_u32 s3, 1
    s_cbranch_scc1 K1_NOPM
    ds_read_b32 v118, v116 offset:{MISC}
    s_lshl_b32 s24, s2, 2
    s_add_u32 s24, s24, {PMAX_OFF}
    s_mov_b64 exec, 1
    s_waitcnt lgkmcnt(0)
    buffer_store_dword v118, v116, s[{sWS}:{sWS+3}], s24 offen sc1
    s_mov_b64 exec, -1
K1_NOPM:
    """)
    wreads(); xreads(0); xreads(1)
    poll("K2_PA", 15, 0, 110)
    stamp(a, 5)
    a(f"""
    s_lshl_b32 s24, s2, 16
    s_add_u32 s{sRECB}, s24, {CELL_OFF}
    s_waitcnt vmcnt(0) lgkmcnt(8)
    s_barrier
    buffer_load_dwordx4 v[{vRec}:{vRec+3}], v126, s[{sWS}:{sWS+3}], s{sRECB} offen sc1
    buffer_load_dwordx4 v[{vRec+4}:{vRec+7}], v126, s[{sWS}:{sWS+3}], s{sRECB} offen offset:64 sc1
    """)
    signal(0x10000, "K1_SIGB")
    stamp(a, 6)
    a("s_waitcnt lgkmcnt(4)")
    mf(0)
    xreads(2)
    a("s_waitcnt lgkmcnt(4)")
    mf(1)
    a("s_cmp_ge_u32 s3, 8")
    a("s_cbranch_scc1 K2_NOX3")
    xreads(3)
    a("K2_NOX3:")
    epi(0)
    a("s_waitcnt lgkmcnt(2)")
    mf(2)
    epi(1)
    a("s_cmp_ge_u32 s3, 8")
    a(f"s_cbranch_scc1 K2_E2")
    mf(3)
    epi(2)
    epi(3)
    a(f"s_branch K2_GD")
    a(f"K2_E2:")
    epi(2, last=True)
    a(f"K2_GD:")
    row_max(a, 19)
    a(f"""
    v_mov_b32 v4, 0
    s_mov_b32 exec_lo, 0x80008000
    s_mov_b32 exec_hi, 0x80008000
    ds_max_u32 v4, v19 offset:{MISC + 4}
    s_mov_b64 exec, -1
    s_mov_b32 s{sBATCH}, 0
    s_waitcnt vmcnt(1)
    s_cmp_eq_u32 s3, 0
    s_cbranch_scc1 K2_CELLS
    s_waitcnt vmcnt(0)
K2_CELLS:
    v_bfe_u32 v124, v{vRec+1}, 9, 5
    s_nop 1
    v_mov_b32_dpp v124, v124 quad_perm:[0,0,0,0] row_mask:0xf bank_mask:0xf
    v_sub_u32 v125, v124, v127
    """)
    for k in range(6):
        a(f"v_cmp_lt_i32 s[{sM+2*k}:{sM+2*k+1}], {8*(k>>1)+(k&1)}, v125")
    a(f"""
    s_mov_b64 exec, s[{sM+8}:{sM+9}]
    s_cbranch_execz K2_NOM2
    buffer_load_dwordx4 v[{vRec+8}:{vRec+11}], v126, s[{sWS}:{sWS+3}], s{sRECB} offen offset:128 sc1
    v_cmp_lt_u32 vcc, 24, v124
    s_mov_b64 exec, vcc
    ds_max_u32 v4, v124 offset:{MISC + 12}
    s_waitcnt vmcnt(0)
K2_NOM2:
    s_mov_b64 exec, -1
    """)

    def rec_loads():
        for k in range(6):
            a(f"v_cmp_lt_i32 s[{sM+2*k}:{sM+2*k+1}], {8*(k>>1)+(k&1)}, v127")
        for m in range(3):
            a(f"s_mov_b64 exec, s[{sM+4*m}:{sM+4*m+1}]")
            a(f"buffer_load_dwordx4 v[{vRec+4*m}:{vRec+4*m+3}], v126, s[{sWS}:{sWS+3}], s{sRECB} offen offset:{64*m} sc1")
        a("s_mov_b64 exec, -1")

    def hist(L):
        a("s_mov_b32 s35, 0xffff0000")
        for k in range(6):
            m, o = k >> 1, k & 1
            r0 = vRec + 4 * m + 2 * o
            a(f"s_mov_b64 exec, s[{sM+2*k}:{sM+2*k+1}]")
            if k in (2, 4):
                a(f"s_cbranch_execz {L}_HISTDONE")
            a(f"v_and_b32 v{vPos+k}, 0x1fc, v{r0+1}")
            a(f"v_and_or_b32 v8, v{r0}, s35, 1")
            a(f"ds_add_rtn_u32 v{vRank+k}, v{vPos+k}, v8 offset:{CNT}")
            a(f"v_and_b32 v{r0}, 0xffff, v{r0}")
            a(f"v_and_b32 v{r0+1}, s35, v{r0+1}")
        a(f"{L}_HISTDONE:")
        a("s_mov_b64 exec, -1")

    def scanrank(L, wscan, wrank, degt=True):
        a(f"""
    s_sub_u32 s24, s3, {wscan}
    s_cmp_ge_u32 s24, 2
    s_cbranch_scc1 {L}_SRDONE
    v_lshlrev_b32 v8, 2, v1
    ds_read_b32 v78, v8 offset:{CNT}
    ds_read_b32 v79, v8 offset:{CNT + 256}
    v_mov_b32 v9, 1
    s_waitcnt lgkmcnt(0)
    v_and_b32 v68, 0xffff, v78
    v_and_b32 v69, 0xffff, v79
    s_cmp_eq_u32 s3, {wscan}
    s_cbranch_scc1 {L}_SCAN
    v_mov_b32 v77, 0
    ds_write_b32 v8, v77 offset:{DH}
    v_min_u32 v73, 63, v68
    v_min_u32 v74, 63, v69
    v_sub_u32 v73, 63, v73
    v_sub_u32 v74, 63, v74
    v_lshlrev_b32 v73, 2, v73
    v_lshlrev_b32 v74, 2, v74
    ds_add_rtn_u32 v75, v73, v9 offset:{DH}
    s_mov_b32 exec_hi, 0xf               ; nodes 64..99
    ds_add_rtn_u32 v76, v74, v9 offset:{DH}
    s_mov_b64 exec, -1
    ds_read_b32 v77, v8 offset:{DH}
    s_waitcnt lgkmcnt(0)
{L}_SCAN:
    v_mov_b32 v70, v68
    v_mov_b32 v71, v69
    v_mov_b32 v72, v77
        """)
        wave_scan(a, [70, 71, 72])
        a(f"""
    v_mov_b32 v9, {LIST}
    v_readlane_b32 s24, v70, 63
    v_sub_u32 v70, v70, v68
    v_sub_u32 v71, v71, v69
    v_add_u32 v71, s24, v71
    v_lshl_add_u32 v80, v70, 3, v9
    v_lshl_add_u32 v4, v71, 3, v9
    s_cmp_eq_u32 s3, {wscan}
    s_cbranch_scc0 {L}_RANK
    ds_write_b32 v8, v80 offset:{POS}
    ds_write_b32 v8, v4 offset:{POS + 256}
    {f"ds_add_u32 v8, v68 offset:{DEGT}" if degt else ""}
    {f"ds_add_u32 v8, v69 offset:{DEGT + 256}" if degt else ""}
    s_branch {L}_SRDONE
{L}_RANK:
    v_sub_u32 v72, v72, v77
    ds_bpermute_b32 v73, v73, v72
    ds_bpermute_b32 v74, v74, v72
    v_mov_b32 v81, v68
    v_mul_u32_u24 v82, {ROWS}, v1
    v_add_u32 v82, {QH}, v82
    v_lshrrev_b32 v83, 16, v78
    v_mov_b32 v5, v69
    v_add_u32 v6, {64 * ROWS}, v82
    v_lshrrev_b32 v7, 16, v79
    s_waitcnt lgkmcnt(0)
    v_add_lshl_u32 v73, v73, v75, 4
    v_add_lshl_u32 v74, v74, v76, 4
    ds_write_b128 v73, v[80:83] offset:{INFO}
    s_mov_b32 exec_hi, 0xf
    ds_write_b128 v74, v[4:7] offset:{INFO}
    s_mov_b64 exec, -1
{L}_SRDONE:
        """)

    def fastrank(L, wrank):
        a(f"""
    s_cmp_lg_u32 s3, {wrank}
    s_cbranch_scc1 {L}_FRDONE
    s_setprio 3
    v_lshlrev_b32 v8, 2, v1
    ds_read_b32 v78, v8 offset:{CNT}
    ds_read_b32 v79, v8 offset:{CNT + 256}
    v_mov_b32 v9, 1
    v_mul_u32_u24 v80, {LROW}, v1
    v_add_u32 v80, {LIST}, v80
    v_add_u32 v4, {64 * LROW}, v80
    v_mul_u32_u24 v82, {ROWS}, v1
    v_add_u32 v82, {QH}, v82
    v_add_u32 v6, {64 * ROWS}, v82
    s_waitcnt lgkmcnt(0)
    v_and_b32 v81, 0xffff, v78
    v_and_b32 v5, 0xffff, v79
    v_min_u32 v73, 63, v81
    v_min_u32 v74, 63, v5
    v_sub_u32 v73, 63, v73
    v_sub_u32 v74, 63, v74
    v_lshlrev_b32 v73, 2, v73
    v_lshlrev_b32 v74, 2, v74
    ds_add_rtn_u32 v75, v73, v9 offset:{DH}
    s_mov_b32 exec_hi, 0xf               ; nodes 64..99
    ds_add_rtn_u32 v76, v74, v9 offset:{DH}
    s_mov_b64 exec, -1
    ds_read_b32 v77, v8 offset:{DH}
    ds_write_b32 v8, v81 offset:{DEGT}
    ds_write_b32 v8, v5 offset:{DEGT + 256}
    v_max_u32 v72, v81, v5
    v_cmp_lt_u32 vcc, {LCAP}, v72
    v_mov_b32 v71, 0
    s_mov_b64 exec, vcc
    ds_max_u32 v71, v72 offset:{MISC + 8}
    s_mov_b64 exec, -1
    v_lshrrev_b32 v83, 16, v78
    v_lshrrev_b32 v7, 16, v79
    s_waitcnt lgkmcnt(3)
    v_mov_b32 v72, v77
        """)
        wave_scan(a, [72])
        a(f"""
    v_sub_u32 v72, v72, v77
    ds_bpermute_b32 v73, v73, v72
    ds_bpermute_b32 v74, v74, v72
    s_waitcnt lgkmcnt(0)
    v_add_lshl_u32 v73, v73, v75, 4
    v_add_lshl_u32 v74, v74, v76, 4
    ds_write_b128 v73, v[80:83] offset:{INFO}
    s_mov_b32 exec_hi, 0xf
    ds_write_b128 v74, v[4:7] offset:{INFO}
    s_mov_b64 exec, -1
    s_setprio 0
{L}_FRDONE:
        """)

    def fastscatter(L):
        a(f"s_movk_i32 s24, {LROW // 4}")
        for k in range(6):
            m, o = k >> 1, k & 1
            r0 = vRec + 4 * m + 2 * o
            a(f"s_mov_b64 exec, s[{sM+2*k}:{sM+2*k+1}]")
            if k in (2, 4):
                a(f"s_cbranch_execz {L}_FSDONE")
            a(f"v_min_u16 v8, {LCAP - 1}, v{vRank+k}")
            a(f"v_mul_u32_u24 v9, s24, v{vPos+k}")
            a(f"v_mad_u32_u16 v9, v8, 8, v9")
            a(f"ds_write_b64 v9, v[{r0}:{r0+1}] offset:{LIST}")
        a(f"{L}_FSDONE:")
        a("s_mov_b64 exec, -1")

    def posread(L):
        for k in range(6):
            a(f"s_mov_b64 exec, s[{sM+2*k}:{sM+2*k+1}]")
            if k in (2, 4):
                a(f"s_cbranch_execz {L}_POSDONE")
            a(f"ds_read_b32 v{vPos+k}, v{vPos+k} offset:{POS}")
        a(f"{L}_POSDONE:")
        a("s_mov_b64 exec, -1")

    def scatter(L):
        for k in range(6):
            m, o = k >> 1, k & 1
            r0 = vRec + 4 * m + 2 * o
            a(f"s_mov_b64 exec, s[{sM+2*k}:{sM+2*k+1}]")
            if k in (2, 4):
                a(f"s_cbranch_execz {L}_SCATDONE")
            a(f"v_mad_u32_u16 v{vPos+k}, v{vRank+k}, 8, v{vPos+k}")
            a(f"ds_write_b64 v{vPos+k}, v[{r0}:{r0+1}]")
        a(f"{L}_SCATDONE:")
        a("s_mov_b64 exec, -1")

    hist("K2A")
    a("s_waitcnt lgkmcnt(0)")
    a("s_barrier")
    stamp(a, 10)
    assert U in (2, 4, 6, 8)
    U0 = min(U, 4)
    PB = [100, 104, 108, 112, 80, 84, 88, 92][:U]
    PR = [116, 118, 120, 122, 4, 6, 8, 10][:U]
    vE = 124
    vI = 52
    vAddr, vDeg, vH = vI, vI + 1, vI + 2
    vL16, vK1, vG16, vWT, vQI, vTmp = 56, 57, 58, 59, 60, 61
    vQ, vW, vT, vX, vN, vD = 20, 28, 36, 44, 64, 72
    sQ, sS, sD0, sD3, sSafe, sSl, sSEL = 27, 28, 29, 30, 31, 32, 33

    def main_consts(n=U):
        a(f"""
    v_lshlrev_b32 v{vL16}, 4, v2
    v_mov_b32 v{vG16}, {INFO}
    v_lshl_add_u32 v{vG16}, v3, 4, v{vG16}
    v_add_u32 v{vWT}, {WT}, v{vL16}
    s_mov_b32 s{sSEL}, 0x00003f80
    s_cmp_lt_u32 s3, {OPT['nw']}
    s_cselect_b32 s{sQ}, s3, 50
        """)
        for j in range(n):
            a(f"v_mov_b32 v{PR[j]+1}, v{vL16}")

    def item_loads(n=U):
        for j in range(n):
            a(f"ds_read_b32 v{PR[j]}, v{vAddr} offset:{8*j}")
        a(f"""
    ds_read_b32 v{vE}, v{vAddr} offset:4
    v_add3_u32 v{vH}, v{vH}, s25, v{vL16}
    v_readlane_b32 s{sD0}, v{vDeg}, 0
    v_readlane_b32 s{sD3}, v{vDeg}, 48
    v_readlane_b32 s35, v{vDeg}, 16
    v_readlane_b32 s71, v{vDeg}, 32
        """)

    def item_issue(extra, j0=0, j1=U):
        for j in range(j0, j1):
            a(f"s_waitcnt lgkmcnt({j1 - 1 - j + extra})")
            a(f"buffer_load_dwordx4 v[{PB[j]}:{PB[j]+3}], v[{PR[j]}:{PR[j]+1}], s[{sP}:{sP+3}], s{sSl} idxen offen {OPT['pld']}")
        if j1 == U:
            a(f"ds_read_b32 v{PR[0]}, v{vAddr} offset:{8*U}")

    fastrank("K2A", 9)
    fastscatter("K2A")
    poll("K2_PB", 15, 16, 84)
    srd(a, sP, 22, 23, N, stride=256)
    a(f"""
    v_mov_b32 v4, 0
    s_mov_b32 s{sNBATCH}, 1
    v_lshlrev_b32 v5, 4, v1
    s_mov_b32 s24, {PMAX_OFF}
    s_waitcnt lgkmcnt(0)
    s_barrier
    """)
    stamp(a, 7)
    cstamp(a, 0)
    diag(a, 2, "K2_DG1")
    diag(a, 4, "K2_DG2", cyc=True)
    a(f"""
    buffer_load_dwordx4 v[{vT}:{vT+3}], v5, s[{sWS}:{sWS+3}], s24 offen sc1
    ds_read_b128 v[8:11], v4 offset:{MISC}
    ds_read_b32 v12, v4 offset:{MISC + 20}
    s_lshl_b32 s24, s3, 6
    v_lshl_add_u32 v{vI}, v3, 4, s24
    ds_read_b128 v[{vI}:{vI+3}], v{vI} offset:{INFO}
    s_mov_b32 s25, 0
    s_mov_b32 s{sSl}, 0
    s_waitcnt lgkmcnt(1)
    v_or_b32 v6, v10, v11
    v_readfirstlane_b32 s28, v12
    v_readfirstlane_b32 s24, v6
    s_cmp_lg_u32 s28, 0
    s_cbranch_scc1 K2_END
    s_cmp_lg_u32 s24, 0
    s_cbranch_scc1 K2_SLOW0
    """)

    def pmax_reduce():
        a(f"v_max3_f32 v{vT}, v{vT}, v{vT+1}, v{vT+2}")
        a(f"v_max_f32 v{vT}, v{vT}, v{vT+3}")
        for st in ("row_shr:1 row_mask:0xf", "row_shr:2 row_mask:0xf", "row_shr:4 row_mask:0xf", "row_shr:8 row_mask:0xf",
                   "row_bcast:15 row_mask:0xa", "row_bcast:31 row_mask:0xc"):
            a("s_nop 1")
            a(f"v_max_f32_dpp v{vT}, v{vT}, v{vT} {st} bank_mask:0xf")
        a("s_nop 0")
        a(f"v_readlane_b32 s{sPM}, v{vT}, 63")

    main_consts()
    a(f"""
    s_waitcnt lgkmcnt(0)
    v_mov_b32 v{vK1}, v9
    ds_read_b128 v[{vW}:{vW+3}], v{vWT}
    ds_read_b128 v[{vW+4}:{vW+7}], v{vWT} offset:256
    """)
    item_loads()
    a(f"""
    ds_read_b128 v[{vQ}:{vQ+3}], v{vH}
    ds_read_b128 v[{vQ+4}:{vQ+7}], v{vH} offset:256
    """)
    item_issue(3)
    a(f"s_waitcnt vmcnt({U})")
    pmax_reduce()
    a(f"""
    s_nop 1
    v_add_f32 v{vK1}, s{sPM}, v{vK1}
    v_fma_f32 v{vK1}, v{vK1}, 4.0, 4.0
    {"s_cmp_ge_u32 s3, " + str(OPT['nw']) if OPT['nw'] < 16 else ""}
    {"s_cbranch_scc1 K2_DONE" if OPT['nw'] < 16 else ""}
    s_branch K2_GO
K2_SLOW0:
    s_waitcnt vmcnt(0)
    """)
    pmax_reduce()
    a(f"""
    v_lshrrev_b32 v6, 2, v0              ; chunk
    v_lshlrev_b32 v7, 10, v6
    s_lshl_b32 s24, s2, 2
    s_add_u32 s24, s24, {TAB_OFF}
    v_mul_u32_u24 v126, {CHS}, v6
    v_cmp_lt_u32 vcc, 24, v124
    s_mov_b32 s{sRECB}, {REC_OFF}
    s_mov_b64 exec, vcc
    buffer_load_dword v6, v7, s[{sWS}:{sWS+3}], s24 offen sc1
    s_waitcnt vmcnt(0)
    v_lshrrev_b32 v124, 16, v6
    v_and_b32 v6, 0xffff, v6
    v_add_u32 v6, v6, v127
    v_lshl_add_u32 v126, v6, 3, v126
    ds_max_u32 v4, v124 offset:{MISC + 12}
    s_mov_b64 exec, -1
    v_sub_u32 v127, v124, v127
    """)
    scanrank("K2S", 8, 9, degt=False)
    a("s_waitcnt lgkmcnt(0)")
    a("s_barrier")
    posread("K2S")
    a("s_waitcnt lgkmcnt(0)")
    scatter("K2S")
    a("""
    s_branch K2_MAIN
K2_BATCH:
    s_waitcnt vmcnt(0)
    """)
    hist("K2B")
    a("s_waitcnt lgkmcnt(0)")
    a("s_barrier")
    scanrank("K2B", 8, 9)
    a("s_waitcnt lgkmcnt(0)")
    a("s_barrier")
    posread("K2B")
    a("s_waitcnt lgkmcnt(0)")
    scatter("K2B")
    a(f"""
K2_MAIN:
    v_mov_b32 v4, 0
    s_waitcnt lgkmcnt(0)
    s_barrier
    ds_read_b128 v[{vI}:{vI+3}], v4 offset:{MISC}
    """)
    main_consts()
    a(f"""
    s_waitcnt lgkmcnt(0)
    v_readfirstlane_b32 s24, v{vI+3}
    v_add_f32 v{vK1}, s{sPM}, v{vI+1}
    v_fma_f32 v{vK1}, v{vK1}, 4.0, 4.0
    s_add_u32 s24, s24, 23
    s_mul_i32 s24, s24, 2731
    s_lshr_b32 s{sNBATCH}, s24, 16
    s_cmp_le_u32 s{sNBATCH}, 1
    s_cbranch_scc1 K2_ITEM
    v_mov_b32 v{vK1}, 0x7f800000         ; several batches: every item takes the plain path
K2_ITEM:
    s_cmp_ge_u32 s{sQ}, 50
    s_cbranch_scc1 K2_DONE
    s_cmp_ge_u32 s{sQ}, 25
    s_cselect_b32 s24, 25, 0
    s_cselect_b32 s25, 512, 0
    s_cselect_b32 s{sSl}, {PS}, 0
    s_sub_u32 s24, s{sQ}, s24
    s_lshl_b32 s24, s24, 6
    v_add_u32 v{vTmp}, s24, v{vG16}
    ds_read_b128 v[{vI}:{vI+3}], v{vTmp}
    v_add_u32 v{vTmp}, s25, v{vWT}
    ds_read_b128 v[{vW}:{vW+3}], v{vTmp}
    ds_read_b128 v[{vW+4}:{vW+7}], v{vTmp} offset:256
    s_mov_b32 s{sP+2}, {N}
    s_waitcnt lgkmcnt(2)
    """)
    item_loads()
    a(f"""
    ds_read_b128 v[{vQ}:{vQ+3}], v{vH}
    ds_read_b128 v[{vQ+4}:{vQ+7}], v{vH} offset:256
    """)
    item_issue(3)
    a(f"""
K2_GO:
    v_cvt_f32_u32 v{vTmp}, v{vDeg}
    v_cvt_f32_u32 v{vI+3}, v{vI+3}
    v_fma_f32 v{vTmp}, v{vTmp}, v{vK1}, v{vI+3}
    s_max_u32 s24, s{sD0}, s{sD3}
    s_min_u32 s{sD3}, s{sD0}, s{sD3}
    v_cmp_nge_f32 vcc, {BOUND:#x}, v{vTmp}
    s_max_u32 s{sD0}, s35, s71
    s_min_u32 s35, s35, s71
    s_max_u32 s{sD0}, s{sD0}, s24
    s_min_u32 s{sD3}, s{sD3}, s35
    s_min_u32 s{sD0}, s{sD0}, {LISTCAP}
    s_sub_u32 s{sSafe}, s{sD0}, {U}
    s_cmp_gt_i32 s{sSafe}, 0
    s_cselect_b32 s{sP+2}, {N}, 0
    s_mov_b32 s{sS}, 0
    {"s_setprio 0" if OPT["prio"] else ""}
    s_cbranch_vccnz K2_P_START
    s_cmp_lg_u32 s{sD3}, 0
    s_cbranch_scc1 K2_F_FIRST
    """)
    for r in range(8):
        a(f"v_mov_b32 v{vN+r}, 0")
        a(f"v_mov_b32 v{vD+r}, 1.0")
    a(f"""
    s_cmp_eq_u32 s{sD0}, 0
    s_cbranch_scc1 K2_F_FLUSH
    v_cmpx_lt_u32 vcc, 0, v{vDeg}
    """)

    def step(j, mode):
        P = PB[j]
        T = vN if mode == "first" else vT
        eh = j & 1
        jn = (j + 1) % U
        osel = "op_sel_hi:[1,0,1]" if eh == 0 else "op_sel:[0,1,0] op_sel_hi:[1,1,1]"
        a("s_waitcnt lgkmcnt(0)")
        for r in range(0, 8, 2):
            a(f"v_pk_fma_f32 v[{T+r}:{T+r+1}], v[{vW+r}:{vW+r+1}], v[{vE}:{vE+1}], v[{vQ+r}:{vQ+r+1}] {osel}")
        a(f"ds_read_b32 v{vE + (eh ^ 1)}, v{vAddr} offset:{8*(j+1)+4}")
        a(f"s_waitcnt vmcnt({U-1})")
        if mode != "plain":
            for p in range(4):
                a(f"v_dot2_f32_bf16 v{T+p}, v{P+p}, s{sSEL}, v{T+p}")
            a(f"v_pk_add_f32 v[{T+4}:{T+5}], v[{P}:{P+1}], v[{T+4}:{T+5}]")
            a(f"v_pk_add_f32 v[{T+6}:{T+7}], v[{P+2}:{P+3}], v[{T+6}:{T+7}]")
        else:
            for p in range(4):
                a(f"v_lshlrev_b32 v{vX+p}, 16, v{P+p}")
            a(f"v_pk_add_f32 v[{T+4}:{T+5}], v[{P}:{P+1}], v[{T+4}:{T+5}]")
            a(f"v_pk_add_f32 v[{T+6}:{T+7}], v[{P+2}:{P+3}], v[{T+6}:{T+7}]")
            a(f"v_pk_add_f32 v[{T}:{T+1}], v[{vX}:{vX+1}], v[{T}:{T+1}]")
            a(f"v_pk_add_f32 v[{T+2}:{T+3}], v[{vX+2}:{vX+3}], v[{T+2}:{T+3}]")
        a(f"buffer_load_dwordx4 v[{P}:{P+3}], v[{PR[j]}:{PR[j]+1}], s[{sP}:{sP+3}], s{sSl} idxen offen {OPT['pld']}")
        a(f"ds_read_b32 v{PR[jn]}, v{vAddr} offset:{8*(j+1+U)}")
        a(f"s_add_u32 s{sS}, s{sS}, 1")
        a(f"s_cmp_lt_i32 s{sS}, s{sSafe}")
        a(f"s_cselect_b32 s{sP+2}, {N}, 0")
        a(f"s_cmp_ge_u32 s{sS}, s{sD3}")
        for r in (4, 5, 6, 7, 0, 1, 2, 3):
            a(f"v_exp_f32 v{vX+r}, v{T+r}")
        order = (4, 6, 0, 2)
        if mode == "first":
            for r in order:
                a(f"v_pk_add_f32 v[{vD+r}:{vD+r+1}], v[{vX+r}:{vX+r+1}], 1.0 op_sel_hi:[1,0]")
        elif mode == "fast":
            for r in order:
                a(f"v_pk_fma_f32 v[{vN+r}:{vN+r+1}], v[{vN+r}:{vN+r+1}], v[{vX+r}:{vX+r+1}], v[{vN+r}:{vN+r+1}]")
            for r in order:
                a(f"v_pk_fma_f32 v[{vN+r}:{vN+r+1}], v[{T+r}:{T+r+1}], v[{vD+r}:{vD+r+1}], v[{vN+r}:{vN+r+1}]")
            for r in order:
                a(f"v_pk_fma_f32 v[{vD+r}:{vD+r+1}], v[{vD+r}:{vD+r+1}], v[{vX+r}:{vX+r+1}], v[{vD+r}:{vD+r+1}]")
        else:
            for r in order:
                a(f"v_pk_add_f32 v[{vX+r}:{vX+r+1}], v[{vX+r}:{vX+r+1}], 1.0 op_sel_hi:[1,0]")
            for r in (4, 5, 6, 7, 0, 1, 2, 3):
                a(f"v_rcp_f32 v{vX+r}, v{vX+r}")
            for r in order:
                a(f"v_pk_fma_f32 v[{vN+r}:{vN+r+1}], v[{T+r}:{T+r+1}], v[{vX+r}:{vX+r+1}], v[{vN+r}:{vN+r+1}]")
        if j == U - 1:
            a(f"v_add_u32 v{vAddr}, {8*U}, v{vAddr}")
        if j == U0 - 1 and OPT["prio"]:
            a("s_setprio 1")

    def loop(pfx, mode):
        tails = []
        if mode == "fast":
            a(f"{pfx}_FIRST:")
            step(0, "first")
            a(f"s_cbranch_scc1 {pfx}_T0")
            seq = list(range(1, U)) + [0]
        else:
            seq = list(range(U))
        for j in seq:
            a(f"{pfx}_S{j}:")
            step(j, mode)
            if j == seq[-1]:
                a(f"s_cbranch_scc0 {pfx}_S{seq[0]}")
            else:
                a(f"s_cbranch_scc1 {pfx}_T{j}")
        for j in [seq[-1]] + seq[:-1]:
            a(f"""
{pfx}_T{j}:
    {"s_setprio 2" if OPT["prio"] else ""}
    s_cmp_ge_u32 s{sS}, s{sD0}
    s_cbranch_scc1 {pfx}_FLUSH
    v_cmpx_lt_u32 vcc, s{sS}, v{vDeg}
    s_branch {pfx}_S{(j+1) % U}
            """)

    loop("K2_F", "fast")
    a(f"""
K2_F_FLUSH:
    s_mov_b64 exec, 1
    v_mov_b32 v{vQI}, 0
    v_mov_b32 v{vTmp}, 1
    ds_add_rtn_u32 v{vQI}, v{vQI}, v{vTmp} offset:{MISC + 16}
    s_mov_b64 exec, -1
    """)
    for r in range(8):
        a(f"v_rcp_f32 v{vX+r}, v{vD+r}")
    for r in range(0, 8, 2):
        a(f"v_pk_mul_f32 v[{vN+r}:{vN+r+1}], v[{vN+r}:{vN+r+1}], v[{vX+r}:{vX+r+1}]")
    a("K2_WRH:")
    for r in range(4):
        a(f"v_cvt_pk_bf16_f32 v{vX+r}, v{vN+2*r}, v{vN+2*r+1}")
    a(f"""
    ds_write_b128 v{vH}, v[{vX}:{vX+3}]
K2_NEXT:
    s_waitcnt lgkmcnt(0)
    v_readfirstlane_b32 s{sQ}, v{vQI}
    s_branch K2_ITEM
K2_P_START:
    """)
    for r in range(8):
        a(f"v_mov_b32 v{vN+r}, 0")
    a(f"""
    s_cmp_eq_u32 s{sD0}, 0
    s_cbranch_scc1 K2_P_FLUSH
    v_cmpx_lt_u32 vcc, 0, v{vDeg}
    """)
    loop("K2_P", "plain")
    a(f"""
K2_P_FLUSH:
    s_mov_b64 exec, 1
    v_mov_b32 v{vQI}, 0
    v_mov_b32 v{vTmp}, 1
    ds_add_rtn_u32 v{vQI}, v{vQI}, v{vTmp} offset:{MISC + 16}
    s_mov_b64 exec, -1
    s_cmp_le_u32 s{sNBATCH}, 1
    s_cbranch_scc1 K2_WRH
    """)
    a(f"""
    s_mul_i32 s24, s2, {SCR_STRIDE}
    s_add_u32 s24, s24, {SCR_OFF - QH}
    s_mov_b32 s{sSCR}, s22
    s_mov_b32 s{sSCR+1}, s23
    s_mov_b32 s{sSCR+2}, {WS_USED}
    s_mov_b32 s{sSCR+3}, 0x00020000
    v_add_u32 v{vH}, v{vH}, v{vL16}
    s_cmp_eq_u32 s{sBATCH}, 0
    s_cbranch_scc1 K2_P_ST
    buffer_load_dwordx4 v[{vX}:{vX+3}], v{vH}, s[{sSCR}:{sSCR+3}], s24 offen
    buffer_load_dwordx4 v[{vX+4}:{vX+7}], v{vH}, s[{sSCR}:{sSCR+3}], s24 offen offset:16
    s_waitcnt vmcnt(0)
    """)
    for r in range(0, 8, 2):
        a(f"v_pk_add_f32 v[{vN+r}:{vN+r+1}], v[{vN+r}:{vN+r+1}], v[{vX+r}:{vX+r+1}]")
    a(f"""
K2_P_ST:
    buffer_store_dwordx4 v[{vN}:{vN+3}], v{vH}, s[{sSCR}:{sSCR+3}], s24 offen
    buffer_store_dwordx4 v[{vN+4}:{vN+7}], v{vH}, s[{sSCR}:{sSCR+3}], s24 offen offset:16
    s_waitcnt vmcnt(0)
    s_branch K2_NEXT
    """)
    vF = 32
    a(f"""
K2_DONE:
    s_add_u32 s{sBATCH}, s{sBATCH}, 1
    s_cmp_ge_u32 s{sBATCH}, s{sNBATCH}
    s_cbranch_scc1 K2_FINAL
    s_waitcnt vmcnt(0)
    s_add_u32 s{sRECB}, s{sRECB}, 192
    v_subrev_u32 v127, 24, v127
    """)
    rec_loads()
    a(f"""
    s_barrier
    v_mov_b32 v4, 0
    v_lshlrev_b32 v5, 2, v0
    v_cmp_gt_u32 vcc, {(DEGT - CNT) // 4}, v0
    s_mov_b64 exec, vcc
    ds_write_b32 v5, v4 offset:{CNT}
    s_mov_b64 exec, 1
    v_mov_b32 v5, {MISC}
    v_mov_b32 v6, {OPT['nw']}
    ds_write_b32 v5, v6 offset:16
    s_mov_b64 exec, -1
    s_waitcnt lgkmcnt(0)
    s_barrier
    s_branch K2_BATCH
K2_FINAL:
    """)
    stamp(a, 8)
    cstamp(a, 1)
    a(f"""
    s_waitcnt vmcnt(0)
    s_and_b32 s24, s3, 3                 ; cp
    s_lshl_b32 s25, s24, 14
    s_add_u32 s25, s25, {W2F_OFF}
    v_lshlrev_b32 v4, 4, v1
    """)
    for f in range(16):
        if f and f % 4 == 0:
            a("s_add_u32 s25, s25, 4096")
        a(f"buffer_load_dwordx4 v[{vF+4*f}:{vF+4*f+3}], v4, s[{sWS}:{sWS+3}], s25 offen offset:{1024*(f%4)} sc1")
    srd(a, sB2, 18, 19, 256)
    srd(a, sOUT, 20, 21, N * 256)
    a(f"""
    s_lshl_b32 s24, s24, 6
    v_lshlrev_b32 v5, 4, v3              ; g*16
    buffer_load_dwordx4 v[8:11], v5, s[{sB2}:{sB2+3}], s24 offen
    s_lshr_b32 s27, s3, 2
    s_lshl_b32 s27, s27, 4               ; first row tile * 16
    v_add_u32 v6, s27, v2
    v_mul_u32_u24 v7, {ROWS}, v6
    v_add_u32 v7, v7, v5
    v_add_u32 v7, {QH}, v7
    v_lshlrev_b32 v20, 2, v6
    v_add_u32 v21, s{sROW0}, v6
    v_lshl_add_u32 v21, v21, 8, v5
    s_mov_b32 s34, {NLN2:#x}
    s_barrier
    s_cmp_le_u32 s{sNBATCH}, 1
    s_cbranch_scc1 K2_GEMM2
    s_mul_i32 s28, s2, {SCR_STRIDE}
    s_add_u32 s28, s28, {SCR_OFF}
    s_mov_b32 s{sSCR}, s22
    s_mov_b32 s{sSCR+1}, s23
    s_mov_b32 s{sSCR+2}, {WS_USED}
    s_mov_b32 s{sSCR+3}, 0x00020000
    v_and_b32 v22, 1, v3
    v_lshlrev_b32 v22, 9, v22
    v_lshl_add_u32 v22, v2, 4, v22       ; s*512 + l*16
    v_lshl_add_u32 v23, v2, 4, v22       ; s*512 + l*32
    s_mov_b32 s29, s3
K2_CONV:
    s_mul_i32 s30, s29, {ROWS}
    s_add_u32 s31, s30, s28
    buffer_load_dwordx4 v[100:103], v23, s[{sSCR}:{sSCR+3}], s31 offen
    buffer_load_dwordx4 v[104:107], v23, s[{sSCR}:{sSCR+3}], s31 offen offset:16
    s_add_u32 s30, s30, {QH}
    v_add_u32 v24, s30, v22
    s_waitcnt vmcnt(0)
    v_cvt_pk_bf16_f32 v100, v100, v101
    v_cvt_pk_bf16_f32 v101, v102, v103
    v_cvt_pk_bf16_f32 v102, v104, v105
    v_cvt_pk_bf16_f32 v103, v106, v107
    ds_write_b128 v24, v[100:103]
    s_add_u32 s29, s29, 16
    s_cmp_lt_u32 s29, {NB}
    s_cbranch_scc1 K2_CONV
    s_waitcnt lgkmcnt(0)
    s_barrier
K2_GEMM2:
    """)
    stamp(a, 9)
    diag(a, 3, "K2_DG3")
    diag(a, 5, "K2_DG4", cyc=True)
    vHB = 96
    vO = 24
    for rt in range(2):
        off = rt * 64 * ROWS
        if rt == 1:
            a("s_cmp_ge_u32 s3, 12")
            a("s_cbranch_scc1 K2_FIN")
            a(f"v_add_u32 v7, {off}, v7")
            a(f"v_add_u32 v21, {64 * 256}, v21")
        a(f"ds_read_b32 v22, v20 offset:{DEGT + rt * 256}")
        for ks in range(8):
            a(f"ds_read_b128 v[{vHB+4*ks}:{vHB+4*ks+3}], v7 offset:{(ks >> 2) * 512 + (ks & 3) * 64}")
        if rt == 0:
            a("s_waitcnt vmcnt(0)")
            for p in range(4):
                a(f"v_lshlrev_b32 v{12+2*p}, 16, v{8+p}")
                a(f"v_and_b32 v{13+2*p}, 0xffff0000, v{8+p}")
        for ks in range(8):
            a(f"s_waitcnt lgkmcnt({7-ks})")
            for aa in range(2):
                f = vF + 4 * (aa * 8 + ks)
                c = "0" if ks == 0 else f"v[{vO+4*aa}:{vO+4*aa+3}]"
                a(f"v_mfma_f32_16x16x32_bf16 v[{vO+4*aa}:{vO+4*aa+3}], v[{f}:{f+3}], v[{vHB+4*ks}:{vHB+4*ks+3}], {c}")
        a("v_cvt_f32_u32 v22, v22")
        a(f"v_cmp_gt_u32 vcc, {NB - 64 * rt}, v6")
        a("s_nop 5")
        for r in range(8):
            a(f"v_mul_f32 v{vO+r}, s34, v{vO+r}")
        for r in range(8):
            a(f"v_fmac_f32 v{vO+r}, v22, v{12+r}")
        for r in range(4):
            a(f"v_cvt_pk_bf16_f32 v{vHB+r}, v{vO+2*r}, v{vO+2*r+1}")
        a("s_mov_b64 exec, vcc")
        a(f"buffer_store_dwordx4 v[{vHB}:{vHB+3}], v21, s[{sOUT}:{sOUT+3}], s24 offen {OPT['ost']}")
        a("s_mov_b64 exec, -1")
        if rt == 0:
            a("s_nop 1")
    a("K2_FIN:")
    if OPT["stamps"]:
        a("s_waitcnt vmcnt(0)")
    stamp(a, 11)
    stamp_flush(a, 0)
    a("""
K2_END:
    s_endpgm
    """)
    return a.text(), 128, 102


HEADER = """; Kernarg layout for this problem (88 bytes, ptrs only, base s[0:1]):
"""


def kd(name, vgpr, sgpr):
    return f""".amdhsa_kernel {name}
  .amdhsa_next_free_vgpr {vgpr}
  .amdhsa_next_free_sgpr {sgpr}
  .amdhsa_accum_offset {(vgpr + 3) // 4 * 4}
  .amdhsa_group_segment_fixed_size 0
  .amdhsa_kernarg_size 88
  .amdhsa_user_sgpr_count 2
  .amdhsa_user_sgpr_kernarg_segment_ptr 1
  .amdhsa_system_sgpr_workgroup_id_x 1
.end_amdhsa_kernel
"""


def build():
    k2, v2, s2 = gen_k2()
    n2 = "gather_scatter__edge_featured_mpnn_mpnn__graph_kernel"
    out = HEADER
    ks = [(n2, k2, v2, s2)]
    if OPT["diag"] or OPT["list"]:
        out += f"; @launch kernel={n2} grid=(256,1,1) block=(1024,1,1) lds={K_LDS}\n"
    else:
        out += f"; @launch grid=(256,1,1) block=(1024,1,1) lds={K_LDS}\n"
    if OPT["diag"]:
        out += "; @launch kernel=diag_kernel grid=(1,1,1) block=(64,1,1) lds=0\n"
        ks.append(("diag_kernel",) + gen_diag())
    out += '.amdgcn_target "amdgcn-amd-amdhsa--gfx950"\n.text\n'
    for n, k, _, _ in ks:
        out += f".globl {n}\n.p2align 8\n.type {n},@function\n{n}:\n" + k
    out += '.section .rodata,"a"\n'
    for n, _, v, sg in ks:
        out += ".p2align 6\n" + kd(n, v, sg)
    return out


if __name__ == "__main__":
    path = sys.argv[1] if len(sys.argv) > 1 else "gather_scatter__edge_featured_mpnn_mpnn__graph.s"
    for kv in sys.argv[2:]:
        k, v = kv.split("=")
        OPT[k] = int(v) if v.lstrip('-').isdigit() else v.replace('+', ' ')
    open(path, "w").write(build())
    print("wrote", path, "LDS", K_LDS)
```

```python
import sys

N = 25000; E = 400000
NB = 98
CH = 1564
CHS = 12544
PS = N * 256
P_OFF = 0
CELL_OFF = 0x0C40000
REC_OFF = 0x1C40000
TAB_OFF = 0x1F50000
W2F_OFF = 0x1F90000
PMAX_OFF = 0x1FA0000
SCR_OFF = 0x2000000
SCR_STRIDE = 104448
WS_USED = SCR_OFF + 256 * SCR_STRIDE
assert 2 * PS <= CELL_OFF and REC_OFF + 256 * CHS <= TAB_OFF
NLOG2E = 0xbfb8aa3b
NLN2 = 0xbf317218
BOUND = 0x43e00000

STAMP_OFF = 0x3c00000
OPT = dict(U=4, stamps=False, pst="", rst="", prio=1, warm=1, reclate=0, tlb=0, diag=0, ost="sc1", pld="sc1", nw=16, sleep=2, list=0)


class A:
    def __init__(self):
        self.l = []

    def __call__(self, s):
        for x in s.strip("\n").split("\n"):
            x = x.rstrip()
            if not x.strip():
                continue
            if x.strip().endswith(":") and not x.strip().startswith(";"):
                self.l.append(x.strip())
            else:
                self.l.append("    " + x.strip())

    def text(self):
        return "\n".join(self.l) + "\n"


def stamp(a, i):
    if OPT["stamps"]:
        a(f"""
        s_memrealtime s[98:99]
        s_waitcnt lgkmcnt(0)
        s_mov_b32 s{84+i}, s98
        """)


DIAG_OFF = 0x3b00000


def diag(a, slot, lab, cyc=False):
    if OPT["diag"]:
        a(f"""
        s_or_b32 s96, s2, s3
        s_cmp_lg_u32 s96, 0
        s_cbranch_scc1 {lab}
        {"s_memtime" if cyc else "s_memrealtime"} s[98:99]
        s_waitcnt lgkmcnt(0)
        s_mov_b32 s{84 + slot}, s98
{lab}:
        """)


def diag_flush(a):
    if OPT["diag"]:
        a(f"""
        s_or_b32 s96, s2, s3
        s_cmp_lg_u32 s96, 0
        s_cbranch_scc1 K2_END
        s_add_u32 s96, s22, {DIAG_OFF}
        s_addc_u32 s97, s23, 0
        v_mov_b32 v0, 0
        """)
        for i in range(8):
            a(f"v_mov_b32 v1, s{84 + i}")
            a(f"global_store_dword v0, v1, s[96:97] offset:{4 * i}")


def gen_diag():
    a = A()
    m = OPT["diag"]
    a(f"""
    s_cmp_lg_u32 s2, 0
    s_cbranch_scc1 DG_END
    s_load_dwordx2 s[22:23], s[0:1], 80
    s_memrealtime s[10:11]
    s_waitcnt lgkmcnt(0)
    s_add_u32 s22, s22, {DIAG_OFF}
    s_addc_u32 s23, s23, 0
    s_load_dwordx8 s[24:31], s[22:23], 0
    s_waitcnt lgkmcnt(0)
    """)
    if m == 1: a("s_mov_b32 s12, 0")
    if m == 2: a("s_sub_u32 s12, s10, s24")
    if m == 3: a("s_sub_u32 s12, s25, s24")
    if m == 4: a("s_sub_u32 s12, s26, s24")
    if m == 7: a("s_sub_u32 s12, s30, s24")
    if m == 8: a("s_sub_u32 s12, s31, s24")
    if m == 5: a("s_sub_u32 s12, s27, s26")
    if m == 6: a("s_sub_u32 s12, s29, s28\ns_mul_i32 s12, s12, 6554\ns_lshr_b32 s12, s12, 16")
    a("""
    s_min_u32 s12, s12, 20000
DG_SPIN:
    s_memrealtime s[14:15]
    s_waitcnt lgkmcnt(0)
    s_sub_u32 s14, s14, s10
    s_cmp_lt_u32 s14, s12
    s_cbranch_scc1 DG_SPIN
DG_END:
    s_endpgm
    """)
    return a.text(), 8, 40


def cstamp(a, i):
    if OPT["stamps"]:
        a(f"""
        s_memtime s[98:99]
        s_waitcnt lgkmcnt(0)
        s_mov_b32 s{96+i}, s98
        """)


def stamp_init(a):
    if OPT["stamps"]:
        for i in range(14):
            a(f"s_mov_b32 s{84+i}, 0")


def stamp_flush(a, kern):
    if OPT["stamps"]:
        a(f"""
        s_mov_b64 exec, -1
        s_mov_b32 s4, s22
        s_mov_b32 s5, s23
        s_mov_b32 s6, 0x8000000
        s_mov_b32 s7, 0x00020000
        s_lshl_b32 s8, s2, 4
        s_add_u32 s8, s8, s3
        s_lshl_b32 s8, s8, 6
        s_add_u32 s8, s8, {STAMP_OFF + kern * 256 * 16 * 64}
        v_mov_b32 v0, 0
        s_mov_b64 exec, 1
        """)
        for i in range(14):
            a(f"v_mov_b32 v1, s{84+i}")
            a(f"buffer_store_dword v1, v0, s[4:7], s8 offen offset:{4*i}")


def srd(a, d, lo, hi, size, stride=0):
    a(f"s_mov_b32 s{d}, s{lo}")
    if stride:
        a(f"s_and_b32 s{d+1}, s{hi}, 0xffff")
        a(f"s_or_b32 s{d+1}, s{d+1}, {stride << 16:#x}")
    else:
        a(f"s_mov_b32 s{d+1}, s{hi}")
    a(f"s_mov_b32 s{d+2}, {size}")
    a(f"s_mov_b32 s{d+3}, 0x00020000")


def wave_scan(a, regs):
    steps = ["row_shr:1 row_mask:0xf", "row_shr:2 row_mask:0xf", "row_shr:4 row_mask:0xf", "row_shr:8 row_mask:0xf",
             "row_bcast:15 row_mask:0xa", "row_bcast:31 row_mask:0xc"]
    for st in steps:
        a("s_nop 1" if len(regs) == 1 else "s_nop 0")
        for r in regs:
            a(f"v_add_u32_dpp v{r}, v{r}, v{r} {st} bank_mask:0xf")


def row_max(a, r):
    for sh in (1, 2, 4, 8):
        a("s_nop 1")
        a(f"v_max_f32_dpp v{r}, v{r}, v{r} row_shr:{sh} row_mask:0xf bank_mask:0xf")


def common_ids(a):
    a("""
    v_lshrrev_b32 v1, 6, v0
    v_and_b32 v2, 15, v0               ; l16
    v_readfirstlane_b32 s3, v1         ; wave
    v_and_b32 v1, 63, v0               ; lane
    v_lshrrev_b32 v3, 4, v1            ; g
    """)


def dma_w_setup(a, vdst, vt, st):
    a(f"""
    s_and_b32 s{st}, s3, 1
    s_lshl_b32 s{st}, s{st}, 7
    v_lshrrev_b32 v{vt}, 5, v1           ; L>>5
    v_mul_u32_u24 v{vt}, 544, v{vt}      ; (L>>5)*512 + (L>>5)<<5
    v_and_b32 v{vdst}, 31, v1
    v_lshlrev_b32 v{vdst}, 4, v{vdst}    ; j*16
    v_xor_b32 v{vdst}, v{vt}, v{vdst}
    v_xor_b32 v{vdst}, s{st}, v{vdst}
    v_xor_b32 v{vdst+1}, 64, v{vdst}
    s_lshl_b32 s{st}, s3, 12
    """)


def dma_w_issue(a, vsrc, srdw, st, st2, goff, wb):
    a(f"s_add_u32 m0, s{st}, {wb}")
    a(f"s_add_u32 s{st2}, s{st}, {goff}")
    for i in range(4):
        a(f"buffer_load_dwordx4 v{vsrc + (i & 1)}, s[{srdw}:{srdw+3}], s{st2} offen offset:{1024 * i} lds")


def dma_x(a, srdx, srow0, vo, vt, st, xb):
    a(f"""
    s_and_b32 s{st}, s3, 1
    s_lshl_b32 s{st}, s{st}, 3
    v_add_u32 v{vt}, s{st}, v3           ; 8*(w&1)+g
    v_xor_b32 v{vt}, v2, v{vt}
    s_lshl_b32 s{st}, s3, 3
    s_add_u32 s{st}, s{st}, s{srow0}
    v_add_u32 v{vo}, s{st}, v3           ; row
    v_lshlrev_b32 v{vo}, 8, v{vo}
    v_lshl_add_u32 v{vo}, v{vt}, 4, v{vo}
    s_lshl_b32 s{st}, s3, 11
    s_add_u32 m0, s{st}, {xb}
    v_xor_b32 v{vt}, 64, v{vo}
    buffer_load_dwordx4 v{vo}, s[{srdx}:{srdx+3}], 0 offen lds
    buffer_load_dwordx4 v{vt}, s[{srdx}:{srdx+3}], 0 offen offset:1024 lds
    """)


def gemm_addr(a, vb, vxa, vt, st, wb, xb):
    a(f"""
    v_lshrrev_b32 v{vt}, 2, v2           ; r
    v_mul_u32_u24 v{vb}, 544, v{vt}      ; r*512 + r*32
    v_lshl_add_u32 v{vb}, v3, 12, v{vb}  ; + g*8*512
    v_and_b32 v{vt}, 1, v3
    v_lshl_add_u32 v{vb}, v{vt}, 7, v{vb} ; + (g&1)<<2<<5
    v_and_b32 v{vt}, 3, v2
    v_lshl_add_u32 v{vb}, v{vt}, 3, v{vb} ; + c*8
    s_and_b32 s{st}, s3, 7
    s_lshl_b32 s{st}, s{st}, 6
    v_xor_b32 v{vb}, s{st}, v{vb}
    v_add_u32 v{vb}, {wb}, v{vb}
    v_xor_b32 v{vb+1}, 32, v{vb}
    v_xor_b32 v{vt}, v2, v3
    v_lshlrev_b32 v{vt}, 4, v{vt}
    v_lshl_add_u32 v{vxa}, v2, 8, v{vt}
    s_lshr_b32 s{st}, s3, 3
    s_lshl_b32 s{st}, s{st}, 14
    s_add_u32 s{st}, s{st}, {xb}
    v_add_u32 v{vxa}, s{st}, v{vxa}
    v_xor_b32 v{vxa+1}, 64, v{vxa}
    v_xor_b32 v{vxa+2}, 0x80, v{vxa}
    v_xor_b32 v{vxa+3}, 0xc0, v{vxa}
    """)


def gemm_parts(a, vW, vX, vAcc, vb, vxa, cinit, acc2=False):
    def wreads():
        for ks in range(4):
            for aa in range(2):
                for h in range(2):
                    r = vW + 16 * aa + 4 * ks + 2 * h
                    a(f"ds_read_b64_tr_b16 v[{r}:{r+1}], v{vb+aa} offset:{ks * 16384 + h * 2048}")

    def xreads(i):
        for ks in range(4):
            r = vX + 16 * (i & 1) + 4 * ks
            a(f"ds_read_b128 v[{r}:{r+3}], v{vxa+ks} offset:{4096 * i}")

    def mf(i):
        for ks in range(4):
            for aa in range(2):
                acc = vAcc + 8 * ((i & 1) if acc2 else i) + 4 * aa
                c = cinit(aa) if ks == 0 else f"v[{acc}:{acc+3}]"
                w = vW + 16 * aa + 4 * ks
                x = vX + 16 * (i & 1) + 4 * ks
                a(f"v_mfma_f32_16x16x32_bf16 v[{acc}:{acc+3}], v[{w}:{w+3}], v[{x}:{x+3}], {c}")
    return wreads, xreads, mf


ROWS = 1040
CNT = 0
DH = CNT + 512
DEGT = DH + 256
HIST = DEGT + 512
POS = HIST + 1024
INFO = POS + 512
MISC = INFO + 1600
WT = MISC + 64
START = WT + 1024
LIST = (START + 1024 + 255) // 256 * 256
LISTCAP = 6144
LCAP = 60
LROW = LCAP * 8
QH = (LIST + LISTCAP * 8 + 128 + 255) // 256 * 256
K_LDS = QH + 100 * ROWS
XB = LIST
STAGE = LIST + 32768
CST = QH + 65536
assert K_LDS <= 163840 and STAGE + CHS <= QH and CST + 32768 <= K_LDS
assert MISC % 16 == 0 and INFO % 16 == 0 and WT % 16 == 0
QCAP = 585
SPIN = 40000


def gen_k2():
    U = OPT["U"]
    a = A()
    vW, vX, vAcc = 20, 52, 84
    vRec, vRank, vPos = 100, 112, 118
    vb, vxa, vB1 = 4, 6, 10
    sX, sW1, sB1, sWS, sP, sOUT, sB2, sSCR = 36, 40, 44, 48, 52, 56, 60, 64
    sDST, sSRC, sE, sW2 = 52, 56, 60, 64
    sROW0 = 26
    sBATCH = 68; sNBATCH = 69; sRECB = 70
    sM = 72
    sDBG = 100; sPM = 34
    a(f"""
    s_cmp_ge_u32 s2, 256
    s_cbranch_scc1 K2_END
    s_load_dwordx16 s[4:19], s[0:1], 0
    s_load_dwordx2 s[20:21], s[0:1], 64
    s_load_dwordx2 s[22:23], s[0:1], 80
    s_load_dwordx2 s[{sDBG}:{sDBG+1}], s[0:1], 72
    """)
    stamp_init(a)
    stamp(a, 0)
    common_ids(a)
    a(f"""
    s_mul_i32 s29, s2, {CH}
    s_sub_u32 s30, {E}, s29
    s_min_u32 s30, s30, {CH}
    s_lshr_b32 s30, s30, 1
    v_lshl_add_u32 v6, v0, 1, s29        ; first edge index
    v_lshlrev_b32 v7, 1, v6
    v_lshlrev_b32 v6, 2, v6
    v_cmp_gt_u32 s[32:33], s30, v0
    v_mov_b32 v11, 0
    v_lshlrev_b32 v12, 2, v0
    v_cmp_gt_u32 vcc, {(POS - CNT) // 4}, v0
    s_mov_b64 exec, vcc
    ds_write_b32 v12, v11 offset:{CNT}
    s_mov_b64 exec, 0xff
    v_cmp_eq_u32 vcc, 4, v1
    v_lshlrev_b32 v12, 2, v1
    s_mul_i32 s{sROW0}, s2, {NB}
    v_cndmask_b32 v11, 0, {OPT['nw']}, vcc
    ds_write_b32 v12, v11 offset:{MISC}
    s_mov_b64 exec, -1
    v_lshlrev_b32 v13, 3, v1
    s_mov_b32 s68, {256 * 512}
    s_waitcnt lgkmcnt(0)
    """)
    diag(a, 0, "K1_DG0")
    srd(a, sDST, 10, 11, E * 4)
    srd(a, sE, 6, 7, E * 2)
    srd(a, sSRC, 8, 9, E * 4)
    srd(a, sW1, 12, 13, 257 * 512)
    a(f"""
    s_mov_b64 exec, s[32:33]
    buffer_load_dwordx2 v[118:119], v6, s[{sDST}:{sDST+3}], 0 offen
    buffer_load_dword v10, v7, s[{sE}:{sE+3}], 0 offen
    buffer_load_dwordx2 v[8:9], v6, s[{sSRC}:{sSRC+3}], 0 offen
    s_mov_b64 exec, -1
    buffer_load_dwordx2 v[14:15], v13, s[{sW1}:{sW1+3}], s68 offen
    """)
    a("""
    s_cmp_lg_u32 s3, 14
    s_cbranch_scc1 K1_NOW2L
    """)
    srd(a, sW2, 16, 17, 65536)
    a(f"""
    s_lshr_b32 s68, s2, 2                ; F = G>>6
    s_and_b32 s69, s2, 3                 ; g' = (G&63)>>4
    s_and_b32 s24, s68, 7
    s_lshl_b32 s24, s24, 5
    s_lshl_b32 s69, s69, 2
    s_add_u32 s24, s24, s69
    s_lshl_b32 s24, s24, 8               ; *256 bytes
    s_lshr_b32 s69, s68, 4               ; cp
    s_lshl_b32 s69, s69, 5
    s_bfe_u32 s68, s68, 0x10003          ; a
    s_lshl_b32 s68, s68, 2
    s_add_u32 s68, s68, s69              ; 32cp + 4a
    v_lshrrev_b32 v28, 2, v2
    v_lshlrev_b32 v28, 3, v28            ; 8*(m>>2)
    v_and_b32 v29, 3, v2
    v_add3_u32 v28, v28, v29, s68        ; col
    v_lshlrev_b32 v28, 1, v28
    s_mov_b64 exec, 0xffff
    """)
    for t in range(8):
        if t == 4:
            a("s_add_u32 s24, s24, 4096")
        r = vW + (t >> 1) + 4 * (t & 1)
        a(f"buffer_load_ushort v{r}, v28, s[{sW2}:{sW2+3}], s24 offen offset:{256 * (t & 3)}")
    a(f"""
    s_mov_b64 exec, -1
K1_NOW2L:
    s_cmp_lg_u32 s3, 13
    s_cbranch_scc1 K1_NOWARM
    s_lshr_b32 s24, s2, 3
    s_lshl_b32 s24, s24, 11
    s_add_u32 s24, s24, {128 * 512}
    v_lshlrev_b32 v28, 5, v1
    buffer_load_dword v29, v28, s[{sW1}:{sW1+3}], s24 offen
K1_NOWARM:
    """)
    dma_w_setup(a, 16, 5, 27)
    srd(a, sX, 4, 5, N * 256)
    srd(a, sWS, 22, 23, SCR_OFF)
    srd(a, sB1, 14, 15, 512)
    a("s_barrier")
    a("s_cmp_ge_u32 s3, 14")
    a("s_cbranch_scc1 K1_NOX")
    dma_x(a, sX, sROW0, 5, 6, 24, XB)
    a("K1_NOX:")
    dma_w_issue(a, 16, sW1, 27, 24, 0, QH)
    a(f"""
    s_and_b32 s24, s3, 7
    s_lshl_b32 s24, s24, 6
    v_lshlrev_b32 v5, 3, v3
    buffer_load_dwordx2 v[112:113], v5, s[{sB1}:{sB1+3}], s24 offen
    buffer_load_dwordx2 v[114:115], v5, s[{sB1}:{sB1+3}], s24 offen offset:32
    s_mov_b32 s71, 42800
    s_mov_b32 s34, {NLOG2E:#x}
    s_lshl_b32 s31, s2, 8
    s_add_u32 s31, s31, {CELL_OFF}
    s_cmp_ge_u32 s3, 13
    s_cbranch_scc1 K1_AUX
    s_waitcnt vmcnt(8)
    """)
    a(f"""
    ; 4*log2e*max|w1[256,:]|
    v_and_b32 v14, 0x7fff7fff, v14
    v_and_b32 v15, 0x7fff7fff, v15
    v_pk_max_u16 v14, v14, v15
    s_mov_b64 exec, s[32:33]
    v_mul_u32_u24 v116, s71, v118
    v_mul_u32_u24 v117, s71, v119
    v_lshrrev_b32 v116, 22, v116         ; bucket
    v_lshrrev_b32 v117, 22, v117
    v_mul_u32_u24 v125, {NB}, v116
    v_mul_u32_u24 v126, {NB}, v117
    v_lshlrev_b32 v116, 2, v116
    v_lshlrev_b32 v117, 2, v117
    v_sub_u32 v125, v118, v125           ; dloc
    v_sub_u32 v126, v119, v126
    v_mov_b32 v127, 1
    ds_add_rtn_u32 v118, v116, v127 offset:{HIST}
    ds_add_rtn_u32 v119, v117, v127 offset:{HIST}
    s_mov_b64 exec, -1
    v_lshlrev_b32 v15, 16, v14
    v_and_b32 v14, 0xffff0000, v14
    v_max_u32 v14, v14, v15
    """)
    for st in ("row_shr:1 row_mask:0xf", "row_shr:2 row_mask:0xf", "row_shr:4 row_mask:0xf", "row_shr:8 row_mask:0xf",
               "row_bcast:15 row_mask:0xa", "row_bcast:31 row_mask:0xc"):
        a("s_nop 1")
        a(f"v_max_u32_dpp v14, v14, v14 {st} bank_mask:0xf")
    a(f"""
    v_mul_f32 v14, 0x40b8aa3b, v14       ; 4*log2(e)
    v_lshlrev_b32 v121, 16, v10
    v_readlane_b32 s67, v14, 63
    v_and_b32 v123, 0xffff0000, v10
    s_mov_b64 exec, s[32:33]
    v_fma_f32 v120, |v121|, s67, 1.0
    v_fma_f32 v122, |v123|, s67, 1.0
    v_lshl_or_b32 v121, v125, 2, v121    ; e<<16 | dloc*4
    v_lshl_or_b32 v123, v126, 2, v123
    v_cvt_u32_f32 v120, v120
    v_cvt_u32_f32 v122, v122
    v_min_u32 v120, {QCAP}, v120
    v_min_u32 v122, {QCAP}, v122
    v_lshl_or_b32 v120, v120, 16, v8     ; src | q<<16
    v_lshl_or_b32 v122, v122, 16, v9
    v_lshlrev_b32 v125, 5, v116          ; bucket*128
    v_lshlrev_b32 v126, 5, v117
    v_add_u32 v125, {CST}, v125
    v_add_u32 v126, {CST}, v126
    s_waitcnt lgkmcnt(0)
    v_lshl_add_u32 v125, v118, 3, v125
    v_lshl_add_u32 v126, v119, 3, v126
    v_cmp_gt_u32 s[72:73], 16, v118
    v_cmp_gt_u32 s[74:75], 16, v119
    v_max_u32 v124, v118, v119
    s_mov_b64 exec, s[72:73]
    ds_write_b64 v125, v[120:121]
    s_mov_b64 exec, s[74:75]
    ds_write_b64 v126, v[122:123]
    s_and_b64 s[76:77], s[72:73], s[74:75]
    s_andn2_b64 exec, s[32:33], s[76:77]
    s_cbranch_execz K1_BAR1
    v_lshlrev_b32 v125, 14, v116
    v_lshlrev_b32 v126, 14, v117
    v_lshl_add_u32 v125, v118, 3, v125
    v_lshl_add_u32 v126, v119, 3, v126
    v_cmp_gt_u32 s[76:77], 24, v118
    v_cmp_gt_u32 s[78:79], 24, v119
    v_cmp_le_u32 vcc, 24, v124
    v_mov_b32 v127, 0
    s_andn2_b64 exec, s[76:77], s[72:73]
    buffer_store_dwordx2 v[120:121], v125, s[{sWS}:{sWS+3}], s31 offen sc1
    s_andn2_b64 exec, s[78:79], s[74:75]
    buffer_store_dwordx2 v[122:123], v126, s[{sWS}:{sWS+3}], s31 offen sc1
    s_mov_b64 exec, vcc
    ds_max_u32 v127, v124 offset:{MISC + 24}
    s_branch K1_BAR1
K1_AUX:
    s_cmp_lg_u32 s3, 15
    s_cbranch_scc1 K1_BAR1
    s_waitcnt vmcnt(6)
    v_lshlrev_b32 v20, 16, v14
    v_and_b32 v21, 0xffff0000, v14
    v_lshlrev_b32 v22, 16, v15
    v_and_b32 v23, 0xffff0000, v15
    v_mul_f32 v20, s34, v20
    v_mul_f32 v21, s34, v21
    v_mul_f32 v22, s34, v22
    v_mul_f32 v23, s34, v23
    v_and_b32 v24, 3, v1
    v_lshlrev_b32 v24, 4, v24            ; ((h>>2)&3)*16
    v_bfe_u32 v25, v1, 3, 2
    v_lshl_add_u32 v24, v25, 6, v24      ; + ((h>>5)&3)*64
    v_bfe_u32 v25, v1, 2, 1
    v_lshl_add_u32 v24, v25, 8, v24      ; + half*256
    v_lshrrev_b32 v25, 5, v1
    v_lshl_add_u32 v24, v25, 9, v24      ; + s*512
    ds_write_b128 v24, v[20:23] offset:{WT}
K1_BAR1:
    s_mov_b64 exec, -1
    v_lshrrev_b32 v6, 2, v0
    v_and_b32 v7, 3, v0
    v_lshlrev_b32 v127, 1, v7            ; 2j
    v_lshlrev_b32 v7, 4, v7
    v_lshl_add_u32 v5, v6, 7, v7
    v_add_u32 v5, {CST}, v5
    v_lshl_add_u32 v126, v6, 8, v7
    v_lshl_add_u32 v7, v6, 16, v7
    v_and_b32 v6, 0x3fc, v0
    v_mov_b32 v4, 0
    s_waitcnt lgkmcnt(0)
    s_barrier
    """)
    stamp(a, 1)
    a(f"""
    ds_read_b32 v108, v6 offset:{HIST}
    ds_read_b128 v[100:103], v5
    ds_read_b128 v[104:107], v5 offset:64
    ds_read_b32 v109, v4 offset:{MISC + 24}
    s_mov_b32 s24, 0x11111111
    s_mov_b32 s25, 0x11111111
    s_movk_i32 s28, 0x3e00
    s_waitcnt lgkmcnt(3)
    v_sub_u32 v110, v108, v127
    v_min_u32 v108, 31, v108
    v_lshlrev_b32 v108, 9, v108
    v_cmp_lt_i32 vcc, 0, v110
    v_cmp_lt_i32 s[72:73], 8, v110
    s_waitcnt lgkmcnt(0)
    v_readfirstlane_b32 s29, v109
    s_mov_b64 exec, s[24:25]
    v_bfi_b32 v101, s28, v108, v101
    s_or_b64 exec, vcc, s[24:25]
    buffer_store_dwordx4 v[100:103], v7, s[{sWS}:{sWS+3}], s31 offen sc1
    s_mov_b64 exec, s[72:73]
    buffer_store_dwordx4 v[104:107], v7, s[{sWS}:{sWS+3}], s31 offen offset:64 sc1
    s_mov_b64 exec, -1
    s_cmp_eq_u32 s29, 0
    s_cbranch_scc1 K1_NOPACK
    s_cmp_lg_u32 s3, 15
    s_cbranch_scc1 K1_NOSCAN
    v_lshlrev_b32 v6, 4, v1
    ds_read_b128 v[52:55], v6 offset:{HIST}
    s_lshl_b32 s24, s2, 10
    s_add_u32 s24, s24, {TAB_OFF}
    s_waitcnt lgkmcnt(0)
    v_add_u32 v57, v52, v53              ; p2
    v_add_u32 v58, v57, v54              ; p3
    v_add_u32 v59, v58, v55              ; tot
    v_mov_b32 v60, v59
    """)
    wave_scan(a, [60])
    a(f"""
    v_sub_u32 v60, v60, v59              ; base
    v_add_u32 v61, v60, v52
    v_add_u32 v62, v60, v57
    v_add_u32 v63, v60, v58
    v_lshlrev_b32 v64, 3, v60
    v_lshlrev_b32 v65, 3, v61
    v_lshlrev_b32 v66, 3, v62
    v_lshlrev_b32 v67, 3, v63
    ds_write_b128 v6, v[64:67] offset:{START}
    v_lshl_or_b32 v60, v52, 16, v60
    v_lshl_or_b32 v61, v53, 16, v61
    v_lshl_or_b32 v62, v54, 16, v62
    v_lshl_or_b32 v63, v55, 16, v63
    buffer_store_dwordx4 v[60:63], v6, s[{sWS}:{sWS+3}], s24 offen sc1
    s_waitcnt lgkmcnt(0)
K1_NOSCAN:
    s_barrier
    s_mov_b64 exec, s[32:33]
    ds_read_b32 v116, v116 offset:{START}
    ds_read_b32 v117, v117 offset:{START}
    s_waitcnt lgkmcnt(0)
    v_lshl_add_u32 v116, v118, 3, v116
    v_lshl_add_u32 v117, v119, 3, v117
    ds_write_b64 v116, v[120:121] offset:{STAGE}
    ds_write_b64 v117, v[122:123] offset:{STAGE}
    s_mov_b64 exec, -1
    v_lshlrev_b32 v6, 4, v0
    v_cmp_gt_u32 vcc, {CHS // 16}, v0
    s_mul_i32 s24, s2, {CHS}
    s_add_u32 s24, s24, {REC_OFF}
    s_waitcnt lgkmcnt(0)
    s_barrier
    s_mov_b64 exec, vcc
    ds_read_b128 v[52:55], v6 offset:{STAGE}
    s_waitcnt lgkmcnt(0)
    buffer_store_dwordx4 v[52:55], v6, s[{sWS}:{sWS+3}], s24 offen sc1
    s_mov_b64 exec, -1
    s_waitcnt vmcnt(0)
K1_NOPACK:
K1_ADDR:
    """)
    gemm_addr(a, vb, vxa, 11, 24, QH, XB)
    a(f"""
    s_mov_b32 s65, 0x07060100
    s_mov_b32 s66, 0x07060302
    s_lshr_b32 s29, s3, 3
    s_lshl_b32 s30, s29, 6               ; 64*rh
    s_sub_u32 s28, {N}, s{sROW0}
    s_min_u32 s28, s28, {NB}
    s_sub_u32 s28, s28, s30              ; valid rows from this wave's first row
    s_add_u32 s30, s30, s{sROW0}
    v_add_u32 v119, s30, v2
    v_lshlrev_b32 v119, 8, v119
    s_and_b32 s24, s3, 3
    s_lshl_b32 s24, s24, 6
    v_lshl_add_u32 v18, v3, 4, s24       ; (4*(cp&3)+g)*16
    v_add_u32 v119, v119, v18
    s_bfe_u32 s30, s3, 0x10002
    s_mul_i32 s25, s30, {PS}
    s_mul_i32 s29, s29, {64 * ROWS}
    s_lshl_b32 s30, s30, 9
    s_add_u32 s29, s29, s30
    s_add_u32 s29, s29, {QH}
    v_mul_u32_u24 v19, {ROWS}, v2
    v_add3_u32 v18, v18, v19, s29
    v_mov_b32 v118, 0                    ; max|P'|
    v_mov_b32 v19, 0                     ; max|Q'|
    s_waitcnt vmcnt(2)
    s_cmp_lg_u32 s3, 14
    s_cbranch_scc1 K1_NOW2S
    """)
    a(f"""
    s_lshl_b32 s68, s2, 8
    s_add_u32 s68, s68, {W2F_OFF}
    v_lshlrev_b32 v13, 4, v2
    s_mov_b64 exec, 0xffff
    v_lshl_or_b32 v{vAcc}, v{vW+4}, 16, v{vW}
    v_lshl_or_b32 v{vAcc+1}, v{vW+5}, 16, v{vW+1}
    v_lshl_or_b32 v{vAcc+2}, v{vW+6}, 16, v{vW+2}
    v_lshl_or_b32 v{vAcc+3}, v{vW+7}, 16, v{vW+3}
    buffer_store_dwordx4 v[{vAcc}:{vAcc+3}], v13, s[{sWS}:{sWS+3}], s68 offen sc1
    s_mov_b64 exec, -1
K1_NOW2S:
    """)
    a("v_mov_b32 v120, v16")
    a("v_mov_b32 v121, v17")
    a("s_barrier")
    diag(a, 7, "K1_DG7")
    stamp(a, 2)
    wreads, xreads, mfp = gemm_parts(a, vW, vX, vAcc, vb, vxa, lambda aa: "0", acc2=True)
    _, _, mf = gemm_parts(a, vW, vX, vAcc, vb, vxa, lambda aa: f"v[{vB1+4*aa}:{vB1+4*aa+3}]", acc2=True)

    def epp(i):
        lo = vAcc + 8 * (i & 1); hi = lo + 4
        for r in range(8):
            a(f"v_fma_f32 v{lo+r}, v{lo+r}, s34, 0")
        a(f"v_cvt_pk_bf16_f32 v116, v{lo}, v{lo+1}")
        a(f"v_cvt_pk_bf16_f32 v117, v{lo+2}, v{lo+3}")
        for r in range(0, 8, 2):
            a(f"v_max3_f32 v118, |v{lo+r}|, |v{lo+r+1}|, v118")
        for r in range(4):
            a(f"v_add_u32 v{hi+r}, 0x8000, v{hi+r}")
        for r in range(4):
            a(f"v_sub_u32_sdwa v{hi+r}, v{hi+r}, v{116+(r>>1)} clamp dst_sel:DWORD dst_unused:UNUSED_PAD src0_sel:DWORD src1_sel:WORD_{r&1}")
        for r in range(4):
            a(f"v_perm_b32 v{lo+r}, v{hi+r}, v{116+(r>>1)}, s{65+(r&1)}")
        a(f"v_cmp_gt_i32 vcc, s28, v2")
        a(f"s_mov_b64 exec, vcc")
        a(f"buffer_store_dwordx4 v[{lo}:{lo+3}], v119, s[{sWS}:{sWS+3}], s25 offen sc1")
        a(f"s_mov_b64 exec, -1")
        a("s_sub_u32 s28, s28, 16")
        a("s_add_u32 s25, s25, 4096")

    def epi(i, last=False):
        o = vAcc + 8 * (i & 1)
        for r in range(8):
            a(f"v_mul_f32 v{o+r}, s34, v{o+r}")
        for r in range(0, 8, 2):
            a(f"v_max3_f32 v19, |v{o+r}|, |v{o+r+1}|, v19")
        if last:
            a("s_mov_b32 exec_lo, 0x00030003")
            a("s_mov_b32 exec_hi, 0x00030003")
        a(f"ds_write_b128 v18, v[{o}:{o+3}] offset:{i * 16 * ROWS}")
        a(f"ds_write_b128 v18, v[{o+4}:{o+7}] offset:{i * 16 * ROWS + 256}")
        if last:
            a("s_mov_b64 exec, -1")

    def signal(val, L):
        a(f"""
    s_cmp_lg_u32 s3, 0
    s_cbranch_scc1 {L}
    s_and_b32 s24, s2, 7
    s_lshl_b32 s24, s24, 5
    v_mov_b32 v124, s24
    v_mov_b32 v125, {val}
    s_mov_b64 exec, 1
    global_atomic_add v124, v125, s[{sDBG}:{sDBG+1}] sc1
    s_mov_b64 exec, -1
{L}:
        """)

    def poll(L, wave, shift, t):
        a(f"""
    s_cmp_lg_u32 s3, {wave}
    s_cbranch_scc1 {L}_OK
    v_lshlrev_b32 v{t}, 5, v1
    s_mov_b64 exec, 0xff
    s_movk_i32 s24, {SPIN - 65536 if SPIN > 32767 else SPIN}
    s_and_b32 s24, s24, 0xffff
{L}_SPIN:
    global_load_dword v{t+1}, v{t}, s[{sDBG}:{sDBG+1}] sc1
    s_sub_u32 s24, s24, 1
    s_waitcnt vmcnt(0)
    v_bfe_u32 v{t+1}, v{t+1}, {shift}, 16
    v_cmp_gt_u32 vcc, 32, v{t+1}
    s_cbranch_vccz {L}_DONE
    s_sleep {OPT["sleep"]}
    s_cmp_lg_u32 s24, 0
    s_cbranch_scc1 {L}_SPIN
    v_mov_b32 v{t}, 0
    v_mov_b32 v{t+1}, 1
    ds_write_b32 v{t}, v{t+1} offset:{MISC + 20}
    s_waitcnt lgkmcnt(0)
{L}_DONE:
    s_mov_b64 exec, -1
{L}_OK:
        """)

    wreads(); xreads(0); xreads(1)
    for p in range(4):
        a(f"v_lshlrev_b32 v{vB1+2*p}, 16, v{112+p}")
        a(f"v_and_b32 v{vB1+2*p+1}, 0xffff0000, v{112+p}")
    a("s_waitcnt lgkmcnt(8)")
    a("s_barrier")
    dma_w_issue(a, 120, sW1, 27, 24, 128 * 512, QH)
    a("s_waitcnt lgkmcnt(4)")
    mfp(0)
    xreads(2)
    a("s_waitcnt vmcnt(4)")
    a("s_barrier")
    signal(1, "K1_SIGA")
    diag(a, 1, "K1_DG1")
    stamp(a, 3)
    a("s_waitcnt lgkmcnt(4)")
    mfp(1)
    xreads(3)
    epp(0)
    a("s_waitcnt lgkmcnt(4)")
    mfp(2)
    epp(1)
    a("""
    s_cmp_ge_u32 s3, 8
    s_cbranch_scc1 K1_RH1
    s_waitcnt lgkmcnt(0)
    """)
    mfp(3)
    epp(2)
    epp(3)
    a("""
    s_waitcnt vmcnt(5)
    s_cmp_eq_u32 s3, 0
    s_cbranch_scc1 K1_GD
    s_waitcnt vmcnt(4)
    s_branch K1_GD
K1_RH1:
    """)
    epp(2)
    a("s_waitcnt vmcnt(3)")
    a("K1_GD:")
    row_max(a, 118)
    a(f"""
    v_mov_b32 v116, 0
    s_mov_b32 exec_lo, 0x80008000
    s_mov_b32 exec_hi, 0x80008000
    ds_max_u32 v116, v118 offset:{MISC}
    s_mov_b64 exec, -1
    s_waitcnt lgkmcnt(0)
    """)
    stamp(a, 4)
    a(f"""
    s_barrier
    s_cmp_lg_u32 s3, 1
    s_cbranch_scc1 K1_NOPM
    ds_read_b32 v118, v116 offset:{MISC}
    s_lshl_b32 s24, s2, 2
    s_add_u32 s24, s24, {PMAX_OFF}
    s_mov_b64 exec, 1
    s_waitcnt lgkmcnt(0)
    buffer_store_dword v118, v116, s[{sWS}:{sWS+3}], s24 offen sc1
    s_mov_b64 exec, -1
K1_NOPM:
    """)
    wreads(); xreads(0); xreads(1)
    poll("K2_PA", 15, 0, 110)
    stamp(a, 5)
    a(f"""
    s_lshl_b32 s24, s2, 16
    s_add_u32 s{sRECB}, s24, {CELL_OFF}
    s_waitcnt vmcnt(0) lgkmcnt(8)
    s_barrier
    buffer_load_dwordx4 v[{vRec}:{vRec+3}], v126, s[{sWS}:{sWS+3}], s{sRECB} offen sc1
    buffer_load_dwordx4 v[{vRec+4}:{vRec+7}], v126, s[{sWS}:{sWS+3}], s{sRECB} offen offset:64 sc1
    """)
    signal(0x10000, "K1_SIGB")
    diag(a, 6, "K1_DG6")
    stamp(a, 6)
    a("s_waitcnt lgkmcnt(4)")
    mf(0)
    xreads(2)
    a("s_waitcnt lgkmcnt(4)")
    mf(1)
    a("s_cmp_ge_u32 s3, 8")
    a("s_cbranch_scc1 K2_NOX3")
    xreads(3)
    a("K2_NOX3:")
    epi(0)
    a("s_waitcnt lgkmcnt(2)")
    mf(2)
    epi(1)
    a("s_cmp_ge_u32 s3, 8")
    a(f"s_cbranch_scc1 K2_E2")
    mf(3)
    epi(2)
    epi(3)
    a(f"s_branch K2_GD")
    a(f"K2_E2:")
    epi(2, last=True)
    a(f"K2_GD:")
    row_max(a, 19)
    a(f"""
    v_mov_b32 v4, 0
    s_mov_b32 exec_lo, 0x80008000
    s_mov_b32 exec_hi, 0x80008000
    ds_max_u32 v4, v19 offset:{MISC + 4}
    s_mov_b64 exec, -1
    s_mov_b32 s{sBATCH}, 0
    s_waitcnt vmcnt(1)
    s_cmp_eq_u32 s3, 0
    s_cbranch_scc1 K2_CELLS
    s_waitcnt vmcnt(0)
K2_CELLS:
    v_bfe_u32 v124, v{vRec+1}, 9, 5
    s_nop 1
    v_mov_b32_dpp v124, v124 quad_perm:[0,0,0,0] row_mask:0xf bank_mask:0xf
    v_sub_u32 v125, v124, v127
    """)
    for k in range(6):
        a(f"v_cmp_lt_i32 s[{sM+2*k}:{sM+2*k+1}], {8*(k>>1)+(k&1)}, v125")
    a(f"""
    s_mov_b64 exec, s[{sM+8}:{sM+9}]
    s_cbranch_execz K2_NOM2
    buffer_load_dwordx4 v[{vRec+8}:{vRec+11}], v126, s[{sWS}:{sWS+3}], s{sRECB} offen offset:128 sc1
    v_cmp_lt_u32 vcc, 24, v124
    s_mov_b64 exec, vcc
    ds_max_u32 v4, v124 offset:{MISC + 12}
    s_waitcnt vmcnt(0)
K2_NOM2:
    s_mov_b64 exec, -1
    """)

    def rec_loads():
        for k in range(6):
            a(f"v_cmp_lt_i32 s[{sM+2*k}:{sM+2*k+1}], {8*(k>>1)+(k&1)}, v127")
        for m in range(3):
            a(f"s_mov_b64 exec, s[{sM+4*m}:{sM+4*m+1}]")
            a(f"buffer_load_dwordx4 v[{vRec+4*m}:{vRec+4*m+3}], v126, s[{sWS}:{sWS+3}], s{sRECB} offen offset:{64*m} sc1")
        a("s_mov_b64 exec, -1")

    def hist(L):
        a("s_mov_b32 s35, 0xffff0000")
        for k in range(6):
            m, o = k >> 1, k & 1
            r0 = vRec + 4 * m + 2 * o
            a(f"s_mov_b64 exec, s[{sM+2*k}:{sM+2*k+1}]")
            if k in (2, 4):
                a(f"s_cbranch_execz {L}_HISTDONE")
            a(f"v_and_b32 v{vPos+k}, 0x1fc, v{r0+1}")
            a(f"v_and_or_b32 v8, v{r0}, s35, 1")
            a(f"ds_add_rtn_u32 v{vRank+k}, v{vPos+k}, v8 offset:{CNT}")
            a(f"v_and_b32 v{r0}, 0xffff, v{r0}")
            a(f"v_and_b32 v{r0+1}, s35, v{r0+1}")
        a(f"{L}_HISTDONE:")
        a("s_mov_b64 exec, -1")

    def scanrank(L, wscan, wrank, degt=True):
        a(f"""
    s_sub_u32 s24, s3, {wscan}
    s_cmp_ge_u32 s24, 2
    s_cbranch_scc1 {L}_SRDONE
    v_lshlrev_b32 v8, 2, v1
    ds_read_b32 v78, v8 offset:{CNT}
    ds_read_b32 v79, v8 offset:{CNT + 256}
    v_mov_b32 v9, 1
    s_waitcnt lgkmcnt(0)
    v_and_b32 v68, 0xffff, v78
    v_and_b32 v69, 0xffff, v79
    s_cmp_eq_u32 s3, {wscan}
    s_cbranch_scc1 {L}_SCAN
    v_mov_b32 v77, 0
    ds_write_b32 v8, v77 offset:{DH}
    v_min_u32 v73, 63, v68
    v_min_u32 v74, 63, v69
    v_sub_u32 v73, 63, v73
    v_sub_u32 v74, 63, v74
    v_lshlrev_b32 v73, 2, v73
    v_lshlrev_b32 v74, 2, v74
    ds_add_rtn_u32 v75, v73, v9 offset:{DH}
    s_mov_b32 exec_hi, 0xf               ; nodes 64..99
    ds_add_rtn_u32 v76, v74, v9 offset:{DH}
    s_mov_b64 exec, -1
    ds_read_b32 v77, v8 offset:{DH}
    s_waitcnt lgkmcnt(0)
{L}_SCAN:
    v_mov_b32 v70, v68
    v_mov_b32 v71, v69
    v_mov_b32 v72, v77
        """)
        wave_scan(a, [70, 71, 72])
        a(f"""
    v_mov_b32 v9, {LIST}
    v_readlane_b32 s24, v70, 63
    v_sub_u32 v70, v70, v68
    v_sub_u32 v71, v71, v69
    v_add_u32 v71, s24, v71
    v_lshl_add_u32 v80, v70, 3, v9
    v_lshl_add_u32 v4, v71, 3, v9
    s_cmp_eq_u32 s3, {wscan}
    s_cbranch_scc0 {L}_RANK
    ds_write_b32 v8, v80 offset:{POS}
    ds_write_b32 v8, v4 offset:{POS + 256}
    {f"ds_add_u32 v8, v68 offset:{DEGT}" if degt else ""}
    {f"ds_add_u32 v8, v69 offset:{DEGT + 256}" if degt else ""}
    s_branch {L}_SRDONE
{L}_RANK:
    v_sub_u32 v72, v72, v77
    ds_bpermute_b32 v73, v73, v72
    ds_bpermute_b32 v74, v74, v72
    v_mov_b32 v81, v68
    v_mul_u32_u24 v82, {ROWS}, v1
    v_add_u32 v82, {QH}, v82
    v_lshrrev_b32 v83, 16, v78
    v_mov_b32 v5, v69
    v_add_u32 v6, {64 * ROWS}, v82
    v_lshrrev_b32 v7, 16, v79
    s_waitcnt lgkmcnt(0)
    v_add_lshl_u32 v73, v73, v75, 4
    v_add_lshl_u32 v74, v74, v76, 4
    ds_write_b128 v73, v[80:83] offset:{INFO}
    s_mov_b32 exec_hi, 0xf
    ds_write_b128 v74, v[4:7] offset:{INFO}
    s_mov_b64 exec, -1
{L}_SRDONE:
        """)

    def fastrank(L, wrank):
        a(f"""
    s_cmp_lg_u32 s3, {wrank}
    s_cbranch_scc1 {L}_FRDONE
    s_setprio 3
    v_lshlrev_b32 v8, 2, v1
    ds_read_b32 v78, v8 offset:{CNT}
    ds_read_b32 v79, v8 offset:{CNT + 256}
    v_mov_b32 v9, 1
    v_mul_u32_u24 v80, {LROW}, v1
    v_add_u32 v80, {LIST}, v80
    v_add_u32 v4, {64 * LROW}, v80
    v_mul_u32_u24 v82, {ROWS}, v1
    v_add_u32 v82, {QH}, v82
    v_add_u32 v6, {64 * ROWS}, v82
    s_waitcnt lgkmcnt(0)
    v_and_b32 v81, 0xffff, v78
    v_and_b32 v5, 0xffff, v79
    v_min_u32 v73, 63, v81
    v_min_u32 v74, 63, v5
    v_sub_u32 v73, 63, v73
    v_sub_u32 v74, 63, v74
    v_lshlrev_b32 v73, 2, v73
    v_lshlrev_b32 v74, 2, v74
    ds_add_rtn_u32 v75, v73, v9 offset:{DH}
    s_mov_b32 exec_hi, 0xf               ; nodes 64..99
    ds_add_rtn_u32 v76, v74, v9 offset:{DH}
    s_mov_b64 exec, -1
    ds_read_b32 v77, v8 offset:{DH}
    ds_write_b32 v8, v81 offset:{DEGT}
    ds_write_b32 v8, v5 offset:{DEGT + 256}
    v_max_u32 v72, v81, v5
    v_cmp_lt_u32 vcc, {LCAP}, v72
    v_mov_b32 v71, 0
    s_mov_b64 exec, vcc
    ds_max_u32 v71, v72 offset:{MISC + 8}
    s_mov_b64 exec, -1
    v_lshrrev_b32 v83, 16, v78
    v_lshrrev_b32 v7, 16, v79
    s_waitcnt lgkmcnt(3)
    v_mov_b32 v72, v77
        """)
        wave_scan(a, [72])
        a(f"""
    v_sub_u32 v72, v72, v77
    ds_bpermute_b32 v73, v73, v72
    ds_bpermute_b32 v74, v74, v72
    s_waitcnt lgkmcnt(0)
    v_add_lshl_u32 v73, v73, v75, 4
    v_add_lshl_u32 v74, v74, v76, 4
    ds_write_b128 v73, v[80:83] offset:{INFO}
    s_mov_b32 exec_hi, 0xf
    ds_write_b128 v74, v[4:7] offset:{INFO}
    s_mov_b64 exec, -1
    s_setprio 0
{L}_FRDONE:
        """)

    def fastscatter(L):
        a(f"s_movk_i32 s24, {LROW // 4}")
        for k in range(6):
            m, o = k >> 1, k & 1
            r0 = vRec + 4 * m + 2 * o
            a(f"s_mov_b64 exec, s[{sM+2*k}:{sM+2*k+1}]")
            if k in (2, 4):
                a(f"s_cbranch_execz {L}_FSDONE")
            a(f"v_min_u16 v8, {LCAP - 1}, v{vRank+k}")
            a(f"v_mul_u32_u24 v9, s24, v{vPos+k}")
            a(f"v_mad_u32_u16 v9, v8, 8, v9")
            a(f"ds_write_b64 v9, v[{r0}:{r0+1}] offset:{LIST}")
        a(f"{L}_FSDONE:")
        a("s_mov_b64 exec, -1")

    def posread(L):
        for k in range(6):
            a(f"s_mov_b64 exec, s[{sM+2*k}:{sM+2*k+1}]")
            if k in (2, 4):
                a(f"s_cbranch_execz {L}_POSDONE")
            a(f"ds_read_b32 v{vPos+k}, v{vPos+k} offset:{POS}")
        a(f"{L}_POSDONE:")
        a("s_mov_b64 exec, -1")

    def scatter(L):
        for k in range(6):
            m, o = k >> 1, k & 1
            r0 = vRec + 4 * m + 2 * o
            a(f"s_mov_b64 exec, s[{sM+2*k}:{sM+2*k+1}]")
            if k in (2, 4):
                a(f"s_cbranch_execz {L}_SCATDONE")
            a(f"v_mad_u32_u16 v{vPos+k}, v{vRank+k}, 8, v{vPos+k}")
            a(f"ds_write_b64 v{vPos+k}, v[{r0}:{r0+1}]")
        a(f"{L}_SCATDONE:")
        a("s_mov_b64 exec, -1")

    hist("K2A")
    a("s_waitcnt lgkmcnt(0)")
    a("s_barrier")
    stamp(a, 10)
    assert U in (2, 4, 6, 8)
    U0 = min(U, 4)
    PB = [100, 104, 108, 112, 80, 84, 88, 92][:U]
    PR = [116, 118, 120, 122, 4, 6, 8, 10][:U]
    vE = 124
    vI = 52
    vAddr, vDeg, vH = vI, vI + 1, vI + 2
    vL16, vK1, vG16, vWT, vQI, vTmp = 56, 57, 58, 59, 60, 61
    vQ, vW, vT, vX, vN, vD = 20, 28, 36, 44, 64, 72
    sQ, sS, sD0, sD3, sSafe, sSl, sSEL = 27, 28, 29, 30, 31, 32, 33

    def main_consts(n=U):
        a(f"""
    v_lshlrev_b32 v{vL16}, 4, v2
    v_mov_b32 v{vG16}, {INFO}
    v_lshl_add_u32 v{vG16}, v3, 4, v{vG16}
    v_add_u32 v{vWT}, {WT}, v{vL16}
    s_mov_b32 s{sSEL}, 0x00003f80
    s_cmp_lt_u32 s3, {OPT['nw']}
    s_cselect_b32 s{sQ}, s3, 50
        """)
        for j in range(n):
            a(f"v_mov_b32 v{PR[j]+1}, v{vL16}")

    def item_loads(n=U):
        for j in range(n):
            a(f"ds_read_b32 v{PR[j]}, v{vAddr} offset:{8*j}")
        a(f"""
    ds_read_b32 v{vE}, v{vAddr} offset:4
    v_add3_u32 v{vH}, v{vH}, s25, v{vL16}
    v_readlane_b32 s{sD0}, v{vDeg}, 0
    v_readlane_b32 s{sD3}, v{vDeg}, 48
    v_readlane_b32 s35, v{vDeg}, 16
    v_readlane_b32 s71, v{vDeg}, 32
        """)

    def item_issue(extra, j0=0, j1=U):
        for j in range(j0, j1):
            a(f"s_waitcnt lgkmcnt({j1 - 1 - j + extra})")
            a(f"buffer_load_dwordx4 v[{PB[j]}:{PB[j]+3}], v[{PR[j]}:{PR[j]+1}], s[{sP}:{sP+3}], s{sSl} idxen offen {OPT['pld']}")
        if j1 == U:
            a(f"ds_read_b32 v{PR[0]}, v{vAddr} offset:{8*U}")

    fastrank("K2A", 9)
    fastscatter("K2A")
    poll("K2_PB", 15, 16, 84)
    srd(a, sP, 22, 23, N, stride=256)
    a(f"""
    v_mov_b32 v4, 0
    s_mov_b32 s{sNBATCH}, 1
    v_lshlrev_b32 v5, 4, v1
    s_mov_b32 s24, {PMAX_OFF}
    s_waitcnt lgkmcnt(0)
    s_barrier
    """)
    stamp(a, 7)
    cstamp(a, 0)
    diag(a, 2, "K2_DG1")
    diag(a, 4, "K2_DG2", cyc=True)
    a(f"""
    buffer_load_dwordx4 v[{vT}:{vT+3}], v5, s[{sWS}:{sWS+3}], s24 offen sc1
    ds_read_b128 v[8:11], v4 offset:{MISC}
    ds_read_b32 v12, v4 offset:{MISC + 20}
    s_lshl_b32 s24, s3, 6
    v_lshl_add_u32 v{vI}, v3, 4, s24
    ds_read_b128 v[{vI}:{vI+3}], v{vI} offset:{INFO}
    s_mov_b32 s25, 0
    s_mov_b32 s{sSl}, 0
    s_waitcnt lgkmcnt(1)
    v_or_b32 v6, v10, v11
    v_readfirstlane_b32 s28, v12
    v_readfirstlane_b32 s24, v6
    s_cmp_lg_u32 s28, 0
    s_cbranch_scc1 K2_END
    s_cmp_lg_u32 s24, 0
    s_cbranch_scc1 K2_SLOW0
    """)

    def pmax_reduce():
        a(f"v_max3_f32 v{vT}, v{vT}, v{vT+1}, v{vT+2}")
        a(f"v_max_f32 v{vT}, v{vT}, v{vT+3}")
        for st in ("row_shr:1 row_mask:0xf", "row_shr:2 row_mask:0xf", "row_shr:4 row_mask:0xf", "row_shr:8 row_mask:0xf",
                   "row_bcast:15 row_mask:0xa", "row_bcast:31 row_mask:0xc"):
            a("s_nop 1")
            a(f"v_max_f32_dpp v{vT}, v{vT}, v{vT} {st} bank_mask:0xf")
        a("s_nop 0")
        a(f"v_readlane_b32 s{sPM}, v{vT}, 63")

    main_consts()
    a(f"""
    s_waitcnt lgkmcnt(0)
    v_mov_b32 v{vK1}, v9
    ds_read_b128 v[{vW}:{vW+3}], v{vWT}
    ds_read_b128 v[{vW+4}:{vW+7}], v{vWT} offset:256
    """)
    item_loads()
    a(f"""
    ds_read_b128 v[{vQ}:{vQ+3}], v{vH}
    ds_read_b128 v[{vQ+4}:{vQ+7}], v{vH} offset:256
    """)
    item_issue(3)
    a(f"s_waitcnt vmcnt({U})")
    pmax_reduce()
    a(f"""
    s_nop 1
    v_add_f32 v{vK1}, s{sPM}, v{vK1}
    v_fma_f32 v{vK1}, v{vK1}, 4.0, 4.0
    {"s_cmp_ge_u32 s3, " + str(OPT['nw']) if OPT['nw'] < 16 else ""}
    {"s_cbranch_scc1 K2_DONE" if OPT['nw'] < 16 else ""}
    s_branch K2_GO
K2_SLOW0:
    s_waitcnt vmcnt(0)
    """)
    pmax_reduce()
    a(f"""
    v_lshrrev_b32 v6, 2, v0              ; chunk
    v_lshlrev_b32 v7, 10, v6
    s_lshl_b32 s24, s2, 2
    s_add_u32 s24, s24, {TAB_OFF}
    v_mul_u32_u24 v126, {CHS}, v6
    v_cmp_lt_u32 vcc, 24, v124
    s_mov_b32 s{sRECB}, {REC_OFF}
    s_mov_b64 exec, vcc
    buffer_load_dword v6, v7, s[{sWS}:{sWS+3}], s24 offen sc1
    s_waitcnt vmcnt(0)
    v_lshrrev_b32 v124, 16, v6
    v_and_b32 v6, 0xffff, v6
    v_add_u32 v6, v6, v127
    v_lshl_add_u32 v126, v6, 3, v126
    ds_max_u32 v4, v124 offset:{MISC + 12}
    s_mov_b64 exec, -1
    v_sub_u32 v127, v124, v127
    """)
    scanrank("K2S", 8, 9, degt=False)
    a("s_waitcnt lgkmcnt(0)")
    a("s_barrier")
    posread("K2S")
    a("s_waitcnt lgkmcnt(0)")
    scatter("K2S")
    a("""
    s_branch K2_MAIN
K2_BATCH:
    s_waitcnt vmcnt(0)
    """)
    hist("K2B")
    a("s_waitcnt lgkmcnt(0)")
    a("s_barrier")
    scanrank("K2B", 8, 9)
    a("s_waitcnt lgkmcnt(0)")
    a("s_barrier")
    posread("K2B")
    a("s_waitcnt lgkmcnt(0)")
    scatter("K2B")
    a(f"""
K2_MAIN:
    v_mov_b32 v4, 0
    s_waitcnt lgkmcnt(0)
    s_barrier
    ds_read_b128 v[{vI}:{vI+3}], v4 offset:{MISC}
    """)
    main_consts()
    a(f"""
    s_waitcnt lgkmcnt(0)
    v_readfirstlane_b32 s24, v{vI+3}
    v_add_f32 v{vK1}, s{sPM}, v{vI+1}
    v_fma_f32 v{vK1}, v{vK1}, 4.0, 4.0
    s_add_u32 s24, s24, 23
    s_mul_i32 s24, s24, 2731
    s_lshr_b32 s{sNBATCH}, s24, 16
    s_cmp_le_u32 s{sNBATCH}, 1
    s_cbranch_scc1 K2_ITEM
    v_mov_b32 v{vK1}, 0x7f800000         ; several batches: every item takes the plain path
K2_ITEM:
    s_cmp_ge_u32 s{sQ}, 50
    s_cbranch_scc1 K2_DONE
    s_cmp_ge_u32 s{sQ}, 25
    s_cselect_b32 s24, 25, 0
    s_cselect_b32 s25, 512, 0
    s_cselect_b32 s{sSl}, {PS}, 0
    s_sub_u32 s24, s{sQ}, s24
    s_lshl_b32 s24, s24, 6
    v_add_u32 v{vTmp}, s24, v{vG16}
    ds_read_b128 v[{vI}:{vI+3}], v{vTmp}
    v_add_u32 v{vTmp}, s25, v{vWT}
    ds_read_b128 v[{vW}:{vW+3}], v{vTmp}
    ds_read_b128 v[{vW+4}:{vW+7}], v{vTmp} offset:256
    s_mov_b32 s{sP+2}, {N}
    s_waitcnt lgkmcnt(2)
    """)
    item_loads()
    a(f"""
    ds_read_b128 v[{vQ}:{vQ+3}], v{vH}
    ds_read_b128 v[{vQ+4}:{vQ+7}], v{vH} offset:256
    """)
    item_issue(3)
    a(f"""
K2_GO:
    v_cvt_f32_u32 v{vTmp}, v{vDeg}
    v_cvt_f32_u32 v{vI+3}, v{vI+3}
    v_fma_f32 v{vTmp}, v{vTmp}, v{vK1}, v{vI+3}
    s_max_u32 s24, s{sD0}, s{sD3}
    s_min_u32 s{sD3}, s{sD0}, s{sD3}
    v_cmp_nge_f32 vcc, {BOUND:#x}, v{vTmp}
    s_max_u32 s{sD0}, s35, s71
    s_min_u32 s35, s35, s71
    s_max_u32 s{sD0}, s{sD0}, s24
    s_min_u32 s{sD3}, s{sD3}, s35
    s_min_u32 s{sD0}, s{sD0}, {LISTCAP}
    s_sub_u32 s{sSafe}, s{sD0}, {U}
    s_cmp_gt_i32 s{sSafe}, 0
    s_cselect_b32 s{sP+2}, {N}, 0
    s_mov_b32 s{sS}, 0
    {"s_setprio 0" if OPT["prio"] else ""}
    s_cbranch_vccnz K2_P_START
    s_cmp_lg_u32 s{sD3}, 0
    s_cbranch_scc1 K2_F_FIRST
    """)
    for r in range(8):
        a(f"v_mov_b32 v{vN+r}, 0")
        a(f"v_mov_b32 v{vD+r}, 1.0")
    a(f"""
    s_cmp_eq_u32 s{sD0}, 0
    s_cbranch_scc1 K2_F_FLUSH
    v_cmpx_lt_u32 vcc, 0, v{vDeg}
    """)

    def step(j, mode):
        P = PB[j]
        T = vN if mode == "first" else vT
        eh = j & 1
        jn = (j + 1) % U
        osel = "op_sel_hi:[1,0,1]" if eh == 0 else "op_sel:[0,1,0] op_sel_hi:[1,1,1]"
        a("s_waitcnt lgkmcnt(0)")
        for r in range(0, 8, 2):
            a(f"v_pk_fma_f32 v[{T+r}:{T+r+1}], v[{vW+r}:{vW+r+1}], v[{vE}:{vE+1}], v[{vQ+r}:{vQ+r+1}] {osel}")
        a(f"ds_read_b32 v{vE + (eh ^ 1)}, v{vAddr} offset:{8*(j+1)+4}")
        a(f"s_waitcnt vmcnt({U-1})")
        if mode != "plain":
            for p in range(4):
                a(f"v_dot2_f32_bf16 v{T+p}, v{P+p}, s{sSEL}, v{T+p}")
            a(f"v_pk_add_f32 v[{T+4}:{T+5}], v[{P}:{P+1}], v[{T+4}:{T+5}]")
            a(f"v_pk_add_f32 v[{T+6}:{T+7}], v[{P+2}:{P+3}], v[{T+6}:{T+7}]")
        else:
            for p in range(4):
                a(f"v_lshlrev_b32 v{vX+p}, 16, v{P+p}")
            a(f"v_pk_add_f32 v[{T+4}:{T+5}], v[{P}:{P+1}], v[{T+4}:{T+5}]")
            a(f"v_pk_add_f32 v[{T+6}:{T+7}], v[{P+2}:{P+3}], v[{T+6}:{T+7}]")
            a(f"v_pk_add_f32 v[{T}:{T+1}], v[{vX}:{vX+1}], v[{T}:{T+1}]")
            a(f"v_pk_add_f32 v[{T+2}:{T+3}], v[{vX+2}:{vX+3}], v[{T+2}:{T+3}]")
        a(f"buffer_load_dwordx4 v[{P}:{P+3}], v[{PR[j]}:{PR[j]+1}], s[{sP}:{sP+3}], s{sSl} idxen offen {OPT['pld']}")
        a(f"ds_read_b32 v{PR[jn]}, v{vAddr} offset:{8*(j+1+U)}")
        a(f"s_add_u32 s{sS}, s{sS}, 1")
        a(f"s_cmp_lt_i32 s{sS}, s{sSafe}")
        a(f"s_cselect_b32 s{sP+2}, {N}, 0")
        a(f"s_cmp_ge_u32 s{sS}, s{sD3}")
        for r in (4, 5, 6, 7, 0, 1, 2, 3):
            a(f"v_exp_f32 v{vX+r}, v{T+r}")
        order = (4, 6, 0, 2)
        if mode == "first":
            for r in order:
                a(f"v_pk_add_f32 v[{vD+r}:{vD+r+1}], v[{vX+r}:{vX+r+1}], 1.0 op_sel_hi:[1,0]")
        elif mode == "fast":
            for r in order:
                a(f"v_pk_fma_f32 v[{vN+r}:{vN+r+1}], v[{vN+r}:{vN+r+1}], v[{vX+r}:{vX+r+1}], v[{vN+r}:{vN+r+1}]")
            for r in order:
                a(f"v_pk_fma_f32 v[{vN+r}:{vN+r+1}], v[{T+r}:{T+r+1}], v[{vD+r}:{vD+r+1}], v[{vN+r}:{vN+r+1}]")
            for r in order:
                a(f"v_pk_fma_f32 v[{vD+r}:{vD+r+1}], v[{vD+r}:{vD+r+1}], v[{vX+r}:{vX+r+1}], v[{vD+r}:{vD+r+1}]")
        else:
            for r in order:
                a(f"v_pk_add_f32 v[{vX+r}:{vX+r+1}], v[{vX+r}:{vX+r+1}], 1.0 op_sel_hi:[1,0]")
            for r in (4, 5, 6, 7, 0, 1, 2, 3):
                a(f"v_rcp_f32 v{vX+r}, v{vX+r}")
            for r in order:
                a(f"v_pk_fma_f32 v[{vN+r}:{vN+r+1}], v[{T+r}:{T+r+1}], v[{vX+r}:{vX+r+1}], v[{vN+r}:{vN+r+1}]")
        if j == U - 1:
            a(f"v_add_u32 v{vAddr}, {8*U}, v{vAddr}")
        if j == U0 - 1 and OPT["prio"]:
            a("s_setprio 1")

    def loop(pfx, mode):
        tails = []
        if mode == "fast":
            a(f"{pfx}_FIRST:")
            step(0, "first")
            a(f"s_cbranch_scc1 {pfx}_T0")
            seq = list(range(1, U)) + [0]
        else:
            seq = list(range(U))
        for j in seq:
            a(f"{pfx}_S{j}:")
            step(j, mode)
            if j == seq[-1]:
                a(f"s_cbranch_scc0 {pfx}_S{seq[0]}")
            else:
                a(f"s_cbranch_scc1 {pfx}_T{j}")
        for j in [seq[-1]] + seq[:-1]:
            a(f"""
{pfx}_T{j}:
    {"s_setprio 2" if OPT["prio"] else ""}
    s_cmp_ge_u32 s{sS}, s{sD0}
    s_cbranch_scc1 {pfx}_FLUSH
    v_cmpx_lt_u32 vcc, s{sS}, v{vDeg}
    s_branch {pfx}_S{(j+1) % U}
            """)

    loop("K2_F", "fast")
    a(f"""
K2_F_FLUSH:
    s_mov_b64 exec, 1
    v_mov_b32 v{vQI}, 0
    v_mov_b32 v{vTmp}, 1
    ds_add_rtn_u32 v{vQI}, v{vQI}, v{vTmp} offset:{MISC + 16}
    s_mov_b64 exec, -1
    """)
    for r in range(8):
        a(f"v_rcp_f32 v{vX+r}, v{vD+r}")
    for r in range(0, 8, 2):
        a(f"v_pk_mul_f32 v[{vN+r}:{vN+r+1}], v[{vN+r}:{vN+r+1}], v[{vX+r}:{vX+r+1}]")
    a("K2_WRH:")
    for r in range(4):
        a(f"v_cvt_pk_bf16_f32 v{vX+r}, v{vN+2*r}, v{vN+2*r+1}")
    a(f"""
    ds_write_b128 v{vH}, v[{vX}:{vX+3}]
K2_NEXT:
    s_waitcnt lgkmcnt(0)
    v_readfirstlane_b32 s{sQ}, v{vQI}
    s_branch K2_ITEM
K2_P_START:
    """)
    for r in range(8):
        a(f"v_mov_b32 v{vN+r}, 0")
    a(f"""
    s_cmp_eq_u32 s{sD0}, 0
    s_cbranch_scc1 K2_P_FLUSH
    v_cmpx_lt_u32 vcc, 0, v{vDeg}
    """)
    loop("K2_P", "plain")
    a(f"""
K2_P_FLUSH:
    s_mov_b64 exec, 1
    v_mov_b32 v{vQI}, 0
    v_mov_b32 v{vTmp}, 1
    ds_add_rtn_u32 v{vQI}, v{vQI}, v{vTmp} offset:{MISC + 16}
    s_mov_b64 exec, -1
    s_cmp_le_u32 s{sNBATCH}, 1
    s_cbranch_scc1 K2_WRH
    """)
    a(f"""
    s_mul_i32 s24, s2, {SCR_STRIDE}
    s_add_u32 s24, s24, {SCR_OFF - QH}
    s_mov_b32 s{sSCR}, s22
    s_mov_b32 s{sSCR+1}, s23
    s_mov_b32 s{sSCR+2}, {WS_USED}
    s_mov_b32 s{sSCR+3}, 0x00020000
    v_add_u32 v{vH}, v{vH}, v{vL16}
    s_cmp_eq_u32 s{sBATCH}, 0
    s_cbranch_scc1 K2_P_ST
    buffer_load_dwordx4 v[{vX}:{vX+3}], v{vH}, s[{sSCR}:{sSCR+3}], s24 offen
    buffer_load_dwordx4 v[{vX+4}:{vX+7}], v{vH}, s[{sSCR}:{sSCR+3}], s24 offen offset:16
    s_waitcnt vmcnt(0)
    """)
    for r in range(0, 8, 2):
        a(f"v_pk_add_f32 v[{vN+r}:{vN+r+1}], v[{vN+r}:{vN+r+1}], v[{vX+r}:{vX+r+1}]")
    a(f"""
K2_P_ST:
    buffer_store_dwordx4 v[{vN}:{vN+3}], v{vH}, s[{sSCR}:{sSCR+3}], s24 offen
    buffer_store_dwordx4 v[{vN+4}:{vN+7}], v{vH}, s[{sSCR}:{sSCR+3}], s24 offen offset:16
    s_waitcnt vmcnt(0)
    s_branch K2_NEXT
    """)
    vF = 32
    a(f"""
K2_DONE:
    s_add_u32 s{sBATCH}, s{sBATCH}, 1
    s_cmp_ge_u32 s{sBATCH}, s{sNBATCH}
    s_cbranch_scc1 K2_FINAL
    s_waitcnt vmcnt(0)
    s_add_u32 s{sRECB}, s{sRECB}, 192
    v_subrev_u32 v127, 24, v127
    """)
    rec_loads()
    a(f"""
    s_barrier
    v_mov_b32 v4, 0
    v_lshlrev_b32 v5, 2, v0
    v_cmp_gt_u32 vcc, {(DEGT - CNT) // 4}, v0
    s_mov_b64 exec, vcc
    ds_write_b32 v5, v4 offset:{CNT}
    s_mov_b64 exec, 1
    v_mov_b32 v5, {MISC}
    v_mov_b32 v6, {OPT['nw']}
    ds_write_b32 v5, v6 offset:16
    s_mov_b64 exec, -1
    s_waitcnt lgkmcnt(0)
    s_barrier
    s_branch K2_BATCH
K2_FINAL:
    """)
    stamp(a, 8)
    cstamp(a, 1)
    a(f"""
    s_waitcnt vmcnt(0)
    s_and_b32 s24, s3, 3                 ; cp
    s_lshl_b32 s25, s24, 14
    s_add_u32 s25, s25, {W2F_OFF}
    v_lshlrev_b32 v4, 4, v1
    """)
    for f in range(16):
        if f and f % 4 == 0:
            a("s_add_u32 s25, s25, 4096")
        a(f"buffer_load_dwordx4 v[{vF+4*f}:{vF+4*f+3}], v4, s[{sWS}:{sWS+3}], s25 offen offset:{1024*(f%4)} sc1")
    srd(a, sB2, 18, 19, 256)
    srd(a, sOUT, 20, 21, N * 256)
    a(f"""
    s_lshl_b32 s24, s24, 6
    v_lshlrev_b32 v5, 4, v3              ; g*16
    buffer_load_dwordx4 v[8:11], v5, s[{sB2}:{sB2+3}], s24 offen
    s_lshr_b32 s27, s3, 2
    s_lshl_b32 s27, s27, 4               ; first row tile * 16
    v_add_u32 v6, s27, v2
    v_mul_u32_u24 v7, {ROWS}, v6
    v_add_u32 v7, v7, v5
    v_add_u32 v7, {QH}, v7
    v_lshlrev_b32 v20, 2, v6
    v_add_u32 v21, s{sROW0}, v6
    v_lshl_add_u32 v21, v21, 8, v5
    s_mov_b32 s34, {NLN2:#x}
    s_barrier
    s_cmp_le_u32 s{sNBATCH}, 1
    s_cbranch_scc1 K2_GEMM2
    s_mul_i32 s28, s2, {SCR_STRIDE}
    s_add_u32 s28, s28, {SCR_OFF}
    s_mov_b32 s{sSCR}, s22
    s_mov_b32 s{sSCR+1}, s23
    s_mov_b32 s{sSCR+2}, {WS_USED}
    s_mov_b32 s{sSCR+3}, 0x00020000
    v_and_b32 v22, 1, v3
    v_lshlrev_b32 v22, 9, v22
    v_lshl_add_u32 v22, v2, 4, v22       ; s*512 + l*16
    v_lshl_add_u32 v23, v2, 4, v22       ; s*512 + l*32
    s_mov_b32 s29, s3
K2_CONV:
    s_mul_i32 s30, s29, {ROWS}
    s_add_u32 s31, s30, s28
    buffer_load_dwordx4 v[100:103], v23, s[{sSCR}:{sSCR+3}], s31 offen
    buffer_load_dwordx4 v[104:107], v23, s[{sSCR}:{sSCR+3}], s31 offen offset:16
    s_add_u32 s30, s30, {QH}
    v_add_u32 v24, s30, v22
    s_waitcnt vmcnt(0)
    v_cvt_pk_bf16_f32 v100, v100, v101
    v_cvt_pk_bf16_f32 v101, v102, v103
    v_cvt_pk_bf16_f32 v102, v104, v105
    v_cvt_pk_bf16_f32 v103, v106, v107
    ds_write_b128 v24, v[100:103]
    s_add_u32 s29, s29, 16
    s_cmp_lt_u32 s29, {NB}
    s_cbranch_scc1 K2_CONV
    s_waitcnt lgkmcnt(0)
    s_barrier
K2_GEMM2:
    """)
    stamp(a, 9)
    diag(a, 3, "K2_DG3")
    diag(a, 5, "K2_DG4", cyc=True)
    vHB = 96
    vO = 24
    for rt in range(2):
        off = rt * 64 * ROWS
        if rt == 1:
            a("s_cmp_ge_u32 s3, 12")
            a("s_cbranch_scc1 K2_FIN")
            a(f"v_add_u32 v7, {off}, v7")
            a(f"v_add_u32 v21, {64 * 256}, v21")
        a(f"ds_read_b32 v22, v20 offset:{DEGT + rt * 256}")
        for ks in range(8):
            a(f"ds_read_b128 v[{vHB+4*ks}:{vHB+4*ks+3}], v7 offset:{(ks >> 2) * 512 + (ks & 3) * 64}")
        if rt == 0:
            a("s_waitcnt vmcnt(0)")
            for p in range(4):
                a(f"v_lshlrev_b32 v{12+2*p}, 16, v{8+p}")
                a(f"v_and_b32 v{13+2*p}, 0xffff0000, v{8+p}")
        for ks in range(8):
            a(f"s_waitcnt lgkmcnt({7-ks})")
            for aa in range(2):
                f = vF + 4 * (aa * 8 + ks)
                c = "0" if ks == 0 else f"v[{vO+4*aa}:{vO+4*aa+3}]"
                a(f"v_mfma_f32_16x16x32_bf16 v[{vO+4*aa}:{vO+4*aa+3}], v[{f}:{f+3}], v[{vHB+4*ks}:{vHB+4*ks+3}], {c}")
        a("v_cvt_f32_u32 v22, v22")
        a(f"v_cmp_gt_u32 vcc, {NB - 64 * rt}, v6")
        a("s_nop 5")
        for r in range(8):
            a(f"v_mul_f32 v{vO+r}, s34, v{vO+r}")
        for r in range(8):
            a(f"v_fmac_f32 v{vO+r}, v22, v{12+r}")
        for r in range(4):
            a(f"v_cvt_pk_bf16_f32 v{vHB+r}, v{vO+2*r}, v{vO+2*r+1}")
        a("s_mov_b64 exec, vcc")
        a(f"buffer_store_dwordx4 v[{vHB}:{vHB+3}], v21, s[{sOUT}:{sOUT+3}], s24 offen {OPT['ost']}")
        a("s_mov_b64 exec, -1")
        if rt == 0:
            a("s_nop 1")
    a("K2_FIN:")
    if OPT["stamps"]:
        a("s_waitcnt vmcnt(0)")
    stamp(a, 11)
    stamp_flush(a, 0)
    diag_flush(a)
    a("""
K2_END:
    s_endpgm
    """)
    return a.text(), 128, 102


HEADER = """; Kernarg layout for this problem (88 bytes, ptrs only, base s[0:1]):
"""


def kd(name, vgpr, sgpr):
    return f""".amdhsa_kernel {name}
  .amdhsa_next_free_vgpr {vgpr}
  .amdhsa_next_free_sgpr {sgpr}
  .amdhsa_accum_offset {(vgpr + 3) // 4 * 4}
  .amdhsa_group_segment_fixed_size 0
  .amdhsa_kernarg_size 88
  .amdhsa_user_sgpr_count 2
  .amdhsa_user_sgpr_kernarg_segment_ptr 1
  .amdhsa_system_sgpr_workgroup_id_x 1
.end_amdhsa_kernel
"""


def build():
    k2, v2, s2 = gen_k2()
    n2 = "gather_scatter__edge_featured_mpnn_mpnn__graph_kernel"
    out = HEADER
    ks = [(n2, k2, v2, s2)]
    if OPT["diag"] or OPT["list"]:
        out += f"; @launch kernel={n2} grid=(256,1,1) block=(1024,1,1) lds={K_LDS}\n"
    else:
        out += f"; @launch grid=(256,1,1) block=(1024,1,1) lds={K_LDS}\n"
    if OPT["diag"]:
        out += "; @launch kernel=diag_kernel grid=(1,1,1) block=(64,1,1) lds=0\n"
        ks.append(("diag_kernel",) + gen_diag())
    out += '.amdgcn_target "amdgcn-amd-amdhsa--gfx950"\n.text\n'
    for n, k, _, _ in ks:
        out += f".globl {n}\n.p2align 8\n.type {n},@function\n{n}:\n" + k
    out += '.section .rodata,"a"\n'
    for n, _, v, sg in ks:
        out += ".p2align 6\n" + kd(n, v, sg)
    return out


if __name__ == "__main__":
    path = sys.argv[1] if len(sys.argv) > 1 else "gather_scatter__edge_featured_mpnn_mpnn__graph.s"
    for kv in sys.argv[2:]:
        k, v = kv.split("=")
        OPT[k] = int(v) if v.lstrip('-').isdigit() else v.replace('+', ' ')
    open(path, "w").write(build())
    print("wrote", path, "LDS", K_LDS)
```

```python
import sys

N = 25000; E = 400000
NB = 98
CH = 1564
CHS = 12544
PS = N * 256
P_OFF = 0
CELL_OFF = 0x0C40000
REC_OFF = 0x1C40000
TAB_OFF = 0x1F50000
W2F_OFF = 0x1F90000
PMAX_OFF = 0x1FA0000
SCR_OFF = 0x2000000
SCR_STRIDE = 104448
WS_USED = SCR_OFF + 256 * SCR_STRIDE
assert 2 * PS <= CELL_OFF and REC_OFF + 256 * CHS <= TAB_OFF
NLOG2E = 0xbfb8aa3b
NLN2 = 0xbf317218
BOUND = 0x43e00000

STAMP_OFF = 0x3c00000
OPT = dict(U=4, stamps=False, pst="", rst="", prio=1, warm=1, reclate=0, tlb=0, diag=0, ost="sc1", pld="sc1", nw=16, sleep=2, list=0)


class A:
    def __init__(self):
        self.l = []

    def __call__(self, s):
        for x in s.strip("\n").split("\n"):
            x = x.rstrip()
            if not x.strip():
                continue
            if x.strip().endswith(":") and not x.strip().startswith(";"):
                self.l.append(x.strip())
            else:
                self.l.append("    " + x.strip())

    def text(self):
        return "\n".join(self.l) + "\n"


def stamp(a, i):
    if OPT["stamps"]:
        a(f"""
        s_memrealtime s[98:99]
        s_waitcnt lgkmcnt(0)
        s_mov_b32 s{84+i}, s98
        """)


DIAG_OFF = 0x3b00000


def diag(a, slot, lab, cyc=False):
    if OPT["diag"]:
        a(f"""
        s_cmp_lg_u32 s3, 0
        s_cbranch_scc1 {lab}
        {"s_memtime" if cyc else "s_memrealtime"} s[98:99]
        s_waitcnt lgkmcnt(0)
        s_mov_b32 s{84 + slot}, s98
{lab}:
        """)


def diag_flush(a):
    if OPT["diag"]:
        a(f"""
        s_cmp_lg_u32 s3, 0
        s_cbranch_scc1 K2_END
        s_lshl_b32 s96, s2, 5
        s_add_u32 s96, s96, {DIAG_OFF}
        s_add_u32 s96, s22, s96
        s_addc_u32 s97, s23, 0
        v_mov_b32 v0, 0
        """)
        for i in range(8):
            a(f"v_mov_b32 v1, s{84 + i}")
            a(f"global_store_dword v0, v1, s[96:97] offset:{4 * i}")


def gen_diag():
    a = A()
    m = OPT["diag"] - 100
    op = "v_max_u32" if m // 10 == 0 else "v_min_u32"
    slot = m % 10
    a(f"""
    s_cmp_lg_u32 s2, 0
    s_cbranch_scc1 DG_END
    s_load_dwordx2 s[22:23], s[0:1], 80
    s_memrealtime s[10:11]
    v_lshlrev_b32 v1, 5, v0
    s_waitcnt lgkmcnt(0)
    s_add_u32 s22, s22, {DIAG_OFF}
    s_addc_u32 s23, s23, 0
    """)
    for k in range(4):
        a(f"global_load_dword v{2+k}, v1, s[22:23]")
        a(f"global_load_dword v{6+k}, v1, s[22:23] offset:{4*slot}")
        a("v_add_u32 v1, 2048, v1")
    a("s_waitcnt vmcnt(0)")
    for k in range(1, 4):
        a(f"v_min_u32 v2, v2, v{2+k}")
        a(f"{op} v6, v6, v{6+k}")
    for st in ("row_shr:1 row_mask:0xf", "row_shr:2 row_mask:0xf", "row_shr:4 row_mask:0xf", "row_shr:8 row_mask:0xf",
               "row_bcast:15 row_mask:0xa", "row_bcast:31 row_mask:0xc"):
        a("s_nop 1")
        a(f"v_min_u32_dpp v2, v2, v2 {st} bank_mask:0xf")
        a(f"{op}_dpp v6, v6, v6 {st} bank_mask:0xf")
    a("""
    s_nop 1
    v_readlane_b32 s12, v6, 63
    v_readlane_b32 s13, v2, 63
    s_sub_u32 s12, s12, s13
    s_lshl_b32 s12, s12, 2
    s_min_u32 s12, s12, 30000
DG_SPIN:
    s_memrealtime s[14:15]
    s_waitcnt lgkmcnt(0)
    s_sub_u32 s14, s14, s10
    s_cmp_lt_u32 s14, s12
    s_cbranch_scc1 DG_SPIN
DG_END:
    s_endpgm
    """)
    return a.text(), 16, 40


def cstamp(a, i):
    if OPT["stamps"]:
        a(f"""
        s_memtime s[98:99]
        s_waitcnt lgkmcnt(0)
        s_mov_b32 s{96+i}, s98
        """)


def stamp_init(a):
    if OPT["stamps"]:
        for i in range(14):
            a(f"s_mov_b32 s{84+i}, 0")


def stamp_flush(a, kern):
    if OPT["stamps"]:
        a(f"""
        s_mov_b64 exec, -1
        s_mov_b32 s4, s22
        s_mov_b32 s5, s23
        s_mov_b32 s6, 0x8000000
        s_mov_b32 s7, 0x00020000
        s_lshl_b32 s8, s2, 4
        s_add_u32 s8, s8, s3
        s_lshl_b32 s8, s8, 6
        s_add_u32 s8, s8, {STAMP_OFF + kern * 256 * 16 * 64}
        v_mov_b32 v0, 0
        s_mov_b64 exec, 1
        """)
        for i in range(14):
            a(f"v_mov_b32 v1, s{84+i}")
            a(f"buffer_store_dword v1, v0, s[4:7], s8 offen offset:{4*i}")


def srd(a, d, lo, hi, size, stride=0):
    a(f"s_mov_b32 s{d}, s{lo}")
    if stride:
        a(f"s_and_b32 s{d+1}, s{hi}, 0xffff")
        a(f"s_or_b32 s{d+1}, s{d+1}, {stride << 16:#x}")
    else:
        a(f"s_mov_b32 s{d+1}, s{hi}")
    a(f"s_mov_b32 s{d+2}, {size}")
    a(f"s_mov_b32 s{d+3}, 0x00020000")


def wave_scan(a, regs):
    steps = ["row_shr:1 row_mask:0xf", "row_shr:2 row_mask:0xf", "row_shr:4 row_mask:0xf", "row_shr:8 row_mask:0xf",
             "row_bcast:15 row_mask:0xa", "row_bcast:31 row_mask:0xc"]
    for st in steps:
        a("s_nop 1" if len(regs) == 1 else "s_nop 0")
        for r in regs:
            a(f"v_add_u32_dpp v{r}, v{r}, v{r} {st} bank_mask:0xf")


def row_max(a, r):
    for sh in (1, 2, 4, 8):
        a("s_nop 1")
        a(f"v_max_f32_dpp v{r}, v{r}, v{r} row_shr:{sh} row_mask:0xf bank_mask:0xf")


def common_ids(a):
    a("""
    v_lshrrev_b32 v1, 6, v0
    v_and_b32 v2, 15, v0               ; l16
    v_readfirstlane_b32 s3, v1         ; wave
    v_and_b32 v1, 63, v0               ; lane
    v_lshrrev_b32 v3, 4, v1            ; g
    """)


def dma_w_setup(a, vdst, vt, st):
    a(f"""
    s_and_b32 s{st}, s3, 1
    s_lshl_b32 s{st}, s{st}, 7
    v_lshrrev_b32 v{vt}, 5, v1           ; L>>5
    v_mul_u32_u24 v{vt}, 544, v{vt}      ; (L>>5)*512 + (L>>5)<<5
    v_and_b32 v{vdst}, 31, v1
    v_lshlrev_b32 v{vdst}, 4, v{vdst}    ; j*16
    v_xor_b32 v{vdst}, v{vt}, v{vdst}
    v_xor_b32 v{vdst}, s{st}, v{vdst}
    v_xor_b32 v{vdst+1}, 64, v{vdst}
    s_lshl_b32 s{st}, s3, 12
    """)


def dma_w_issue(a, vsrc, srdw, st, st2, goff, wb):
    a(f"s_add_u32 m0, s{st}, {wb}")
    a(f"s_add_u32 s{st2}, s{st}, {goff}")
    for i in range(4):
        a(f"buffer_load_dwordx4 v{vsrc + (i & 1)}, s[{srdw}:{srdw+3}], s{st2} offen offset:{1024 * i} lds")


def dma_x(a, srdx, srow0, vo, vt, st, xb):
    a(f"""
    s_and_b32 s{st}, s3, 1
    s_lshl_b32 s{st}, s{st}, 3
    v_add_u32 v{vt}, s{st}, v3           ; 8*(w&1)+g
    v_xor_b32 v{vt}, v2, v{vt}
    s_lshl_b32 s{st}, s3, 3
    s_add_u32 s{st}, s{st}, s{srow0}
    v_add_u32 v{vo}, s{st}, v3           ; row
    v_lshlrev_b32 v{vo}, 8, v{vo}
    v_lshl_add_u32 v{vo}, v{vt}, 4, v{vo}
    s_lshl_b32 s{st}, s3, 11
    s_add_u32 m0, s{st}, {xb}
    v_xor_b32 v{vt}, 64, v{vo}
    buffer_load_dwordx4 v{vo}, s[{srdx}:{srdx+3}], 0 offen lds
    buffer_load_dwordx4 v{vt}, s[{srdx}:{srdx+3}], 0 offen offset:1024 lds
    """)


def gemm_addr(a, vb, vxa, vt, st, wb, xb):
    a(f"""
    v_lshrrev_b32 v{vt}, 2, v2           ; r
    v_mul_u32_u24 v{vb}, 544, v{vt}      ; r*512 + r*32
    v_lshl_add_u32 v{vb}, v3, 12, v{vb}  ; + g*8*512
    v_and_b32 v{vt}, 1, v3
    v_lshl_add_u32 v{vb}, v{vt}, 7, v{vb} ; + (g&1)<<2<<5
    v_and_b32 v{vt}, 3, v2
    v_lshl_add_u32 v{vb}, v{vt}, 3, v{vb} ; + c*8
    s_and_b32 s{st}, s3, 7
    s_lshl_b32 s{st}, s{st}, 6
    v_xor_b32 v{vb}, s{st}, v{vb}
    v_add_u32 v{vb}, {wb}, v{vb}
    v_xor_b32 v{vb+1}, 32, v{vb}
    v_xor_b32 v{vt}, v2, v3
    v_lshlrev_b32 v{vt}, 4, v{vt}
    v_lshl_add_u32 v{vxa}, v2, 8, v{vt}
    s_lshr_b32 s{st}, s3, 3
    s_lshl_b32 s{st}, s{st}, 14
    s_add_u32 s{st}, s{st}, {xb}
    v_add_u32 v{vxa}, s{st}, v{vxa}
    v_xor_b32 v{vxa+1}, 64, v{vxa}
    v_xor_b32 v{vxa+2}, 0x80, v{vxa}
    v_xor_b32 v{vxa+3}, 0xc0, v{vxa}
    """)


def gemm_parts(a, vW, vX, vAcc, vb, vxa, cinit, acc2=False):
    def wreads():
        for ks in range(4):
            for aa in range(2):
                for h in range(2):
                    r = vW + 16 * aa + 4 * ks + 2 * h
                    a(f"ds_read_b64_tr_b16 v[{r}:{r+1}], v{vb+aa} offset:{ks * 16384 + h * 2048}")

    def xreads(i):
        for ks in range(4):
            r = vX + 16 * (i & 1) + 4 * ks
            a(f"ds_read_b128 v[{r}:{r+3}], v{vxa+ks} offset:{4096 * i}")

    def mf(i):
        for ks in range(4):
            for aa in range(2):
                acc = vAcc + 8 * ((i & 1) if acc2 else i) + 4 * aa
                c = cinit(aa) if ks == 0 else f"v[{acc}:{acc+3}]"
                w = vW + 16 * aa + 4 * ks
                x = vX + 16 * (i & 1) + 4 * ks
                a(f"v_mfma_f32_16x16x32_bf16 v[{acc}:{acc+3}], v[{w}:{w+3}], v[{x}:{x+3}], {c}")
    return wreads, xreads, mf


ROWS = 1040
CNT = 0
DH = CNT + 512
DEGT = DH + 256
HIST = DEGT + 512
POS = HIST + 1024
INFO = POS + 512
MISC = INFO + 1600
WT = MISC + 64
START = WT + 1024
LIST = (START + 1024 + 255) // 256 * 256
LISTCAP = 6144
LCAP = 60
LROW = LCAP * 8
QH = (LIST + LISTCAP * 8 + 128 + 255) // 256 * 256
K_LDS = QH + 100 * ROWS
XB = LIST
STAGE = LIST + 32768
CST = QH + 65536
assert K_LDS <= 163840 and STAGE + CHS <= QH and CST + 32768 <= K_LDS
assert MISC % 16 == 0 and INFO % 16 == 0 and WT % 16 == 0
QCAP = 585
SPIN = 40000


def gen_k2():
    U = OPT["U"]
    a = A()
    vW, vX, vAcc = 20, 52, 84
    vRec, vRank, vPos = 100, 112, 118
    vb, vxa, vB1 = 4, 6, 10
    sX, sW1, sB1, sWS, sP, sOUT, sB2, sSCR = 36, 40, 44, 48, 52, 56, 60, 64
    sDST, sSRC, sE, sW2 = 52, 56, 60, 64
    sROW0 = 26
    sBATCH = 68; sNBATCH = 69; sRECB = 70
    sM = 72
    sDBG = 100; sPM = 34
    a(f"""
    s_cmp_ge_u32 s2, 256
    s_cbranch_scc1 K2_END
    s_load_dwordx16 s[4:19], s[0:1], 0
    s_load_dwordx2 s[20:21], s[0:1], 64
    s_load_dwordx2 s[22:23], s[0:1], 80
    s_load_dwordx2 s[{sDBG}:{sDBG+1}], s[0:1], 72
    """)
    stamp_init(a)
    stamp(a, 0)
    common_ids(a)
    a(f"""
    s_mul_i32 s29, s2, {CH}
    s_sub_u32 s30, {E}, s29
    s_min_u32 s30, s30, {CH}
    s_lshr_b32 s30, s30, 1
    v_lshl_add_u32 v6, v0, 1, s29        ; first edge index
    v_lshlrev_b32 v7, 1, v6
    v_lshlrev_b32 v6, 2, v6
    v_cmp_gt_u32 s[32:33], s30, v0
    v_mov_b32 v11, 0
    v_lshlrev_b32 v12, 2, v0
    v_cmp_gt_u32 vcc, {(POS - CNT) // 4}, v0
    s_mov_b64 exec, vcc
    ds_write_b32 v12, v11 offset:{CNT}
    s_mov_b64 exec, 0xff
    v_cmp_eq_u32 vcc, 4, v1
    v_lshlrev_b32 v12, 2, v1
    s_mul_i32 s{sROW0}, s2, {NB}
    v_cndmask_b32 v11, 0, {OPT['nw']}, vcc
    ds_write_b32 v12, v11 offset:{MISC}
    s_mov_b64 exec, -1
    v_lshlrev_b32 v13, 3, v1
    s_mov_b32 s68, {256 * 512}
    s_waitcnt lgkmcnt(0)
    """)
    diag(a, 0, "K1_DG0")
    srd(a, sDST, 10, 11, E * 4)
    srd(a, sE, 6, 7, E * 2)
    srd(a, sSRC, 8, 9, E * 4)
    srd(a, sW1, 12, 13, 257 * 512)
    a(f"""
    s_mov_b64 exec, s[32:33]
    buffer_load_dwordx2 v[118:119], v6, s[{sDST}:{sDST+3}], 0 offen
    buffer_load_dword v10, v7, s[{sE}:{sE+3}], 0 offen
    buffer_load_dwordx2 v[8:9], v6, s[{sSRC}:{sSRC+3}], 0 offen
    s_mov_b64 exec, -1
    buffer_load_dwordx2 v[14:15], v13, s[{sW1}:{sW1+3}], s68 offen
    """)
    a("""
    s_cmp_lg_u32 s3, 14
    s_cbranch_scc1 K1_NOW2L
    """)
    srd(a, sW2, 16, 17, 65536)
    a(f"""
    s_lshr_b32 s68, s2, 2                ; F = G>>6
    s_and_b32 s69, s2, 3                 ; g' = (G&63)>>4
    s_and_b32 s24, s68, 7
    s_lshl_b32 s24, s24, 5
    s_lshl_b32 s69, s69, 2
    s_add_u32 s24, s24, s69
    s_lshl_b32 s24, s24, 8               ; *256 bytes
    s_lshr_b32 s69, s68, 4               ; cp
    s_lshl_b32 s69, s69, 5
    s_bfe_u32 s68, s68, 0x10003          ; a
    s_lshl_b32 s68, s68, 2
    s_add_u32 s68, s68, s69              ; 32cp + 4a
    v_lshrrev_b32 v28, 2, v2
    v_lshlrev_b32 v28, 3, v28            ; 8*(m>>2)
    v_and_b32 v29, 3, v2
    v_add3_u32 v28, v28, v29, s68        ; col
    v_lshlrev_b32 v28, 1, v28
    s_mov_b64 exec, 0xffff
    """)
    for t in range(8):
        if t == 4:
            a("s_add_u32 s24, s24, 4096")
        r = vW + (t >> 1) + 4 * (t & 1)
        a(f"buffer_load_ushort v{r}, v28, s[{sW2}:{sW2+3}], s24 offen offset:{256 * (t & 3)}")
    a(f"""
    s_mov_b64 exec, -1
K1_NOW2L:
    s_cmp_lg_u32 s3, 13
    s_cbranch_scc1 K1_NOWARM
    s_lshr_b32 s24, s2, 3
    s_lshl_b32 s24, s24, 11
    s_add_u32 s24, s24, {128 * 512}
    v_lshlrev_b32 v28, 5, v1
    buffer_load_dword v29, v28, s[{sW1}:{sW1+3}], s24 offen
K1_NOWARM:
    """)
    dma_w_setup(a, 16, 5, 27)
    srd(a, sX, 4, 5, N * 256)
    srd(a, sWS, 22, 23, SCR_OFF)
    srd(a, sB1, 14, 15, 512)
    a("s_barrier")
    a("s_cmp_ge_u32 s3, 14")
    a("s_cbranch_scc1 K1_NOX")
    dma_x(a, sX, sROW0, 5, 6, 24, XB)
    a("K1_NOX:")
    dma_w_issue(a, 16, sW1, 27, 24, 0, QH)
    a(f"""
    s_and_b32 s24, s3, 7
    s_lshl_b32 s24, s24, 6
    v_lshlrev_b32 v5, 3, v3
    buffer_load_dwordx2 v[112:113], v5, s[{sB1}:{sB1+3}], s24 offen
    buffer_load_dwordx2 v[114:115], v5, s[{sB1}:{sB1+3}], s24 offen offset:32
    s_mov_b32 s71, 42800
    s_mov_b32 s34, {NLOG2E:#x}
    s_lshl_b32 s31, s2, 8
    s_add_u32 s31, s31, {CELL_OFF}
    s_cmp_ge_u32 s3, 13
    s_cbranch_scc1 K1_AUX
    s_waitcnt vmcnt(8)
    """)
    a(f"""
    ; 4*log2e*max|w1[256,:]|
    v_and_b32 v14, 0x7fff7fff, v14
    v_and_b32 v15, 0x7fff7fff, v15
    v_pk_max_u16 v14, v14, v15
    s_mov_b64 exec, s[32:33]
    v_mul_u32_u24 v116, s71, v118
    v_mul_u32_u24 v117, s71, v119
    v_lshrrev_b32 v116, 22, v116         ; bucket
    v_lshrrev_b32 v117, 22, v117
    v_mul_u32_u24 v125, {NB}, v116
    v_mul_u32_u24 v126, {NB}, v117
    v_lshlrev_b32 v116, 2, v116
    v_lshlrev_b32 v117, 2, v117
    v_sub_u32 v125, v118, v125           ; dloc
    v_sub_u32 v126, v119, v126
    v_mov_b32 v127, 1
    ds_add_rtn_u32 v118, v116, v127 offset:{HIST}
    ds_add_rtn_u32 v119, v117, v127 offset:{HIST}
    s_mov_b64 exec, -1
    v_lshlrev_b32 v15, 16, v14
    v_and_b32 v14, 0xffff0000, v14
    v_max_u32 v14, v14, v15
    """)
    for st in ("row_shr:1 row_mask:0xf", "row_shr:2 row_mask:0xf", "row_shr:4 row_mask:0xf", "row_shr:8 row_mask:0xf",
               "row_bcast:15 row_mask:0xa", "row_bcast:31 row_mask:0xc"):
        a("s_nop 1")
        a(f"v_max_u32_dpp v14, v14, v14 {st} bank_mask:0xf")
    a(f"""
    v_mul_f32 v14, 0x40b8aa3b, v14       ; 4*log2(e)
    v_lshlrev_b32 v121, 16, v10
    v_readlane_b32 s67, v14, 63
    v_and_b32 v123, 0xffff0000, v10
    s_mov_b64 exec, s[32:33]
    v_fma_f32 v120, |v121|, s67, 1.0
    v_fma_f32 v122, |v123|, s67, 1.0
    v_lshl_or_b32 v121, v125, 2, v121    ; e<<16 | dloc*4
    v_lshl_or_b32 v123, v126, 2, v123
    v_cvt_u32_f32 v120, v120
    v_cvt_u32_f32 v122, v122
    v_min_u32 v120, {QCAP}, v120
    v_min_u32 v122, {QCAP}, v122
    v_lshl_or_b32 v120, v120, 16, v8     ; src | q<<16
    v_lshl_or_b32 v122, v122, 16, v9
    v_lshlrev_b32 v125, 5, v116          ; bucket*128
    v_lshlrev_b32 v126, 5, v117
    v_add_u32 v125, {CST}, v125
    v_add_u32 v126, {CST}, v126
    s_waitcnt lgkmcnt(0)
    v_lshl_add_u32 v125, v118, 3, v125
    v_lshl_add_u32 v126, v119, 3, v126
    v_cmp_gt_u32 s[72:73], 16, v118
    v_cmp_gt_u32 s[74:75], 16, v119
    v_max_u32 v124, v118, v119
    s_mov_b64 exec, s[72:73]
    ds_write_b64 v125, v[120:121]
    s_mov_b64 exec, s[74:75]
    ds_write_b64 v126, v[122:123]
    s_and_b64 s[76:77], s[72:73], s[74:75]
    s_andn2_b64 exec, s[32:33], s[76:77]
    s_cbranch_execz K1_BAR1
    v_lshlrev_b32 v125, 14, v116
    v_lshlrev_b32 v126, 14, v117
    v_lshl_add_u32 v125, v118, 3, v125
    v_lshl_add_u32 v126, v119, 3, v126
    v_cmp_gt_u32 s[76:77], 24, v118
    v_cmp_gt_u32 s[78:79], 24, v119
    v_cmp_le_u32 vcc, 24, v124
    v_mov_b32 v127, 0
    s_andn2_b64 exec, s[76:77], s[72:73]
    buffer_store_dwordx2 v[120:121], v125, s[{sWS}:{sWS+3}], s31 offen sc1
    s_andn2_b64 exec, s[78:79], s[74:75]
    buffer_store_dwordx2 v[122:123], v126, s[{sWS}:{sWS+3}], s31 offen sc1
    s_mov_b64 exec, vcc
    ds_max_u32 v127, v124 offset:{MISC + 24}
    s_branch K1_BAR1
K1_AUX:
    s_cmp_lg_u32 s3, 15
    s_cbranch_scc1 K1_BAR1
    s_waitcnt vmcnt(6)
    v_lshlrev_b32 v20, 16, v14
    v_and_b32 v21, 0xffff0000, v14
    v_lshlrev_b32 v22, 16, v15
    v_and_b32 v23, 0xffff0000, v15
    v_mul_f32 v20, s34, v20
    v_mul_f32 v21, s34, v21
    v_mul_f32 v22, s34, v22
    v_mul_f32 v23, s34, v23
    v_and_b32 v24, 3, v1
    v_lshlrev_b32 v24, 4, v24            ; ((h>>2)&3)*16
    v_bfe_u32 v25, v1, 3, 2
    v_lshl_add_u32 v24, v25, 6, v24      ; + ((h>>5)&3)*64
    v_bfe_u32 v25, v1, 2, 1
    v_lshl_add_u32 v24, v25, 8, v24      ; + half*256
    v_lshrrev_b32 v25, 5, v1
    v_lshl_add_u32 v24, v25, 9, v24      ; + s*512
    ds_write_b128 v24, v[20:23] offset:{WT}
K1_BAR1:
    s_mov_b64 exec, -1
    v_lshrrev_b32 v6, 2, v0
    v_and_b32 v7, 3, v0
    v_lshlrev_b32 v127, 1, v7            ; 2j
    v_lshlrev_b32 v7, 4, v7
    v_lshl_add_u32 v5, v6, 7, v7
    v_add_u32 v5, {CST}, v5
    v_lshl_add_u32 v126, v6, 8, v7
    v_lshl_add_u32 v7, v6, 16, v7
    v_and_b32 v6, 0x3fc, v0
    v_mov_b32 v4, 0
    s_waitcnt lgkmcnt(0)
    s_barrier
    """)
    stamp(a, 1)
    a(f"""
    ds_read_b32 v108, v6 offset:{HIST}
    ds_read_b128 v[100:103], v5
    ds_read_b128 v[104:107], v5 offset:64
    ds_read_b32 v109, v4 offset:{MISC + 24}
    s_mov_b32 s24, 0x11111111
    s_mov_b32 s25, 0x11111111
    s_movk_i32 s28, 0x3e00
    s_waitcnt lgkmcnt(3)
    v_sub_u32 v110, v108, v127
    v_min_u32 v108, 31, v108
    v_lshlrev_b32 v108, 9, v108
    v_cmp_lt_i32 vcc, 0, v110
    v_cmp_lt_i32 s[72:73], 8, v110
    s_waitcnt lgkmcnt(0)
    v_readfirstlane_b32 s29, v109
    s_mov_b64 exec, s[24:25]
    v_bfi_b32 v101, s28, v108, v101
    s_or_b64 exec, vcc, s[24:25]
    buffer_store_dwordx4 v[100:103], v7, s[{sWS}:{sWS+3}], s31 offen sc1
    s_mov_b64 exec, s[72:73]
    buffer_store_dwordx4 v[104:107], v7, s[{sWS}:{sWS+3}], s31 offen offset:64 sc1
    s_mov_b64 exec, -1
    s_cmp_eq_u32 s29, 0
    s_cbranch_scc1 K1_NOPACK
    s_cmp_lg_u32 s3, 15
    s_cbranch_scc1 K1_NOSCAN
    v_lshlrev_b32 v6, 4, v1
    ds_read_b128 v[52:55], v6 offset:{HIST}
    s_lshl_b32 s24, s2, 10
    s_add_u32 s24, s24, {TAB_OFF}
    s_waitcnt lgkmcnt(0)
    v_add_u32 v57, v52, v53              ; p2
    v_add_u32 v58, v57, v54              ; p3
    v_add_u32 v59, v58, v55              ; tot
    v_mov_b32 v60, v59
    """)
    wave_scan(a, [60])
    a(f"""
    v_sub_u32 v60, v60, v59              ; base
    v_add_u32 v61, v60, v52
    v_add_u32 v62, v60, v57
    v_add_u32 v63, v60, v58
    v_lshlrev_b32 v64, 3, v60
    v_lshlrev_b32 v65, 3, v61
    v_lshlrev_b32 v66, 3, v62
    v_lshlrev_b32 v67, 3, v63
    ds_write_b128 v6, v[64:67] offset:{START}
    v_lshl_or_b32 v60, v52, 16, v60
    v_lshl_or_b32 v61, v53, 16, v61
    v_lshl_or_b32 v62, v54, 16, v62
    v_lshl_or_b32 v63, v55, 16, v63
    buffer_store_dwordx4 v[60:63], v6, s[{sWS}:{sWS+3}], s24 offen sc1
    s_waitcnt lgkmcnt(0)
K1_NOSCAN:
    s_barrier
    s_mov_b64 exec, s[32:33]
    ds_read_b32 v116, v116 offset:{START}
    ds_read_b32 v117, v117 offset:{START}
    s_waitcnt lgkmcnt(0)
    v_lshl_add_u32 v116, v118, 3, v116
    v_lshl_add_u32 v117, v119, 3, v117
    ds_write_b64 v116, v[120:121] offset:{STAGE}
    ds_write_b64 v117, v[122:123] offset:{STAGE}
    s_mov_b64 exec, -1
    v_lshlrev_b32 v6, 4, v0
    v_cmp_gt_u32 vcc, {CHS // 16}, v0
    s_mul_i32 s24, s2, {CHS}
    s_add_u32 s24, s24, {REC_OFF}
    s_waitcnt lgkmcnt(0)
    s_barrier
    s_mov_b64 exec, vcc
    ds_read_b128 v[52:55], v6 offset:{STAGE}
    s_waitcnt lgkmcnt(0)
    buffer_store_dwordx4 v[52:55], v6, s[{sWS}:{sWS+3}], s24 offen sc1
    s_mov_b64 exec, -1
    s_waitcnt vmcnt(0)
K1_NOPACK:
K1_ADDR:
    """)
    gemm_addr(a, vb, vxa, 11, 24, QH, XB)
    a(f"""
    s_mov_b32 s65, 0x07060100
    s_mov_b32 s66, 0x07060302
    s_lshr_b32 s29, s3, 3
    s_lshl_b32 s30, s29, 6               ; 64*rh
    s_sub_u32 s28, {N}, s{sROW0}
    s_min_u32 s28, s28, {NB}
    s_sub_u32 s28, s28, s30              ; valid rows from this wave's first row
    s_add_u32 s30, s30, s{sROW0}
    v_add_u32 v119, s30, v2
    v_lshlrev_b32 v119, 8, v119
    s_and_b32 s24, s3, 3
    s_lshl_b32 s24, s24, 6
    v_lshl_add_u32 v18, v3, 4, s24       ; (4*(cp&3)+g)*16
    v_add_u32 v119, v119, v18
    s_bfe_u32 s30, s3, 0x10002
    s_mul_i32 s25, s30, {PS}
    s_mul_i32 s29, s29, {64 * ROWS}
    s_lshl_b32 s30, s30, 9
    s_add_u32 s29, s29, s30
    s_add_u32 s29, s29, {QH}
    v_mul_u32_u24 v19, {ROWS}, v2
    v_add3_u32 v18, v18, v19, s29
    v_mov_b32 v118, 0                    ; max|P'|
    v_mov_b32 v19, 0                     ; max|Q'|
    s_waitcnt vmcnt(2)
    s_cmp_lg_u32 s3, 14
    s_cbranch_scc1 K1_NOW2S
    """)
    a(f"""
    s_lshl_b32 s68, s2, 8
    s_add_u32 s68, s68, {W2F_OFF}
    v_lshlrev_b32 v13, 4, v2
    s_mov_b64 exec, 0xffff
    v_lshl_or_b32 v{vAcc}, v{vW+4}, 16, v{vW}
    v_lshl_or_b32 v{vAcc+1}, v{vW+5}, 16, v{vW+1}
    v_lshl_or_b32 v{vAcc+2}, v{vW+6}, 16, v{vW+2}
    v_lshl_or_b32 v{vAcc+3}, v{vW+7}, 16, v{vW+3}
    buffer_store_dwordx4 v[{vAcc}:{vAcc+3}], v13, s[{sWS}:{sWS+3}], s68 offen sc1
    s_mov_b64 exec, -1
K1_NOW2S:
    """)
    a("v_mov_b32 v120, v16")
    a("v_mov_b32 v121, v17")
    a("s_barrier")
    diag(a, 7, "K1_DG7")
    stamp(a, 2)
    wreads, xreads, mfp = gemm_parts(a, vW, vX, vAcc, vb, vxa, lambda aa: "0", acc2=True)
    _, _, mf = gemm_parts(a, vW, vX, vAcc, vb, vxa, lambda aa: f"v[{vB1+4*aa}:{vB1+4*aa+3}]", acc2=True)

    def epp(i):
        lo = vAcc + 8 * (i & 1); hi = lo + 4
        for r in range(8):
            a(f"v_fma_f32 v{lo+r}, v{lo+r}, s34, 0")
        a(f"v_cvt_pk_bf16_f32 v116, v{lo}, v{lo+1}")
        a(f"v_cvt_pk_bf16_f32 v117, v{lo+2}, v{lo+3}")
        for r in range(0, 8, 2):
            a(f"v_max3_f32 v118, |v{lo+r}|, |v{lo+r+1}|, v118")
        for r in range(4):
            a(f"v_add_u32 v{hi+r}, 0x8000, v{hi+r}")
        for r in range(4):
            a(f"v_sub_u32_sdwa v{hi+r}, v{hi+r}, v{116+(r>>1)} clamp dst_sel:DWORD dst_unused:UNUSED_PAD src0_sel:DWORD src1_sel:WORD_{r&1}")
        for r in range(4):
            a(f"v_perm_b32 v{lo+r}, v{hi+r}, v{116+(r>>1)}, s{65+(r&1)}")
        a(f"v_cmp_gt_i32 vcc, s28, v2")
        a(f"s_mov_b64 exec, vcc")
        a(f"buffer_store_dwordx4 v[{lo}:{lo+3}], v119, s[{sWS}:{sWS+3}], s25 offen sc1")
        a(f"s_mov_b64 exec, -1")
        a("s_sub_u32 s28, s28, 16")
        a("s_add_u32 s25, s25, 4096")

    def epi(i, last=False):
        o = vAcc + 8 * (i & 1)
        for r in range(8):
            a(f"v_mul_f32 v{o+r}, s34, v{o+r}")
        for r in range(0, 8, 2):
            a(f"v_max3_f32 v19, |v{o+r}|, |v{o+r+1}|, v19")
        if last:
            a("s_mov_b32 exec_lo, 0x00030003")
            a("s_mov_b32 exec_hi, 0x00030003")
        a(f"ds_write_b128 v18, v[{o}:{o+3}] offset:{i * 16 * ROWS}")
        a(f"ds_write_b128 v18, v[{o+4}:{o+7}] offset:{i * 16 * ROWS + 256}")
        if last:
            a("s_mov_b64 exec, -1")

    def signal(val, L):
        a(f"""
    s_cmp_lg_u32 s3, 0
    s_cbranch_scc1 {L}
    s_and_b32 s24, s2, 7
    s_lshl_b32 s24, s24, 5
    v_mov_b32 v124, s24
    v_mov_b32 v125, {val}
    s_mov_b64 exec, 1
    global_atomic_add v124, v125, s[{sDBG}:{sDBG+1}] sc1
    s_mov_b64 exec, -1
{L}:
        """)

    def poll(L, wave, shift, t):
        a(f"""
    s_cmp_lg_u32 s3, {wave}
    s_cbranch_scc1 {L}_OK
    v_lshlrev_b32 v{t}, 5, v1
    s_mov_b64 exec, 0xff
    s_movk_i32 s24, {SPIN - 65536 if SPIN > 32767 else SPIN}
    s_and_b32 s24, s24, 0xffff
{L}_SPIN:
    global_load_dword v{t+1}, v{t}, s[{sDBG}:{sDBG+1}] sc1
    s_sub_u32 s24, s24, 1
    s_waitcnt vmcnt(0)
    v_bfe_u32 v{t+1}, v{t+1}, {shift}, 16
    v_cmp_gt_u32 vcc, 32, v{t+1}
    s_cbranch_vccz {L}_DONE
    s_sleep {OPT["sleep"]}
    s_cmp_lg_u32 s24, 0
    s_cbranch_scc1 {L}_SPIN
    v_mov_b32 v{t}, 0
    v_mov_b32 v{t+1}, 1
    ds_write_b32 v{t}, v{t+1} offset:{MISC + 20}
    s_waitcnt lgkmcnt(0)
{L}_DONE:
    s_mov_b64 exec, -1
{L}_OK:
        """)

    wreads(); xreads(0); xreads(1)
    for p in range(4):
        a(f"v_lshlrev_b32 v{vB1+2*p}, 16, v{112+p}")
        a(f"v_and_b32 v{vB1+2*p+1}, 0xffff0000, v{112+p}")
    a("s_waitcnt lgkmcnt(8)")
    a("s_barrier")
    dma_w_issue(a, 120, sW1, 27, 24, 128 * 512, QH)
    a("s_waitcnt lgkmcnt(4)")
    mfp(0)
    xreads(2)
    a("s_waitcnt vmcnt(4)")
    a("s_barrier")
    signal(1, "K1_SIGA")
    diag(a, 1, "K1_DG1")
    stamp(a, 3)
    a("s_waitcnt lgkmcnt(4)")
    mfp(1)
    xreads(3)
    epp(0)
    a("s_waitcnt lgkmcnt(4)")
    mfp(2)
    epp(1)
    a("""
    s_cmp_ge_u32 s3, 8
    s_cbranch_scc1 K1_RH1
    s_waitcnt lgkmcnt(0)
    """)
    mfp(3)
    epp(2)
    epp(3)
    a("""
    s_waitcnt vmcnt(5)
    s_cmp_eq_u32 s3, 0
    s_cbranch_scc1 K1_GD
    s_waitcnt vmcnt(4)
    s_branch K1_GD
K1_RH1:
    """)
    epp(2)
    a("s_waitcnt vmcnt(3)")
    a("K1_GD:")
    row_max(a, 118)
    a(f"""
    v_mov_b32 v116, 0
    s_mov_b32 exec_lo, 0x80008000
    s_mov_b32 exec_hi, 0x80008000
    ds_max_u32 v116, v118 offset:{MISC}
    s_mov_b64 exec, -1
    s_waitcnt lgkmcnt(0)
    """)
    stamp(a, 4)
    a(f"""
    s_barrier
    s_cmp_lg_u32 s3, 1
    s_cbranch_scc1 K1_NOPM
    ds_read_b32 v118, v116 offset:{MISC}
    s_lshl_b32 s24, s2, 2
    s_add_u32 s24, s24, {PMAX_OFF}
    s_mov_b64 exec, 1
    s_waitcnt lgkmcnt(0)
    buffer_store_dword v118, v116, s[{sWS}:{sWS+3}], s24 offen sc1
    s_mov_b64 exec, -1
K1_NOPM:
    """)
    wreads(); xreads(0); xreads(1)
    poll("K2_PA", 15, 0, 110)
    stamp(a, 5)
    a(f"""
    s_lshl_b32 s24, s2, 16
    s_add_u32 s{sRECB}, s24, {CELL_OFF}
    s_waitcnt vmcnt(0) lgkmcnt(8)
    s_barrier
    buffer_load_dwordx4 v[{vRec}:{vRec+3}], v126, s[{sWS}:{sWS+3}], s{sRECB} offen sc1
    buffer_load_dwordx4 v[{vRec+4}:{vRec+7}], v126, s[{sWS}:{sWS+3}], s{sRECB} offen offset:64 sc1
    """)
    signal(0x10000, "K1_SIGB")
    diag(a, 6, "K1_DG6")
    stamp(a, 6)
    a("s_waitcnt lgkmcnt(4)")
    mf(0)
    xreads(2)
    a("s_waitcnt lgkmcnt(4)")
    mf(1)
    a("s_cmp_ge_u32 s3, 8")
    a("s_cbranch_scc1 K2_NOX3")
    xreads(3)
    a("K2_NOX3:")
    epi(0)
    a("s_waitcnt lgkmcnt(2)")
    mf(2)
    epi(1)
    a("s_cmp_ge_u32 s3, 8")
    a(f"s_cbranch_scc1 K2_E2")
    mf(3)
    epi(2)
    epi(3)
    a(f"s_branch K2_GD")
    a(f"K2_E2:")
    epi(2, last=True)
    a(f"K2_GD:")
    row_max(a, 19)
    a(f"""
    v_mov_b32 v4, 0
    s_mov_b32 exec_lo, 0x80008000
    s_mov_b32 exec_hi, 0x80008000
    ds_max_u32 v4, v19 offset:{MISC + 4}
    s_mov_b64 exec, -1
    s_mov_b32 s{sBATCH}, 0
    s_waitcnt vmcnt(1)
    s_cmp_eq_u32 s3, 0
    s_cbranch_scc1 K2_CELLS
    s_waitcnt vmcnt(0)
K2_CELLS:
    v_bfe_u32 v124, v{vRec+1}, 9, 5
    s_nop 1
    v_mov_b32_dpp v124, v124 quad_perm:[0,0,0,0] row_mask:0xf bank_mask:0xf
    v_sub_u32 v125, v124, v127
    """)
    for k in range(6):
        a(f"v_cmp_lt_i32 s[{sM+2*k}:{sM+2*k+1}], {8*(k>>1)+(k&1)}, v125")
    a(f"""
    s_mov_b64 exec, s[{sM+8}:{sM+9}]
    s_cbranch_execz K2_NOM2
    buffer_load_dwordx4 v[{vRec+8}:{vRec+11}], v126, s[{sWS}:{sWS+3}], s{sRECB} offen offset:128 sc1
    v_cmp_lt_u32 vcc, 24, v124
    s_mov_b64 exec, vcc
    ds_max_u32 v4, v124 offset:{MISC + 12}
    s_waitcnt vmcnt(0)
K2_NOM2:
    s_mov_b64 exec, -1
    """)

    def rec_loads():
        for k in range(6):
            a(f"v_cmp_lt_i32 s[{sM+2*k}:{sM+2*k+1}], {8*(k>>1)+(k&1)}, v127")
        for m in range(3):
            a(f"s_mov_b64 exec, s[{sM+4*m}:{sM+4*m+1}]")
            a(f"buffer_load_dwordx4 v[{vRec+4*m}:{vRec+4*m+3}], v126, s[{sWS}:{sWS+3}], s{sRECB} offen offset:{64*m} sc1")
        a("s_mov_b64 exec, -1")

    def hist(L):
        a("s_mov_b32 s35, 0xffff0000")
        for k in range(6):
            m, o = k >> 1, k & 1
            r0 = vRec + 4 * m + 2 * o
            a(f"s_mov_b64 exec, s[{sM+2*k}:{sM+2*k+1}]")
            if k in (2, 4):
                a(f"s_cbranch_execz {L}_HISTDONE")
            a(f"v_and_b32 v{vPos+k}, 0x1fc, v{r0+1}")
            a(f"v_and_or_b32 v8, v{r0}, s35, 1")
            a(f"ds_add_rtn_u32 v{vRank+k}, v{vPos+k}, v8 offset:{CNT}")
            a(f"v_and_b32 v{r0}, 0xffff, v{r0}")
            a(f"v_and_b32 v{r0+1}, s35, v{r0+1}")
        a(f"{L}_HISTDONE:")
        a("s_mov_b64 exec, -1")

    def scanrank(L, wscan, wrank, degt=True):
        a(f"""
    s_sub_u32 s24, s3, {wscan}
    s_cmp_ge_u32 s24, 2
    s_cbranch_scc1 {L}_SRDONE
    v_lshlrev_b32 v8, 2, v1
    ds_read_b32 v78, v8 offset:{CNT}
    ds_read_b32 v79, v8 offset:{CNT + 256}
    v_mov_b32 v9, 1
    s_waitcnt lgkmcnt(0)
    v_and_b32 v68, 0xffff, v78
    v_and_b32 v69, 0xffff, v79
    s_cmp_eq_u32 s3, {wscan}
    s_cbranch_scc1 {L}_SCAN
    v_mov_b32 v77, 0
    ds_write_b32 v8, v77 offset:{DH}
    v_min_u32 v73, 63, v68
    v_min_u32 v74, 63, v69
    v_sub_u32 v73, 63, v73
    v_sub_u32 v74, 63, v74
    v_lshlrev_b32 v73, 2, v73
    v_lshlrev_b32 v74, 2, v74
    ds_add_rtn_u32 v75, v73, v9 offset:{DH}
    s_mov_b32 exec_hi, 0xf               ; nodes 64..99
    ds_add_rtn_u32 v76, v74, v9 offset:{DH}
    s_mov_b64 exec, -1
    ds_read_b32 v77, v8 offset:{DH}
    s_waitcnt lgkmcnt(0)
{L}_SCAN:
    v_mov_b32 v70, v68
    v_mov_b32 v71, v69
    v_mov_b32 v72, v77
        """)
        wave_scan(a, [70, 71, 72])
        a(f"""
    v_mov_b32 v9, {LIST}
    v_readlane_b32 s24, v70, 63
    v_sub_u32 v70, v70, v68
    v_sub_u32 v71, v71, v69
    v_add_u32 v71, s24, v71
    v_lshl_add_u32 v80, v70, 3, v9
    v_lshl_add_u32 v4, v71, 3, v9
    s_cmp_eq_u32 s3, {wscan}
    s_cbranch_scc0 {L}_RANK
    ds_write_b32 v8, v80 offset:{POS}
    ds_write_b32 v8, v4 offset:{POS + 256}
    {f"ds_add_u32 v8, v68 offset:{DEGT}" if degt else ""}
    {f"ds_add_u32 v8, v69 offset:{DEGT + 256}" if degt else ""}
    s_branch {L}_SRDONE
{L}_RANK:
    v_sub_u32 v72, v72, v77
    ds_bpermute_b32 v73, v73, v72
    ds_bpermute_b32 v74, v74, v72
    v_mov_b32 v81, v68
    v_mul_u32_u24 v82, {ROWS}, v1
    v_add_u32 v82, {QH}, v82
    v_lshrrev_b32 v83, 16, v78
    v_mov_b32 v5, v69
    v_add_u32 v6, {64 * ROWS}, v82
    v_lshrrev_b32 v7, 16, v79
    s_waitcnt lgkmcnt(0)
    v_add_lshl_u32 v73, v73, v75, 4
    v_add_lshl_u32 v74, v74, v76, 4
    ds_write_b128 v73, v[80:83] offset:{INFO}
    s_mov_b32 exec_hi, 0xf
    ds_write_b128 v74, v[4:7] offset:{INFO}
    s_mov_b64 exec, -1
{L}_SRDONE:
        """)

    def fastrank(L, wrank):
        a(f"""
    s_cmp_lg_u32 s3, {wrank}
    s_cbranch_scc1 {L}_FRDONE
    s_setprio 3
    v_lshlrev_b32 v8, 2, v1
    ds_read_b32 v78, v8 offset:{CNT}
    ds_read_b32 v79, v8 offset:{CNT + 256}
    v_mov_b32 v9, 1
    v_mul_u32_u24 v80, {LROW}, v1
    v_add_u32 v80, {LIST}, v80
    v_add_u32 v4, {64 * LROW}, v80
    v_mul_u32_u24 v82, {ROWS}, v1
    v_add_u32 v82, {QH}, v82
    v_add_u32 v6, {64 * ROWS}, v82
    s_waitcnt lgkmcnt(0)
    v_and_b32 v81, 0xffff, v78
    v_and_b32 v5, 0xffff, v79
    v_min_u32 v73, 63, v81
    v_min_u32 v74, 63, v5
    v_sub_u32 v73, 63, v73
    v_sub_u32 v74, 63, v74
    v_lshlrev_b32 v73, 2, v73
    v_lshlrev_b32 v74, 2, v74
    ds_add_rtn_u32 v75, v73, v9 offset:{DH}
    s_mov_b32 exec_hi, 0xf               ; nodes 64..99
    ds_add_rtn_u32 v76, v74, v9 offset:{DH}
    s_mov_b64 exec, -1
    ds_read_b32 v77, v8 offset:{DH}
    ds_write_b32 v8, v81 offset:{DEGT}
    ds_write_b32 v8, v5 offset:{DEGT + 256}
    v_max_u32 v72, v81, v5
    v_cmp_lt_u32 vcc, {LCAP}, v72
    v_mov_b32 v71, 0
    s_mov_b64 exec, vcc
    ds_max_u32 v71, v72 offset:{MISC + 8}
    s_mov_b64 exec, -1
    v_lshrrev_b32 v83, 16, v78
    v_lshrrev_b32 v7, 16, v79
    s_waitcnt lgkmcnt(3)
    v_mov_b32 v72, v77
        """)
        wave_scan(a, [72])
        a(f"""
    v_sub_u32 v72, v72, v77
    ds_bpermute_b32 v73, v73, v72
    ds_bpermute_b32 v74, v74, v72
    s_waitcnt lgkmcnt(0)
    v_add_lshl_u32 v73, v73, v75, 4
    v_add_lshl_u32 v74, v74, v76, 4
    ds_write_b128 v73, v[80:83] offset:{INFO}
    s_mov_b32 exec_hi, 0xf
    ds_write_b128 v74, v[4:7] offset:{INFO}
    s_mov_b64 exec, -1
    s_setprio 0
{L}_FRDONE:
        """)

    def fastscatter(L):
        a(f"s_movk_i32 s24, {LROW // 4}")
        for k in range(6):
            m, o = k >> 1, k & 1
            r0 = vRec + 4 * m + 2 * o
            a(f"s_mov_b64 exec, s[{sM+2*k}:{sM+2*k+1}]")
            if k in (2, 4):
                a(f"s_cbranch_execz {L}_FSDONE")
            a(f"v_min_u16 v8, {LCAP - 1}, v{vRank+k}")
            a(f"v_mul_u32_u24 v9, s24, v{vPos+k}")
            a(f"v_mad_u32_u16 v9, v8, 8, v9")
            a(f"ds_write_b64 v9, v[{r0}:{r0+1}] offset:{LIST}")
        a(f"{L}_FSDONE:")
        a("s_mov_b64 exec, -1")

    def posread(L):
        for k in range(6):
            a(f"s_mov_b64 exec, s[{sM+2*k}:{sM+2*k+1}]")
            if k in (2, 4):
                a(f"s_cbranch_execz {L}_POSDONE")
            a(f"ds_read_b32 v{vPos+k}, v{vPos+k} offset:{POS}")
        a(f"{L}_POSDONE:")
        a("s_mov_b64 exec, -1")

    def scatter(L):
        for k in range(6):
            m, o = k >> 1, k & 1
            r0 = vRec + 4 * m + 2 * o
            a(f"s_mov_b64 exec, s[{sM+2*k}:{sM+2*k+1}]")
            if k in (2, 4):
                a(f"s_cbranch_execz {L}_SCATDONE")
            a(f"v_mad_u32_u16 v{vPos+k}, v{vRank+k}, 8, v{vPos+k}")
            a(f"ds_write_b64 v{vPos+k}, v[{r0}:{r0+1}]")
        a(f"{L}_SCATDONE:")
        a("s_mov_b64 exec, -1")

    hist("K2A")
    a("s_waitcnt lgkmcnt(0)")
    a("s_barrier")
    stamp(a, 10)
    assert U in (2, 4, 6, 8)
    U0 = min(U, 4)
    PB = [100, 104, 108, 112, 80, 84, 88, 92][:U]
    PR = [116, 118, 120, 122, 4, 6, 8, 10][:U]
    vE = 124
    vI = 52
    vAddr, vDeg, vH = vI, vI + 1, vI + 2
    vL16, vK1, vG16, vWT, vQI, vTmp = 56, 57, 58, 59, 60, 61
    vQ, vW, vT, vX, vN, vD = 20, 28, 36, 44, 64, 72
    sQ, sS, sD0, sD3, sSafe, sSl, sSEL = 27, 28, 29, 30, 31, 32, 33

    def main_consts(n=U):
        a(f"""
    v_lshlrev_b32 v{vL16}, 4, v2
    v_mov_b32 v{vG16}, {INFO}
    v_lshl_add_u32 v{vG16}, v3, 4, v{vG16}
    v_add_u32 v{vWT}, {WT}, v{vL16}
    s_mov_b32 s{sSEL}, 0x00003f80
    s_cmp_lt_u32 s3, {OPT['nw']}
    s_cselect_b32 s{sQ}, s3, 50
        """)
        for j in range(n):
            a(f"v_mov_b32 v{PR[j]+1}, v{vL16}")

    def item_loads(n=U):
        for j in range(n):
            a(f"ds_read_b32 v{PR[j]}, v{vAddr} offset:{8*j}")
        a(f"""
    ds_read_b32 v{vE}, v{vAddr} offset:4
    v_add3_u32 v{vH}, v{vH}, s25, v{vL16}
    v_readlane_b32 s{sD0}, v{vDeg}, 0
    v_readlane_b32 s{sD3}, v{vDeg}, 48
    v_readlane_b32 s35, v{vDeg}, 16
    v_readlane_b32 s71, v{vDeg}, 32
        """)

    def item_issue(extra, j0=0, j1=U):
        for j in range(j0, j1):
            a(f"s_waitcnt lgkmcnt({j1 - 1 - j + extra})")
            a(f"buffer_load_dwordx4 v[{PB[j]}:{PB[j]+3}], v[{PR[j]}:{PR[j]+1}], s[{sP}:{sP+3}], s{sSl} idxen offen {OPT['pld']}")
        if j1 == U:
            a(f"ds_read_b32 v{PR[0]}, v{vAddr} offset:{8*U}")

    fastrank("K2A", 9)
    fastscatter("K2A")
    poll("K2_PB", 15, 16, 84)
    srd(a, sP, 22, 23, N, stride=256)
    a(f"""
    v_mov_b32 v4, 0
    s_mov_b32 s{sNBATCH}, 1
    v_lshlrev_b32 v5, 4, v1
    s_mov_b32 s24, {PMAX_OFF}
    s_waitcnt lgkmcnt(0)
    s_barrier
    """)
    stamp(a, 7)
    cstamp(a, 0)
    diag(a, 2, "K2_DG1")
    diag(a, 4, "K2_DG2", cyc=True)
    a(f"""
    buffer_load_dwordx4 v[{vT}:{vT+3}], v5, s[{sWS}:{sWS+3}], s24 offen sc1
    ds_read_b128 v[8:11], v4 offset:{MISC}
    ds_read_b32 v12, v4 offset:{MISC + 20}
    s_lshl_b32 s24, s3, 6
    v_lshl_add_u32 v{vI}, v3, 4, s24
    ds_read_b128 v[{vI}:{vI+3}], v{vI} offset:{INFO}
    s_mov_b32 s25, 0
    s_mov_b32 s{sSl}, 0
    s_waitcnt lgkmcnt(1)
    v_or_b32 v6, v10, v11
    v_readfirstlane_b32 s28, v12
    v_readfirstlane_b32 s24, v6
    s_cmp_lg_u32 s28, 0
    s_cbranch_scc1 K2_END
    s_cmp_lg_u32 s24, 0
    s_cbranch_scc1 K2_SLOW0
    """)

    def pmax_reduce():
        a(f"v_max3_f32 v{vT}, v{vT}, v{vT+1}, v{vT+2}")
        a(f"v_max_f32 v{vT}, v{vT}, v{vT+3}")
        for st in ("row_shr:1 row_mask:0xf", "row_shr:2 row_mask:0xf", "row_shr:4 row_mask:0xf", "row_shr:8 row_mask:0xf",
                   "row_bcast:15 row_mask:0xa", "row_bcast:31 row_mask:0xc"):
            a("s_nop 1")
            a(f"v_max_f32_dpp v{vT}, v{vT}, v{vT} {st} bank_mask:0xf")
        a("s_nop 0")
        a(f"v_readlane_b32 s{sPM}, v{vT}, 63")

    main_consts()
    a(f"""
    s_waitcnt lgkmcnt(0)
    v_mov_b32 v{vK1}, v9
    ds_read_b128 v[{vW}:{vW+3}], v{vWT}
    ds_read_b128 v[{vW+4}:{vW+7}], v{vWT} offset:256
    """)
    item_loads()
    a(f"""
    ds_read_b128 v[{vQ}:{vQ+3}], v{vH}
    ds_read_b128 v[{vQ+4}:{vQ+7}], v{vH} offset:256
    """)
    item_issue(3)
    a(f"s_waitcnt vmcnt({U})")
    pmax_reduce()
    a(f"""
    s_nop 1
    v_add_f32 v{vK1}, s{sPM}, v{vK1}
    v_fma_f32 v{vK1}, v{vK1}, 4.0, 4.0
    {"s_cmp_ge_u32 s3, " + str(OPT['nw']) if OPT['nw'] < 16 else ""}
    {"s_cbranch_scc1 K2_DONE" if OPT['nw'] < 16 else ""}
    s_branch K2_GO
K2_SLOW0:
    s_waitcnt vmcnt(0)
    """)
    pmax_reduce()
    a(f"""
    v_lshrrev_b32 v6, 2, v0              ; chunk
    v_lshlrev_b32 v7, 10, v6
    s_lshl_b32 s24, s2, 2
    s_add_u32 s24, s24, {TAB_OFF}
    v_mul_u32_u24 v126, {CHS}, v6
    v_cmp_lt_u32 vcc, 24, v124
    s_mov_b32 s{sRECB}, {REC_OFF}
    s_mov_b64 exec, vcc
    buffer_load_dword v6, v7, s[{sWS}:{sWS+3}], s24 offen sc1
    s_waitcnt vmcnt(0)
    v_lshrrev_b32 v124, 16, v6
    v_and_b32 v6, 0xffff, v6
    v_add_u32 v6, v6, v127
    v_lshl_add_u32 v126, v6, 3, v126
    ds_max_u32 v4, v124 offset:{MISC + 12}
    s_mov_b64 exec, -1
    v_sub_u32 v127, v124, v127
    """)
    scanrank("K2S", 8, 9, degt=False)
    a("s_waitcnt lgkmcnt(0)")
    a("s_barrier")
    posread("K2S")
    a("s_waitcnt lgkmcnt(0)")
    scatter("K2S")
    a("""
    s_branch K2_MAIN
K2_BATCH:
    s_waitcnt vmcnt(0)
    """)
    hist("K2B")
    a("s_waitcnt lgkmcnt(0)")
    a("s_barrier")
    scanrank("K2B", 8, 9)
    a("s_waitcnt lgkmcnt(0)")
    a("s_barrier")
    posread("K2B")
    a("s_waitcnt lgkmcnt(0)")
    scatter("K2B")
    a(f"""
K2_MAIN:
    v_mov_b32 v4, 0
    s_waitcnt lgkmcnt(0)
    s_barrier
    ds_read_b128 v[{vI}:{vI+3}], v4 offset:{MISC}
    """)
    main_consts()
    a(f"""
    s_waitcnt lgkmcnt(0)
    v_readfirstlane_b32 s24, v{vI+3}
    v_add_f32 v{vK1}, s{sPM}, v{vI+1}
    v_fma_f32 v{vK1}, v{vK1}, 4.0, 4.0
    s_add_u32 s24, s24, 23
    s_mul_i32 s24, s24, 2731
    s_lshr_b32 s{sNBATCH}, s24, 16
    s_cmp_le_u32 s{sNBATCH}, 1
    s_cbranch_scc1 K2_ITEM
    v_mov_b32 v{vK1}, 0x7f800000         ; several batches: every item takes the plain path
K2_ITEM:
    s_cmp_ge_u32 s{sQ}, 50
    s_cbranch_scc1 K2_DONE
    s_cmp_ge_u32 s{sQ}, 25
    s_cselect_b32 s24, 25, 0
    s_cselect_b32 s25, 512, 0
    s_cselect_b32 s{sSl}, {PS}, 0
    s_sub_u32 s24, s{sQ}, s24
    s_lshl_b32 s24, s24, 6
    v_add_u32 v{vTmp}, s24, v{vG16}
    ds_read_b128 v[{vI}:{vI+3}], v{vTmp}
    v_add_u32 v{vTmp}, s25, v{vWT}
    ds_read_b128 v[{vW}:{vW+3}], v{vTmp}
    ds_read_b128 v[{vW+4}:{vW+7}], v{vTmp} offset:256
    s_mov_b32 s{sP+2}, {N}
    s_waitcnt lgkmcnt(2)
    """)
    item_loads()
    a(f"""
    ds_read_b128 v[{vQ}:{vQ+3}], v{vH}
    ds_read_b128 v[{vQ+4}:{vQ+7}], v{vH} offset:256
    """)
    item_issue(3)
    a(f"""
K2_GO:
    v_cvt_f32_u32 v{vTmp}, v{vDeg}
    v_cvt_f32_u32 v{vI+3}, v{vI+3}
    v_fma_f32 v{vTmp}, v{vTmp}, v{vK1}, v{vI+3}
    s_max_u32 s24, s{sD0}, s{sD3}
    s_min_u32 s{sD3}, s{sD0}, s{sD3}
    v_cmp_nge_f32 vcc, {BOUND:#x}, v{vTmp}
    s_max_u32 s{sD0}, s35, s71
    s_min_u32 s35, s35, s71
    s_max_u32 s{sD0}, s{sD0}, s24
    s_min_u32 s{sD3}, s{sD3}, s35
    s_min_u32 s{sD0}, s{sD0}, {LISTCAP}
    s_sub_u32 s{sSafe}, s{sD0}, {U}
    s_cmp_gt_i32 s{sSafe}, 0
    s_cselect_b32 s{sP+2}, {N}, 0
    s_mov_b32 s{sS}, 0
    {"s_setprio 0" if OPT["prio"] else ""}
    s_cbranch_vccnz K2_P_START
    s_cmp_lg_u32 s{sD3}, 0
    s_cbranch_scc1 K2_F_FIRST
    """)
    for r in range(8):
        a(f"v_mov_b32 v{vN+r}, 0")
        a(f"v_mov_b32 v{vD+r}, 1.0")
    a(f"""
    s_cmp_eq_u32 s{sD0}, 0
    s_cbranch_scc1 K2_F_FLUSH
    v_cmpx_lt_u32 vcc, 0, v{vDeg}
    """)

    def step(j, mode):
        P = PB[j]
        T = vN if mode == "first" else vT
        eh = j & 1
        jn = (j + 1) % U
        osel = "op_sel_hi:[1,0,1]" if eh == 0 else "op_sel:[0,1,0] op_sel_hi:[1,1,1]"
        a("s_waitcnt lgkmcnt(0)")
        for r in range(0, 8, 2):
            a(f"v_pk_fma_f32 v[{T+r}:{T+r+1}], v[{vW+r}:{vW+r+1}], v[{vE}:{vE+1}], v[{vQ+r}:{vQ+r+1}] {osel}")
        a(f"ds_read_b32 v{vE + (eh ^ 1)}, v{vAddr} offset:{8*(j+1)+4}")
        a(f"s_waitcnt vmcnt({U-1})")
        if mode != "plain":
            for p in range(4):
                a(f"v_dot2_f32_bf16 v{T+p}, v{P+p}, s{sSEL}, v{T+p}")
            a(f"v_pk_add_f32 v[{T+4}:{T+5}], v[{P}:{P+1}], v[{T+4}:{T+5}]")
            a(f"v_pk_add_f32 v[{T+6}:{T+7}], v[{P+2}:{P+3}], v[{T+6}:{T+7}]")
        else:
            for p in range(4):
                a(f"v_lshlrev_b32 v{vX+p}, 16, v{P+p}")
            a(f"v_pk_add_f32 v[{T+4}:{T+5}], v[{P}:{P+1}], v[{T+4}:{T+5}]")
            a(f"v_pk_add_f32 v[{T+6}:{T+7}], v[{P+2}:{P+3}], v[{T+6}:{T+7}]")
            a(f"v_pk_add_f32 v[{T}:{T+1}], v[{vX}:{vX+1}], v[{T}:{T+1}]")
            a(f"v_pk_add_f32 v[{T+2}:{T+3}], v[{vX+2}:{vX+3}], v[{T+2}:{T+3}]")
        a(f"buffer_load_dwordx4 v[{P}:{P+3}], v[{PR[j]}:{PR[j]+1}], s[{sP}:{sP+3}], s{sSl} idxen offen {OPT['pld']}")
        a(f"ds_read_b32 v{PR[jn]}, v{vAddr} offset:{8*(j+1+U)}")
        a(f"s_add_u32 s{sS}, s{sS}, 1")
        a(f"s_cmp_lt_i32 s{sS}, s{sSafe}")
        a(f"s_cselect_b32 s{sP+2}, {N}, 0")
        a(f"s_cmp_ge_u32 s{sS}, s{sD3}")
        for r in (4, 5, 6, 7, 0, 1, 2, 3):
            a(f"v_exp_f32 v{vX+r}, v{T+r}")
        order = (4, 6, 0, 2)
        if mode == "first":
            for r in order:
                a(f"v_pk_add_f32 v[{vD+r}:{vD+r+1}], v[{vX+r}:{vX+r+1}], 1.0 op_sel_hi:[1,0]")
        elif mode == "fast":
            for r in order:
                a(f"v_pk_fma_f32 v[{vN+r}:{vN+r+1}], v[{vN+r}:{vN+r+1}], v[{vX+r}:{vX+r+1}], v[{vN+r}:{vN+r+1}]")
            for r in order:
                a(f"v_pk_fma_f32 v[{vN+r}:{vN+r+1}], v[{T+r}:{T+r+1}], v[{vD+r}:{vD+r+1}], v[{vN+r}:{vN+r+1}]")
            for r in order:
                a(f"v_pk_fma_f32 v[{vD+r}:{vD+r+1}], v[{vD+r}:{vD+r+1}], v[{vX+r}:{vX+r+1}], v[{vD+r}:{vD+r+1}]")
        else:
            for r in order:
                a(f"v_pk_add_f32 v[{vX+r}:{vX+r+1}], v[{vX+r}:{vX+r+1}], 1.0 op_sel_hi:[1,0]")
            for r in (4, 5, 6, 7, 0, 1, 2, 3):
                a(f"v_rcp_f32 v{vX+r}, v{vX+r}")
            for r in order:
                a(f"v_pk_fma_f32 v[{vN+r}:{vN+r+1}], v[{T+r}:{T+r+1}], v[{vX+r}:{vX+r+1}], v[{vN+r}:{vN+r+1}]")
        if j == U - 1:
            a(f"v_add_u32 v{vAddr}, {8*U}, v{vAddr}")
        if j == U0 - 1 and OPT["prio"]:
            a("s_setprio 1")

    def loop(pfx, mode):
        tails = []
        if mode == "fast":
            a(f"{pfx}_FIRST:")
            step(0, "first")
            a(f"s_cbranch_scc1 {pfx}_T0")
            seq = list(range(1, U)) + [0]
        else:
            seq = list(range(U))
        for j in seq:
            a(f"{pfx}_S{j}:")
            step(j, mode)
            if j == seq[-1]:
                a(f"s_cbranch_scc0 {pfx}_S{seq[0]}")
            else:
                a(f"s_cbranch_scc1 {pfx}_T{j}")
        for j in [seq[-1]] + seq[:-1]:
            a(f"""
{pfx}_T{j}:
    {"s_setprio 2" if OPT["prio"] else ""}
    s_cmp_ge_u32 s{sS}, s{sD0}
    s_cbranch_scc1 {pfx}_FLUSH
    v_cmpx_lt_u32 vcc, s{sS}, v{vDeg}
    s_branch {pfx}_S{(j+1) % U}
            """)

    loop("K2_F", "fast")
    a(f"""
K2_F_FLUSH:
    s_mov_b64 exec, 1
    v_mov_b32 v{vQI}, 0
    v_mov_b32 v{vTmp}, 1
    ds_add_rtn_u32 v{vQI}, v{vQI}, v{vTmp} offset:{MISC + 16}
    s_mov_b64 exec, -1
    """)
    for r in range(8):
        a(f"v_rcp_f32 v{vX+r}, v{vD+r}")
    for r in range(0, 8, 2):
        a(f"v_pk_mul_f32 v[{vN+r}:{vN+r+1}], v[{vN+r}:{vN+r+1}], v[{vX+r}:{vX+r+1}]")
    a("K2_WRH:")
    for r in range(4):
        a(f"v_cvt_pk_bf16_f32 v{vX+r}, v{vN+2*r}, v{vN+2*r+1}")
    a(f"""
    ds_write_b128 v{vH}, v[{vX}:{vX+3}]
K2_NEXT:
    s_waitcnt lgkmcnt(0)
    v_readfirstlane_b32 s{sQ}, v{vQI}
    s_branch K2_ITEM
K2_P_START:
    """)
    for r in range(8):
        a(f"v_mov_b32 v{vN+r}, 0")
    a(f"""
    s_cmp_eq_u32 s{sD0}, 0
    s_cbranch_scc1 K2_P_FLUSH
    v_cmpx_lt_u32 vcc, 0, v{vDeg}
    """)
    loop("K2_P", "plain")
    a(f"""
K2_P_FLUSH:
    s_mov_b64 exec, 1
    v_mov_b32 v{vQI}, 0
    v_mov_b32 v{vTmp}, 1
    ds_add_rtn_u32 v{vQI}, v{vQI}, v{vTmp} offset:{MISC + 16}
    s_mov_b64 exec, -1
    s_cmp_le_u32 s{sNBATCH}, 1
    s_cbranch_scc1 K2_WRH
    """)
    a(f"""
    s_mul_i32 s24, s2, {SCR_STRIDE}
    s_add_u32 s24, s24, {SCR_OFF - QH}
    s_mov_b32 s{sSCR}, s22
    s_mov_b32 s{sSCR+1}, s23
    s_mov_b32 s{sSCR+2}, {WS_USED}
    s_mov_b32 s{sSCR+3}, 0x00020000
    v_add_u32 v{vH}, v{vH}, v{vL16}
    s_cmp_eq_u32 s{sBATCH}, 0
    s_cbranch_scc1 K2_P_ST
    buffer_load_dwordx4 v[{vX}:{vX+3}], v{vH}, s[{sSCR}:{sSCR+3}], s24 offen
    buffer_load_dwordx4 v[{vX+4}:{vX+7}], v{vH}, s[{sSCR}:{sSCR+3}], s24 offen offset:16
    s_waitcnt vmcnt(0)
    """)
    for r in range(0, 8, 2):
        a(f"v_pk_add_f32 v[{vN+r}:{vN+r+1}], v[{vN+r}:{vN+r+1}], v[{vX+r}:{vX+r+1}]")
    a(f"""
K2_P_ST:
    buffer_store_dwordx4 v[{vN}:{vN+3}], v{vH}, s[{sSCR}:{sSCR+3}], s24 offen
    buffer_store_dwordx4 v[{vN+4}:{vN+7}], v{vH}, s[{sSCR}:{sSCR+3}], s24 offen offset:16
    s_waitcnt vmcnt(0)
    s_branch K2_NEXT
    """)
    vF = 32
    a(f"""
K2_DONE:
    s_add_u32 s{sBATCH}, s{sBATCH}, 1
    s_cmp_ge_u32 s{sBATCH}, s{sNBATCH}
    s_cbranch_scc1 K2_FINAL
    s_waitcnt vmcnt(0)
    s_add_u32 s{sRECB}, s{sRECB}, 192
    v_subrev_u32 v127, 24, v127
    """)
    rec_loads()
    a(f"""
    s_barrier
    v_mov_b32 v4, 0
    v_lshlrev_b32 v5, 2, v0
    v_cmp_gt_u32 vcc, {(DEGT - CNT) // 4}, v0
    s_mov_b64 exec, vcc
    ds_write_b32 v5, v4 offset:{CNT}
    s_mov_b64 exec, 1
    v_mov_b32 v5, {MISC}
    v_mov_b32 v6, {OPT['nw']}
    ds_write_b32 v5, v6 offset:16
    s_mov_b64 exec, -1
    s_waitcnt lgkmcnt(0)
    s_barrier
    s_branch K2_BATCH
K2_FINAL:
    """)
    stamp(a, 8)
    cstamp(a, 1)
    a(f"""
    s_waitcnt vmcnt(0)
    s_and_b32 s24, s3, 3                 ; cp
    s_lshl_b32 s25, s24, 14
    s_add_u32 s25, s25, {W2F_OFF}
    v_lshlrev_b32 v4, 4, v1
    """)
    for f in range(16):
        if f and f % 4 == 0:
            a("s_add_u32 s25, s25, 4096")
        a(f"buffer_load_dwordx4 v[{vF+4*f}:{vF+4*f+3}], v4, s[{sWS}:{sWS+3}], s25 offen offset:{1024*(f%4)} sc1")
    srd(a, sB2, 18, 19, 256)
    srd(a, sOUT, 20, 21, N * 256)
    a(f"""
    s_lshl_b32 s24, s24, 6
    v_lshlrev_b32 v5, 4, v3              ; g*16
    buffer_load_dwordx4 v[8:11], v5, s[{sB2}:{sB2+3}], s24 offen
    s_lshr_b32 s27, s3, 2
    s_lshl_b32 s27, s27, 4               ; first row tile * 16
    v_add_u32 v6, s27, v2
    v_mul_u32_u24 v7, {ROWS}, v6
    v_add_u32 v7, v7, v5
    v_add_u32 v7, {QH}, v7
    v_lshlrev_b32 v20, 2, v6
    v_add_u32 v21, s{sROW0}, v6
    v_lshl_add_u32 v21, v21, 8, v5
    s_mov_b32 s34, {NLN2:#x}
    s_barrier
    s_cmp_le_u32 s{sNBATCH}, 1
    s_cbranch_scc1 K2_GEMM2
    s_mul_i32 s28, s2, {SCR_STRIDE}
    s_add_u32 s28, s28, {SCR_OFF}
    s_mov_b32 s{sSCR}, s22
    s_mov_b32 s{sSCR+1}, s23
    s_mov_b32 s{sSCR+2}, {WS_USED}
    s_mov_b32 s{sSCR+3}, 0x00020000
    v_and_b32 v22, 1, v3
    v_lshlrev_b32 v22, 9, v22
    v_lshl_add_u32 v22, v2, 4, v22       ; s*512 + l*16
    v_lshl_add_u32 v23, v2, 4, v22       ; s*512 + l*32
    s_mov_b32 s29, s3
K2_CONV:
    s_mul_i32 s30, s29, {ROWS}
    s_add_u32 s31, s30, s28
    buffer_load_dwordx4 v[100:103], v23, s[{sSCR}:{sSCR+3}], s31 offen
    buffer_load_dwordx4 v[104:107], v23, s[{sSCR}:{sSCR+3}], s31 offen offset:16
    s_add_u32 s30, s30, {QH}
    v_add_u32 v24, s30, v22
    s_waitcnt vmcnt(0)
    v_cvt_pk_bf16_f32 v100, v100, v101
    v_cvt_pk_bf16_f32 v101, v102, v103
    v_cvt_pk_bf16_f32 v102, v104, v105
    v_cvt_pk_bf16_f32 v103, v106, v107
    ds_write_b128 v24, v[100:103]
    s_add_u32 s29, s29, 16
    s_cmp_lt_u32 s29, {NB}
    s_cbranch_scc1 K2_CONV
    s_waitcnt lgkmcnt(0)
    s_barrier
K2_GEMM2:
    """)
    stamp(a, 9)
    diag(a, 3, "K2_DG3")
    diag(a, 5, "K2_DG4", cyc=True)
    vHB = 96
    vO = 24
    for rt in range(2):
        off = rt * 64 * ROWS
        if rt == 1:
            a("s_cmp_ge_u32 s3, 12")
            a("s_cbranch_scc1 K2_FIN")
            a(f"v_add_u32 v7, {off}, v7")
            a(f"v_add_u32 v21, {64 * 256}, v21")
        a(f"ds_read_b32 v22, v20 offset:{DEGT + rt * 256}")
        for ks in range(8):
            a(f"ds_read_b128 v[{vHB+4*ks}:{vHB+4*ks+3}], v7 offset:{(ks >> 2) * 512 + (ks & 3) * 64}")
        if rt == 0:
            a("s_waitcnt vmcnt(0)")
            for p in range(4):
                a(f"v_lshlrev_b32 v{12+2*p}, 16, v{8+p}")
                a(f"v_and_b32 v{13+2*p}, 0xffff0000, v{8+p}")
        for ks in range(8):
            a(f"s_waitcnt lgkmcnt({7-ks})")
            for aa in range(2):
                f = vF + 4 * (aa * 8 + ks)
                c = "0" if ks == 0 else f"v[{vO+4*aa}:{vO+4*aa+3}]"
                a(f"v_mfma_f32_16x16x32_bf16 v[{vO+4*aa}:{vO+4*aa+3}], v[{f}:{f+3}], v[{vHB+4*ks}:{vHB+4*ks+3}], {c}")
        a("v_cvt_f32_u32 v22, v22")
        a(f"v_cmp_gt_u32 vcc, {NB - 64 * rt}, v6")
        a("s_nop 5")
        for r in range(8):
            a(f"v_mul_f32 v{vO+r}, s34, v{vO+r}")
        for r in range(8):
            a(f"v_fmac_f32 v{vO+r}, v22, v{12+r}")
        for r in range(4):
            a(f"v_cvt_pk_bf16_f32 v{vHB+r}, v{vO+2*r}, v{vO+2*r+1}")
        a("s_mov_b64 exec, vcc")
        a(f"buffer_store_dwordx4 v[{vHB}:{vHB+3}], v21, s[{sOUT}:{sOUT+3}], s24 offen {OPT['ost']}")
        a("s_mov_b64 exec, -1")
        if rt == 0:
            a("s_nop 1")
    a("K2_FIN:")
    if OPT["stamps"]:
        a("s_waitcnt vmcnt(0)")
    stamp(a, 11)
    stamp_flush(a, 0)
    diag_flush(a)
    a("""
K2_END:
    s_endpgm
    """)
    return a.text(), 128, 102


HEADER = """; Kernarg layout for this problem (88 bytes, ptrs only, base s[0:1]):
"""


def kd(name, vgpr, sgpr):
    return f""".amdhsa_kernel {name}
  .amdhsa_next_free_vgpr {vgpr}
  .amdhsa_next_free_sgpr {sgpr}
  .amdhsa_accum_offset {(vgpr + 3) // 4 * 4}
  .amdhsa_group_segment_fixed_size 0
  .amdhsa_kernarg_size 88
  .amdhsa_user_sgpr_count 2
  .amdhsa_user_sgpr_kernarg_segment_ptr 1
  .amdhsa_system_sgpr_workgroup_id_x 1
.end_amdhsa_kernel
"""


def build():
    k2, v2, s2 = gen_k2()
    n2 = "gather_scatter__edge_featured_mpnn_mpnn__graph_kernel"
    out = HEADER
    ks = [(n2, k2, v2, s2)]
    if OPT["diag"] or OPT["list"]:
        out += f"; @launch kernel={n2} grid=(256,1,1) block=(1024,1,1) lds={K_LDS}\n"
    else:
        out += f"; @launch grid=(256,1,1) block=(1024,1,1) lds={K_LDS}\n"
    if OPT["diag"]:
        out += "; @launch kernel=diag_kernel grid=(1,1,1) block=(64,1,1) lds=0\n"
        ks.append(("diag_kernel",) + gen_diag())
    out += '.amdgcn_target "amdgcn-amd-amdhsa--gfx950"\n.text\n'
    for n, k, _, _ in ks:
        out += f".globl {n}\n.p2align 8\n.type {n},@function\n{n}:\n" + k
    out += '.section .rodata,"a"\n'
    for n, _, v, sg in ks:
        out += ".p2align 6\n" + kd(n, v, sg)
    return out


if __name__ == "__main__":
    path = sys.argv[1] if len(sys.argv) > 1 else "gather_scatter__edge_featured_mpnn_mpnn__graph.s"
    for kv in sys.argv[2:]:
        k, v = kv.split("=")
        OPT[k] = int(v) if v.lstrip('-').isdigit() else v.replace('+', ' ')
    open(path, "w").write(build())
    print("wrote", path, "LDS", K_LDS)
```

```python
import sys

N = 25000; E = 400000
NB = 98
CH = 1564
CHS = 12544
PS = N * 256
P_OFF = 0
CELL_OFF = 0x0C40000
REC_OFF = 0x1C40000
TAB_OFF = 0x1F50000
W2F_OFF = 0x1F90000
PMAX_OFF = 0x1FA0000
SCR_OFF = 0x2000000
SCR_STRIDE = 104448
WS_USED = SCR_OFF + 256 * SCR_STRIDE
assert 2 * PS <= CELL_OFF and REC_OFF + 256 * CHS <= TAB_OFF
NLOG2E = 0xbfb8aa3b
NLN2 = 0xbf317218
BOUND = 0x43e00000

STAMP_OFF = 0x3c00000
OPT = dict(U=4, stamps=False, pst="", rst="", prio=1, warm=1, reclate=0, tlb=0, diag=0, ost="sc1", pld="sc1", nw=16, sleep=2, list=0)


class A:
    def __init__(self):
        self.l = []

    def __call__(self, s):
        for x in s.strip("\n").split("\n"):
            x = x.rstrip()
            if not x.strip():
                continue
            if x.strip().endswith(":") and not x.strip().startswith(";"):
                self.l.append(x.strip())
            else:
                self.l.append("    " + x.strip())

    def text(self):
        return "\n".join(self.l) + "\n"


def stamp(a, i):
    if OPT["stamps"]:
        a(f"""
        s_memrealtime s[98:99]
        s_waitcnt lgkmcnt(0)
        s_mov_b32 s{84+i}, s98
        """)


DIAG_OFF = 0x3b00000


def diag(a, slot, lab, cyc=False):
    if OPT["diag"]:
        a(f"""
        s_cmp_lg_u32 s3, 0
        s_cbranch_scc1 {lab}
        {"s_memtime" if cyc else "s_memrealtime"} s[98:99]
        s_waitcnt lgkmcnt(0)
        s_mov_b32 s{84 + slot}, s98
{lab}:
        """)


def diag_flush(a):
    if OPT["diag"]:
        a(f"""
        s_cmp_lg_u32 s3, 0
        s_cbranch_scc1 K2_END
        s_lshl_b32 s96, s2, 5
        s_add_u32 s96, s96, {DIAG_OFF}
        s_add_u32 s96, s22, s96
        s_addc_u32 s97, s23, 0
        v_mov_b32 v0, 0
        """)
        for i in range(8):
            a(f"v_mov_b32 v1, s{84 + i}")
            a(f"global_store_dword v0, v1, s[96:97] offset:{4 * i}")


def gen_diag():
    a = A()
    m = OPT["diag"] - 100
    op = "v_max_u32" if m // 10 == 0 else "v_min_u32"
    slot = m % 10
    a(f"""
    s_cmp_lg_u32 s2, 0
    s_cbranch_scc1 DG_END
    s_load_dwordx2 s[22:23], s[0:1], 80
    s_memrealtime s[10:11]
    v_lshlrev_b32 v1, 5, v0
    s_waitcnt lgkmcnt(0)
    s_add_u32 s22, s22, {DIAG_OFF}
    s_addc_u32 s23, s23, 0
    """)
    for k in range(4):
        a(f"global_load_dword v{2+k}, v1, s[22:23]")
        a(f"global_load_dword v{6+k}, v1, s[22:23] offset:{4*slot}")
        a("v_add_u32 v1, 2048, v1")
    a("s_waitcnt vmcnt(0)")
    for k in range(1, 4):
        a(f"v_min_u32 v2, v2, v{2+k}")
        a(f"{op} v6, v6, v{6+k}")
    for st in ("row_shr:1 row_mask:0xf", "row_shr:2 row_mask:0xf", "row_shr:4 row_mask:0xf", "row_shr:8 row_mask:0xf",
               "row_bcast:15 row_mask:0xa", "row_bcast:31 row_mask:0xc"):
        a("s_nop 1")
        a(f"v_min_u32_dpp v2, v2, v2 {st} bank_mask:0xf")
        a(f"{op}_dpp v6, v6, v6 {st} bank_mask:0xf")
    a("""
    s_nop 1
    v_readlane_b32 s12, v6, 63
    v_readlane_b32 s13, v2, 63
    s_sub_u32 s12, s12, s13
    s_lshl_b32 s12, s12, 2
    s_min_u32 s12, s12, 30000
DG_SPIN:
    s_memrealtime s[14:15]
    s_waitcnt lgkmcnt(0)
    s_sub_u32 s14, s14, s10
    s_cmp_lt_u32 s14, s12
    s_cbranch_scc1 DG_SPIN
DG_END:
    s_endpgm
    """)
    return a.text(), 16, 40


def cstamp(a, i):
    if OPT["stamps"]:
        a(f"""
        s_memtime s[98:99]
        s_waitcnt lgkmcnt(0)
        s_mov_b32 s{96+i}, s98
        """)


def stamp_init(a):
    if OPT["stamps"]:
        for i in range(14):
            a(f"s_mov_b32 s{84+i}, 0")


def stamp_flush(a, kern):
    if OPT["stamps"]:
        a(f"""
        s_mov_b64 exec, -1
        s_mov_b32 s4, s22
        s_mov_b32 s5, s23
        s_mov_b32 s6, 0x8000000
        s_mov_b32 s7, 0x00020000
        s_lshl_b32 s8, s2, 4
        s_add_u32 s8, s8, s3
        s_lshl_b32 s8, s8, 6
        s_add_u32 s8, s8, {STAMP_OFF + kern * 256 * 16 * 64}
        v_mov_b32 v0, 0
        s_mov_b64 exec, 1
        """)
        for i in range(14):
            a(f"v_mov_b32 v1, s{84+i}")
            a(f"buffer_store_dword v1, v0, s[4:7], s8 offen offset:{4*i}")


def srd(a, d, lo, hi, size, stride=0):
    a(f"s_mov_b32 s{d}, s{lo}")
    if stride:
        a(f"s_and_b32 s{d+1}, s{hi}, 0xffff")
        a(f"s_or_b32 s{d+1}, s{d+1}, {stride << 16:#x}")
    else:
        a(f"s_mov_b32 s{d+1}, s{hi}")
    a(f"s_mov_b32 s{d+2}, {size}")
    a(f"s_mov_b32 s{d+3}, 0x00020000")


def wave_scan(a, regs):
    steps = ["row_shr:1 row_mask:0xf", "row_shr:2 row_mask:0xf", "row_shr:4 row_mask:0xf", "row_shr:8 row_mask:0xf",
             "row_bcast:15 row_mask:0xa", "row_bcast:31 row_mask:0xc"]
    for st in steps:
        a("s_nop 1" if len(regs) == 1 else "s_nop 0")
        for r in regs:
            a(f"v_add_u32_dpp v{r}, v{r}, v{r} {st} bank_mask:0xf")


def row_max(a, r):
    for sh in (1, 2, 4, 8):
        a("s_nop 1")
        a(f"v_max_f32_dpp v{r}, v{r}, v{r} row_shr:{sh} row_mask:0xf bank_mask:0xf")


def common_ids(a):
    a("""
    v_lshrrev_b32 v1, 6, v0
    v_and_b32 v2, 15, v0               ; l16
    v_readfirstlane_b32 s3, v1         ; wave
    v_and_b32 v1, 63, v0               ; lane
    v_lshrrev_b32 v3, 4, v1            ; g
    """)


def dma_w_setup(a, vdst, vt, st):
    a(f"""
    s_and_b32 s{st}, s3, 1
    s_lshl_b32 s{st}, s{st}, 7
    v_lshrrev_b32 v{vt}, 5, v1           ; L>>5
    v_mul_u32_u24 v{vt}, 544, v{vt}      ; (L>>5)*512 + (L>>5)<<5
    v_and_b32 v{vdst}, 31, v1
    v_lshlrev_b32 v{vdst}, 4, v{vdst}    ; j*16
    v_xor_b32 v{vdst}, v{vt}, v{vdst}
    v_xor_b32 v{vdst}, s{st}, v{vdst}
    v_xor_b32 v{vdst+1}, 64, v{vdst}
    s_lshl_b32 s{st}, s3, 12
    """)


def dma_w_issue(a, vsrc, srdw, st, st2, goff, wb):
    a(f"s_add_u32 m0, s{st}, {wb}")
    a(f"s_add_u32 s{st2}, s{st}, {goff}")
    for i in range(4):
        a(f"buffer_load_dwordx4 v{vsrc + (i & 1)}, s[{srdw}:{srdw+3}], s{st2} offen offset:{1024 * i} lds")


def dma_x(a, srdx, srow0, vo, vt, st, xb):
    a(f"""
    s_and_b32 s{st}, s3, 1
    s_lshl_b32 s{st}, s{st}, 3
    v_add_u32 v{vt}, s{st}, v3           ; 8*(w&1)+g
    v_xor_b32 v{vt}, v2, v{vt}
    s_lshl_b32 s{st}, s3, 3
    s_add_u32 s{st}, s{st}, s{srow0}
    v_add_u32 v{vo}, s{st}, v3           ; row
    v_lshlrev_b32 v{vo}, 8, v{vo}
    v_lshl_add_u32 v{vo}, v{vt}, 4, v{vo}
    s_lshl_b32 s{st}, s3, 11
    s_add_u32 m0, s{st}, {xb}
    v_xor_b32 v{vt}, 64, v{vo}
    buffer_load_dwordx4 v{vo}, s[{srdx}:{srdx+3}], 0 offen lds
    buffer_load_dwordx4 v{vt}, s[{srdx}:{srdx+3}], 0 offen offset:1024 lds
    """)


def gemm_addr(a, vb, vxa, vt, st, wb, xb):
    a(f"""
    v_lshrrev_b32 v{vt}, 2, v2           ; r
    v_mul_u32_u24 v{vb}, 544, v{vt}      ; r*512 + r*32
    v_lshl_add_u32 v{vb}, v3, 12, v{vb}  ; + g*8*512
    v_and_b32 v{vt}, 1, v3
    v_lshl_add_u32 v{vb}, v{vt}, 7, v{vb} ; + (g&1)<<2<<5
    v_and_b32 v{vt}, 3, v2
    v_lshl_add_u32 v{vb}, v{vt}, 3, v{vb} ; + c*8
    s_and_b32 s{st}, s3, 7
    s_lshl_b32 s{st}, s{st}, 6
    v_xor_b32 v{vb}, s{st}, v{vb}
    v_add_u32 v{vb}, {wb}, v{vb}
    v_xor_b32 v{vb+1}, 32, v{vb}
    v_xor_b32 v{vt}, v2, v3
    v_lshlrev_b32 v{vt}, 4, v{vt}
    v_lshl_add_u32 v{vxa}, v2, 8, v{vt}
    s_lshr_b32 s{st}, s3, 3
    s_lshl_b32 s{st}, s{st}, 14
    s_add_u32 s{st}, s{st}, {xb}
    v_add_u32 v{vxa}, s{st}, v{vxa}
    v_xor_b32 v{vxa+1}, 64, v{vxa}
    v_xor_b32 v{vxa+2}, 0x80, v{vxa}
    v_xor_b32 v{vxa+3}, 0xc0, v{vxa}
    """)


def gemm_parts(a, vW, vX, vAcc, vb, vxa, cinit, acc2=False):
    def wreads():
        for ks in range(4):
            for aa in range(2):
                for h in range(2):
                    r = vW + 16 * aa + 4 * ks + 2 * h
                    a(f"ds_read_b64_tr_b16 v[{r}:{r+1}], v{vb+aa} offset:{ks * 16384 + h * 2048}")

    def xreads(i):
        for ks in range(4):
            r = vX + 16 * (i & 1) + 4 * ks
            a(f"ds_read_b128 v[{r}:{r+3}], v{vxa+ks} offset:{4096 * i}")

    def mf(i):
        for ks in range(4):
            for aa in range(2):
                acc = vAcc + 8 * ((i & 1) if acc2 else i) + 4 * aa
                c = cinit(aa) if ks == 0 else f"v[{acc}:{acc+3}]"
                w = vW + 16 * aa + 4 * ks
                x = vX + 16 * (i & 1) + 4 * ks
                a(f"v_mfma_f32_16x16x32_bf16 v[{acc}:{acc+3}], v[{w}:{w+3}], v[{x}:{x+3}], {c}")
    return wreads, xreads, mf


ROWS = 1040
CNT = 0
DH = CNT + 512
DEGT = DH + 256
HIST = DEGT + 512
POS = HIST + 1024
INFO = POS + 512
MISC = INFO + 1600
WT = MISC + 64
START = WT + 1024
LIST = (START + 1024 + 255) // 256 * 256
LISTCAP = 6144
LCAP = 60
LROW = LCAP * 8
QH = (LIST + LISTCAP * 8 + 128 + 255) // 256 * 256
K_LDS = QH + 100 * ROWS
XB = LIST
STAGE = LIST + 32768
CST = QH + 65536
assert K_LDS <= 163840 and STAGE + CHS <= QH and CST + 32768 <= K_LDS
assert MISC % 16 == 0 and INFO % 16 == 0 and WT % 16 == 0
QCAP = 585
SPIN = 40000


def gen_k2():
    U = OPT["U"]
    a = A()
    vW, vX, vAcc = 20, 52, 84
    vRec, vRank, vPos = 100, 112, 118
    vb, vxa, vB1 = 4, 6, 10
    sX, sW1, sB1, sWS, sP, sOUT, sB2, sSCR = 36, 40, 44, 48, 52, 56, 60, 64
    sDST, sSRC, sE, sW2 = 52, 56, 60, 64
    sROW0 = 26
    sBATCH = 68; sNBATCH = 69; sRECB = 70
    sM = 72
    sDBG = 100; sPM = 34
    a(f"""
    s_cmp_ge_u32 s2, 256
    s_cbranch_scc1 K2_END
    s_load_dwordx16 s[4:19], s[0:1], 0
    s_load_dwordx2 s[20:21], s[0:1], 64
    s_load_dwordx2 s[22:23], s[0:1], 80
    s_load_dwordx2 s[{sDBG}:{sDBG+1}], s[0:1], 72
    """)
    stamp_init(a)
    stamp(a, 0)
    common_ids(a)
    a(f"""
    s_mul_i32 s29, s2, {CH}
    s_sub_u32 s30, {E}, s29
    s_min_u32 s30, s30, {CH}
    s_lshr_b32 s30, s30, 1
    v_lshl_add_u32 v6, v0, 1, s29        ; first edge index
    v_lshlrev_b32 v7, 1, v6
    v_lshlrev_b32 v6, 2, v6
    v_cmp_gt_u32 s[32:33], s30, v0
    v_mov_b32 v11, 0
    v_lshlrev_b32 v12, 2, v0
    v_cmp_gt_u32 vcc, {(POS - CNT) // 4}, v0
    s_mov_b64 exec, vcc
    ds_write_b32 v12, v11 offset:{CNT}
    s_mov_b64 exec, 0xff
    v_cmp_eq_u32 vcc, 4, v1
    v_lshlrev_b32 v12, 2, v1
    s_mul_i32 s{sROW0}, s2, {NB}
    v_cndmask_b32 v11, 0, {OPT['nw']}, vcc
    ds_write_b32 v12, v11 offset:{MISC}
    s_mov_b64 exec, -1
    v_lshlrev_b32 v13, 3, v1
    s_mov_b32 s68, {256 * 512}
    s_waitcnt lgkmcnt(0)
    """)
    diag(a, 0, "K1_DG0")
    srd(a, sDST, 10, 11, E * 4)
    srd(a, sE, 6, 7, E * 2)
    srd(a, sSRC, 8, 9, E * 4)
    srd(a, sW1, 12, 13, 257 * 512)
    a(f"""
    s_mov_b64 exec, s[32:33]
    buffer_load_dwordx2 v[118:119], v6, s[{sDST}:{sDST+3}], 0 offen
    buffer_load_dword v10, v7, s[{sE}:{sE+3}], 0 offen
    buffer_load_dwordx2 v[8:9], v6, s[{sSRC}:{sSRC+3}], 0 offen
    s_mov_b64 exec, -1
    buffer_load_dwordx2 v[14:15], v13, s[{sW1}:{sW1+3}], s68 offen
    """)
    a("""
    s_cmp_lg_u32 s3, 14
    s_cbranch_scc1 K1_NOW2L
    """)
    srd(a, sW2, 16, 17, 65536)
    a(f"""
    s_lshr_b32 s68, s2, 2                ; F = G>>6
    s_and_b32 s69, s2, 3                 ; g' = (G&63)>>4
    s_and_b32 s24, s68, 7
    s_lshl_b32 s24, s24, 5
    s_lshl_b32 s69, s69, 2
    s_add_u32 s24, s24, s69
    s_lshl_b32 s24, s24, 8               ; *256 bytes
    s_lshr_b32 s69, s68, 4               ; cp
    s_lshl_b32 s69, s69, 5
    s_bfe_u32 s68, s68, 0x10003          ; a
    s_lshl_b32 s68, s68, 2
    s_add_u32 s68, s68, s69              ; 32cp + 4a
    v_lshrrev_b32 v28, 2, v2
    v_lshlrev_b32 v28, 3, v28            ; 8*(m>>2)
    v_and_b32 v29, 3, v2
    v_add3_u32 v28, v28, v29, s68        ; col
    v_lshlrev_b32 v28, 1, v28
    s_mov_b64 exec, 0xffff
    """)
    for t in range(8):
        if t == 4:
            a("s_add_u32 s24, s24, 4096")
        r = vW + (t >> 1) + 4 * (t & 1)
        a(f"buffer_load_ushort v{r}, v28, s[{sW2}:{sW2+3}], s24 offen offset:{256 * (t & 3)}")
    a(f"""
    s_mov_b64 exec, -1
K1_NOW2L:
    s_cmp_lg_u32 s3, 13
    s_cbranch_scc1 K1_NOWARM
    s_lshr_b32 s24, s2, 3
    s_lshl_b32 s24, s24, 11
    s_add_u32 s24, s24, {128 * 512}
    v_lshlrev_b32 v28, 5, v1
    buffer_load_dword v29, v28, s[{sW1}:{sW1+3}], s24 offen
K1_NOWARM:
    """)
    dma_w_setup(a, 16, 5, 27)
    srd(a, sX, 4, 5, N * 256)
    srd(a, sWS, 22, 23, SCR_OFF)
    srd(a, sB1, 14, 15, 512)
    a("s_barrier")
    a("s_cmp_ge_u32 s3, 14")
    a("s_cbranch_scc1 K1_NOX")
    dma_x(a, sX, sROW0, 5, 6, 24, XB)
    a("K1_NOX:")
    dma_w_issue(a, 16, sW1, 27, 24, 0, QH)
    a(f"""
    s_and_b32 s24, s3, 7
    s_lshl_b32 s24, s24, 6
    v_lshlrev_b32 v5, 3, v3
    buffer_load_dwordx2 v[112:113], v5, s[{sB1}:{sB1+3}], s24 offen
    buffer_load_dwordx2 v[114:115], v5, s[{sB1}:{sB1+3}], s24 offen offset:32
    s_mov_b32 s71, 42800
    s_mov_b32 s34, {NLOG2E:#x}
    s_lshl_b32 s31, s2, 8
    s_add_u32 s31, s31, {CELL_OFF}
    s_cmp_ge_u32 s3, 13
    s_cbranch_scc1 K1_AUX
    s_waitcnt vmcnt(8)
    """)
    a(f"""
    ; 4*log2e*max|w1[256,:]|
    v_and_b32 v14, 0x7fff7fff, v14
    v_and_b32 v15, 0x7fff7fff, v15
    v_pk_max_u16 v14, v14, v15
    s_mov_b64 exec, s[32:33]
    v_mul_u32_u24 v116, s71, v118
    v_mul_u32_u24 v117, s71, v119
    v_lshrrev_b32 v116, 22, v116         ; bucket
    v_lshrrev_b32 v117, 22, v117
    v_mul_u32_u24 v125, {NB}, v116
    v_mul_u32_u24 v126, {NB}, v117
    v_lshlrev_b32 v116, 2, v116
    v_lshlrev_b32 v117, 2, v117
    v_sub_u32 v125, v118, v125           ; dloc
    v_sub_u32 v126, v119, v126
    v_mov_b32 v127, 1
    ds_add_rtn_u32 v118, v116, v127 offset:{HIST}
    ds_add_rtn_u32 v119, v117, v127 offset:{HIST}
    s_mov_b64 exec, -1
    v_lshlrev_b32 v15, 16, v14
    v_and_b32 v14, 0xffff0000, v14
    v_max_u32 v14, v14, v15
    """)
    for st in ("row_shr:1 row_mask:0xf", "row_shr:2 row_mask:0xf", "row_shr:4 row_mask:0xf", "row_shr:8 row_mask:0xf",
               "row_bcast:15 row_mask:0xa", "row_bcast:31 row_mask:0xc"):
        a("s_nop 1")
        a(f"v_max_u32_dpp v14, v14, v14 {st} bank_mask:0xf")
    a(f"""
    v_mul_f32 v14, 0x40b8aa3b, v14       ; 4*log2(e)
    v_lshlrev_b32 v121, 16, v10
    v_readlane_b32 s67, v14, 63
    v_and_b32 v123, 0xffff0000, v10
    s_mov_b64 exec, s[32:33]
    v_fma_f32 v120, |v121|, s67, 1.0
    v_fma_f32 v122, |v123|, s67, 1.0
    v_lshl_or_b32 v121, v125, 2, v121    ; e<<16 | dloc*4
    v_lshl_or_b32 v123, v126, 2, v123
    v_cvt_u32_f32 v120, v120
    v_cvt_u32_f32 v122, v122
    v_min_u32 v120, {QCAP}, v120
    v_min_u32 v122, {QCAP}, v122
    v_lshl_or_b32 v120, v120, 16, v8     ; src | q<<16
    v_lshl_or_b32 v122, v122, 16, v9
    v_lshlrev_b32 v125, 5, v116          ; bucket*128
    v_lshlrev_b32 v126, 5, v117
    v_add_u32 v125, {CST}, v125
    v_add_u32 v126, {CST}, v126
    s_waitcnt lgkmcnt(0)
    v_lshl_add_u32 v125, v118, 3, v125
    v_lshl_add_u32 v126, v119, 3, v126
    v_cmp_gt_u32 s[72:73], 16, v118
    v_cmp_gt_u32 s[74:75], 16, v119
    v_max_u32 v124, v118, v119
    s_mov_b64 exec, s[72:73]
    ds_write_b64 v125, v[120:121]
    s_mov_b64 exec, s[74:75]
    ds_write_b64 v126, v[122:123]
    s_and_b64 s[76:77], s[72:73], s[74:75]
    s_andn2_b64 exec, s[32:33], s[76:77]
    s_cbranch_execz K1_BAR1
    v_lshlrev_b32 v125, 14, v116
    v_lshlrev_b32 v126, 14, v117
    v_lshl_add_u32 v125, v118, 3, v125
    v_lshl_add_u32 v126, v119, 3, v126
    v_cmp_gt_u32 s[76:77], 24, v118
    v_cmp_gt_u32 s[78:79], 24, v119
    v_cmp_le_u32 vcc, 24, v124
    v_mov_b32 v127, 0
    s_andn2_b64 exec, s[76:77], s[72:73]
    buffer_store_dwordx2 v[120:121], v125, s[{sWS}:{sWS+3}], s31 offen sc1
    s_andn2_b64 exec, s[78:79], s[74:75]
    buffer_store_dwordx2 v[122:123], v126, s[{sWS}:{sWS+3}], s31 offen sc1
    s_mov_b64 exec, vcc
    ds_max_u32 v127, v124 offset:{MISC + 24}
    s_branch K1_BAR1
K1_AUX:
    s_cmp_lg_u32 s3, 15
    s_cbranch_scc1 K1_BAR1
    s_waitcnt vmcnt(6)
    v_lshlrev_b32 v20, 16, v14
    v_and_b32 v21, 0xffff0000, v14
    v_lshlrev_b32 v22, 16, v15
    v_and_b32 v23, 0xffff0000, v15
    v_mul_f32 v20, s34, v20
    v_mul_f32 v21, s34, v21
    v_mul_f32 v22, s34, v22
    v_mul_f32 v23, s34, v23
    v_and_b32 v24, 3, v1
    v_lshlrev_b32 v24, 4, v24            ; ((h>>2)&3)*16
    v_bfe_u32 v25, v1, 3, 2
    v_lshl_add_u32 v24, v25, 6, v24      ; + ((h>>5)&3)*64
    v_bfe_u32 v25, v1, 2, 1
    v_lshl_add_u32 v24, v25, 8, v24      ; + half*256
    v_lshrrev_b32 v25, 5, v1
    v_lshl_add_u32 v24, v25, 9, v24      ; + s*512
    ds_write_b128 v24, v[20:23] offset:{WT}
K1_BAR1:
    s_mov_b64 exec, -1
    v_lshrrev_b32 v6, 2, v0
    v_and_b32 v7, 3, v0
    v_lshlrev_b32 v127, 1, v7            ; 2j
    v_lshlrev_b32 v7, 4, v7
    v_lshl_add_u32 v5, v6, 7, v7
    v_add_u32 v5, {CST}, v5
    v_lshl_add_u32 v126, v6, 8, v7
    v_lshl_add_u32 v7, v6, 16, v7
    v_and_b32 v6, 0x3fc, v0
    v_mov_b32 v4, 0
    s_waitcnt lgkmcnt(0)
    s_barrier
    """)
    stamp(a, 1)
    a(f"""
    ds_read_b32 v108, v6 offset:{HIST}
    ds_read_b128 v[100:103], v5
    ds_read_b128 v[104:107], v5 offset:64
    ds_read_b32 v109, v4 offset:{MISC + 24}
    s_mov_b32 s24, 0x11111111
    s_mov_b32 s25, 0x11111111
    s_movk_i32 s28, 0x3e00
    s_waitcnt lgkmcnt(3)
    v_sub_u32 v110, v108, v127
    v_min_u32 v108, 31, v108
    v_lshlrev_b32 v108, 9, v108
    v_cmp_lt_i32 vcc, 0, v110
    v_cmp_lt_i32 s[72:73], 8, v110
    s_waitcnt lgkmcnt(0)
    v_readfirstlane_b32 s29, v109
    s_mov_b64 exec, s[24:25]
    v_bfi_b32 v101, s28, v108, v101
    s_or_b64 exec, vcc, s[24:25]
    buffer_store_dwordx4 v[100:103], v7, s[{sWS}:{sWS+3}], s31 offen sc1
    s_mov_b64 exec, s[72:73]
    buffer_store_dwordx4 v[104:107], v7, s[{sWS}:{sWS+3}], s31 offen offset:64 sc1
    s_mov_b64 exec, -1
    s_cmp_eq_u32 s29, 0
    s_cbranch_scc1 K1_NOPACK
    s_cmp_lg_u32 s3, 15
    s_cbranch_scc1 K1_NOSCAN
    v_lshlrev_b32 v6, 4, v1
    ds_read_b128 v[52:55], v6 offset:{HIST}
    s_lshl_b32 s24, s2, 10
    s_add_u32 s24, s24, {TAB_OFF}
    s_waitcnt lgkmcnt(0)
    v_add_u32 v57, v52, v53              ; p2
    v_add_u32 v58, v57, v54              ; p3
    v_add_u32 v59, v58, v55              ; tot
    v_mov_b32 v60, v59
    """)
    wave_scan(a, [60])
    a(f"""
    v_sub_u32 v60, v60, v59              ; base
    v_add_u32 v61, v60, v52
    v_add_u32 v62, v60, v57
    v_add_u32 v63, v60, v58
    v_lshlrev_b32 v64, 3, v60
    v_lshlrev_b32 v65, 3, v61
    v_lshlrev_b32 v66, 3, v62
    v_lshlrev_b32 v67, 3, v63
    ds_write_b128 v6, v[64:67] offset:{START}
    v_lshl_or_b32 v60, v52, 16, v60
    v_lshl_or_b32 v61, v53, 16, v61
    v_lshl_or_b32 v62, v54, 16, v62
    v_lshl_or_b32 v63, v55, 16, v63
    buffer_store_dwordx4 v[60:63], v6, s[{sWS}:{sWS+3}], s24 offen sc1
    s_waitcnt lgkmcnt(0)
K1_NOSCAN:
    s_barrier
    s_mov_b64 exec, s[32:33]
    ds_read_b32 v116, v116 offset:{START}
    ds_read_b32 v117, v117 offset:{START}
    s_waitcnt lgkmcnt(0)
    v_lshl_add_u32 v116, v118, 3, v116
    v_lshl_add_u32 v117, v119, 3, v117
    ds_write_b64 v116, v[120:121] offset:{STAGE}
    ds_write_b64 v117, v[122:123] offset:{STAGE}
    s_mov_b64 exec, -1
    v_lshlrev_b32 v6, 4, v0
    v_cmp_gt_u32 vcc, {CHS // 16}, v0
    s_mul_i32 s24, s2, {CHS}
    s_add_u32 s24, s24, {REC_OFF}
    s_waitcnt lgkmcnt(0)
    s_barrier
    s_mov_b64 exec, vcc
    ds_read_b128 v[52:55], v6 offset:{STAGE}
    s_waitcnt lgkmcnt(0)
    buffer_store_dwordx4 v[52:55], v6, s[{sWS}:{sWS+3}], s24 offen sc1
    s_mov_b64 exec, -1
    s_waitcnt vmcnt(0)
K1_NOPACK:
K1_ADDR:
    """)
    gemm_addr(a, vb, vxa, 11, 24, QH, XB)
    a(f"""
    s_mov_b32 s65, 0x07060100
    s_mov_b32 s66, 0x07060302
    s_lshr_b32 s29, s3, 3
    s_lshl_b32 s30, s29, 6               ; 64*rh
    s_sub_u32 s28, {N}, s{sROW0}
    s_min_u32 s28, s28, {NB}
    s_sub_u32 s28, s28, s30              ; valid rows from this wave's first row
    s_add_u32 s30, s30, s{sROW0}
    v_add_u32 v119, s30, v2
    v_lshlrev_b32 v119, 8, v119
    s_and_b32 s24, s3, 3
    s_lshl_b32 s24, s24, 6
    v_lshl_add_u32 v18, v3, 4, s24       ; (4*(cp&3)+g)*16
    v_add_u32 v119, v119, v18
    s_bfe_u32 s30, s3, 0x10002
    s_mul_i32 s25, s30, {PS}
    s_mul_i32 s29, s29, {64 * ROWS}
    s_lshl_b32 s30, s30, 9
    s_add_u32 s29, s29, s30
    s_add_u32 s29, s29, {QH}
    v_mul_u32_u24 v19, {ROWS}, v2
    v_add3_u32 v18, v18, v19, s29
    v_mov_b32 v118, 0                    ; max|P'|
    v_mov_b32 v19, 0                     ; max|Q'|
    s_waitcnt vmcnt(2)
    s_cmp_lg_u32 s3, 14
    s_cbranch_scc1 K1_NOW2S
    """)
    a(f"""
    s_lshl_b32 s68, s2, 8
    s_add_u32 s68, s68, {W2F_OFF}
    v_lshlrev_b32 v13, 4, v2
    s_mov_b64 exec, 0xffff
    v_lshl_or_b32 v{vAcc}, v{vW+4}, 16, v{vW}
    v_lshl_or_b32 v{vAcc+1}, v{vW+5}, 16, v{vW+1}
    v_lshl_or_b32 v{vAcc+2}, v{vW+6}, 16, v{vW+2}
    v_lshl_or_b32 v{vAcc+3}, v{vW+7}, 16, v{vW+3}
    buffer_store_dwordx4 v[{vAcc}:{vAcc+3}], v13, s[{sWS}:{sWS+3}], s68 offen sc1
    s_mov_b64 exec, -1
K1_NOW2S:
    """)
    a("v_mov_b32 v120, v16")
    a("v_mov_b32 v121, v17")
    a("s_barrier")
    diag(a, 7, "K1_DG7")
    stamp(a, 2)
    wreads, xreads, mfp = gemm_parts(a, vW, vX, vAcc, vb, vxa, lambda aa: "0", acc2=True)
    _, _, mf = gemm_parts(a, vW, vX, vAcc, vb, vxa, lambda aa: f"v[{vB1+4*aa}:{vB1+4*aa+3}]", acc2=True)

    def epp(i):
        lo = vAcc + 8 * (i & 1); hi = lo + 4
        for r in range(8):
            a(f"v_fma_f32 v{lo+r}, v{lo+r}, s34, 0")
        a(f"v_cvt_pk_bf16_f32 v116, v{lo}, v{lo+1}")
        a(f"v_cvt_pk_bf16_f32 v117, v{lo+2}, v{lo+3}")
        for r in range(0, 8, 2):
            a(f"v_max3_f32 v118, |v{lo+r}|, |v{lo+r+1}|, v118")
        for r in range(4):
            a(f"v_add_u32 v{hi+r}, 0x8000, v{hi+r}")
        for r in range(4):
            a(f"v_sub_u32_sdwa v{hi+r}, v{hi+r}, v{116+(r>>1)} clamp dst_sel:DWORD dst_unused:UNUSED_PAD src0_sel:DWORD src1_sel:WORD_{r&1}")
        for r in range(4):
            a(f"v_perm_b32 v{lo+r}, v{hi+r}, v{116+(r>>1)}, s{65+(r&1)}")
        a(f"v_cmp_gt_i32 vcc, s28, v2")
        a(f"s_mov_b64 exec, vcc")
        a(f"buffer_store_dwordx4 v[{lo}:{lo+3}], v119, s[{sWS}:{sWS+3}], s25 offen sc1")
        a(f"s_mov_b64 exec, -1")
        a("s_sub_u32 s28, s28, 16")
        a("s_add_u32 s25, s25, 4096")

    def epi(i, last=False):
        o = vAcc + 8 * (i & 1)
        for r in range(8):
            a(f"v_mul_f32 v{o+r}, s34, v{o+r}")
        for r in range(0, 8, 2):
            a(f"v_max3_f32 v19, |v{o+r}|, |v{o+r+1}|, v19")
        if last:
            a("s_mov_b32 exec_lo, 0x00030003")
            a("s_mov_b32 exec_hi, 0x00030003")
        a(f"ds_write_b128 v18, v[{o}:{o+3}] offset:{i * 16 * ROWS}")
        a(f"ds_write_b128 v18, v[{o+4}:{o+7}] offset:{i * 16 * ROWS + 256}")
        if last:
            a("s_mov_b64 exec, -1")

    def signal(val, L):
        a(f"""
    s_cmp_lg_u32 s3, 0
    s_cbranch_scc1 {L}
    s_and_b32 s24, s2, 7
    s_lshl_b32 s24, s24, 5
    v_mov_b32 v124, s24
    v_mov_b32 v125, {val}
    s_mov_b64 exec, 1
    global_atomic_add v124, v125, s[{sDBG}:{sDBG+1}] sc1
    s_mov_b64 exec, -1
{L}:
        """)

    def poll(L, wave, shift, t):
        a(f"""
    s_cmp_lg_u32 s3, {wave}
    s_cbranch_scc1 {L}_OK
    v_lshlrev_b32 v{t}, 5, v1
    s_mov_b64 exec, 0xff
    s_movk_i32 s24, {SPIN - 65536 if SPIN > 32767 else SPIN}
    s_and_b32 s24, s24, 0xffff
{L}_SPIN:
    global_load_dword v{t+1}, v{t}, s[{sDBG}:{sDBG+1}] sc1
    s_sub_u32 s24, s24, 1
    s_waitcnt vmcnt(0)
    v_bfe_u32 v{t+1}, v{t+1}, {shift}, 16
    v_cmp_gt_u32 vcc, 32, v{t+1}
    s_cbranch_vccz {L}_DONE
    s_sleep {OPT["sleep"]}
    s_cmp_lg_u32 s24, 0
    s_cbranch_scc1 {L}_SPIN
    v_mov_b32 v{t}, 0
    v_mov_b32 v{t+1}, 1
    ds_write_b32 v{t}, v{t+1} offset:{MISC + 20}
    s_waitcnt lgkmcnt(0)
{L}_DONE:
    s_mov_b64 exec, -1
{L}_OK:
        """)

    wreads(); xreads(0); xreads(1)
    for p in range(4):
        a(f"v_lshlrev_b32 v{vB1+2*p}, 16, v{112+p}")
        a(f"v_and_b32 v{vB1+2*p+1}, 0xffff0000, v{112+p}")
    a("s_waitcnt lgkmcnt(8)")
    a("s_barrier")
    dma_w_issue(a, 120, sW1, 27, 24, 128 * 512, QH)
    a("s_waitcnt lgkmcnt(4)")
    mfp(0)
    xreads(2)
    a("s_waitcnt vmcnt(4)")
    a("s_barrier")
    signal(1, "K1_SIGA")
    diag(a, 1, "K1_DG1")
    stamp(a, 3)
    a("s_waitcnt lgkmcnt(4)")
    mfp(1)
    xreads(3)
    epp(0)
    a("s_waitcnt lgkmcnt(4)")
    mfp(2)
    epp(1)
    a("""
    s_cmp_ge_u32 s3, 8
    s_cbranch_scc1 K1_RH1
    s_waitcnt lgkmcnt(0)
    """)
    mfp(3)
    epp(2)
    epp(3)
    a("""
    s_waitcnt vmcnt(5)
    s_cmp_eq_u32 s3, 0
    s_cbranch_scc1 K1_GD
    s_waitcnt vmcnt(4)
    s_branch K1_GD
K1_RH1:
    """)
    epp(2)
    a("s_waitcnt vmcnt(3)")
    a("K1_GD:")
    row_max(a, 118)
    a(f"""
    v_mov_b32 v116, 0
    s_mov_b32 exec_lo, 0x80008000
    s_mov_b32 exec_hi, 0x80008000
    ds_max_u32 v116, v118 offset:{MISC}
    s_mov_b64 exec, -1
    s_waitcnt lgkmcnt(0)
    """)
    stamp(a, 4)
    a(f"""
    s_barrier
    """)
    diag(a, 4, "K1_DG4")
    a(f"""
    s_cmp_lg_u32 s3, 1
    s_cbranch_scc1 K1_NOPM
    ds_read_b32 v118, v116 offset:{MISC}
    s_lshl_b32 s24, s2, 2
    s_add_u32 s24, s24, {PMAX_OFF}
    s_mov_b64 exec, 1
    s_waitcnt lgkmcnt(0)
    buffer_store_dword v118, v116, s[{sWS}:{sWS+3}], s24 offen sc1
    s_mov_b64 exec, -1
K1_NOPM:
    """)
    wreads(); xreads(0); xreads(1)
    poll("K2_PA", 15, 0, 110)
    stamp(a, 5)
    a(f"""
    s_lshl_b32 s24, s2, 16
    s_add_u32 s{sRECB}, s24, {CELL_OFF}
    s_waitcnt vmcnt(0) lgkmcnt(8)
    s_barrier
    buffer_load_dwordx4 v[{vRec}:{vRec+3}], v126, s[{sWS}:{sWS+3}], s{sRECB} offen sc1
    buffer_load_dwordx4 v[{vRec+4}:{vRec+7}], v126, s[{sWS}:{sWS+3}], s{sRECB} offen offset:64 sc1
    """)
    signal(0x10000, "K1_SIGB")
    diag(a, 6, "K1_DG6")
    stamp(a, 6)
    a("s_waitcnt lgkmcnt(4)")
    mf(0)
    xreads(2)
    a("s_waitcnt lgkmcnt(4)")
    mf(1)
    a("s_cmp_ge_u32 s3, 8")
    a("s_cbranch_scc1 K2_NOX3")
    xreads(3)
    a("K2_NOX3:")
    epi(0)
    a("s_waitcnt lgkmcnt(2)")
    mf(2)
    epi(1)
    a("s_cmp_ge_u32 s3, 8")
    a(f"s_cbranch_scc1 K2_E2")
    mf(3)
    epi(2)
    epi(3)
    a(f"s_branch K2_GD")
    a(f"K2_E2:")
    epi(2, last=True)
    a(f"K2_GD:")
    row_max(a, 19)
    a(f"""
    v_mov_b32 v4, 0
    s_mov_b32 exec_lo, 0x80008000
    s_mov_b32 exec_hi, 0x80008000
    ds_max_u32 v4, v19 offset:{MISC + 4}
    s_mov_b64 exec, -1
    s_mov_b32 s{sBATCH}, 0
    s_waitcnt vmcnt(1)
    s_cmp_eq_u32 s3, 0
    s_cbranch_scc1 K2_CELLS
    s_waitcnt vmcnt(0)
K2_CELLS:
    v_bfe_u32 v124, v{vRec+1}, 9, 5
    s_nop 1
    v_mov_b32_dpp v124, v124 quad_perm:[0,0,0,0] row_mask:0xf bank_mask:0xf
    v_sub_u32 v125, v124, v127
    """)
    for k in range(6):
        a(f"v_cmp_lt_i32 s[{sM+2*k}:{sM+2*k+1}], {8*(k>>1)+(k&1)}, v125")
    a(f"""
    s_mov_b64 exec, s[{sM+8}:{sM+9}]
    s_cbranch_execz K2_NOM2
    buffer_load_dwordx4 v[{vRec+8}:{vRec+11}], v126, s[{sWS}:{sWS+3}], s{sRECB} offen offset:128 sc1
    v_cmp_lt_u32 vcc, 24, v124
    s_mov_b64 exec, vcc
    ds_max_u32 v4, v124 offset:{MISC + 12}
    s_waitcnt vmcnt(0)
K2_NOM2:
    s_mov_b64 exec, -1
    """)

    def rec_loads():
        for k in range(6):
            a(f"v_cmp_lt_i32 s[{sM+2*k}:{sM+2*k+1}], {8*(k>>1)+(k&1)}, v127")
        for m in range(3):
            a(f"s_mov_b64 exec, s[{sM+4*m}:{sM+4*m+1}]")
            a(f"buffer_load_dwordx4 v[{vRec+4*m}:{vRec+4*m+3}], v126, s[{sWS}:{sWS+3}], s{sRECB} offen offset:{64*m} sc1")
        a("s_mov_b64 exec, -1")

    def hist(L):
        a("s_mov_b32 s35, 0xffff0000")
        for k in range(6):
            m, o = k >> 1, k & 1
            r0 = vRec + 4 * m + 2 * o
            a(f"s_mov_b64 exec, s[{sM+2*k}:{sM+2*k+1}]")
            if k in (2, 4):
                a(f"s_cbranch_execz {L}_HISTDONE")
            a(f"v_and_b32 v{vPos+k}, 0x1fc, v{r0+1}")
            a(f"v_and_or_b32 v8, v{r0}, s35, 1")
            a(f"ds_add_rtn_u32 v{vRank+k}, v{vPos+k}, v8 offset:{CNT}")
            a(f"v_and_b32 v{r0}, 0xffff, v{r0}")
            a(f"v_and_b32 v{r0+1}, s35, v{r0+1}")
        a(f"{L}_HISTDONE:")
        a("s_mov_b64 exec, -1")

    def scanrank(L, wscan, wrank, degt=True):
        a(f"""
    s_sub_u32 s24, s3, {wscan}
    s_cmp_ge_u32 s24, 2
    s_cbranch_scc1 {L}_SRDONE
    v_lshlrev_b32 v8, 2, v1
    ds_read_b32 v78, v8 offset:{CNT}
    ds_read_b32 v79, v8 offset:{CNT + 256}
    v_mov_b32 v9, 1
    s_waitcnt lgkmcnt(0)
    v_and_b32 v68, 0xffff, v78
    v_and_b32 v69, 0xffff, v79
    s_cmp_eq_u32 s3, {wscan}
    s_cbranch_scc1 {L}_SCAN
    v_mov_b32 v77, 0
    ds_write_b32 v8, v77 offset:{DH}
    v_min_u32 v73, 63, v68
    v_min_u32 v74, 63, v69
    v_sub_u32 v73, 63, v73
    v_sub_u32 v74, 63, v74
    v_lshlrev_b32 v73, 2, v73
    v_lshlrev_b32 v74, 2, v74
    ds_add_rtn_u32 v75, v73, v9 offset:{DH}
    s_mov_b32 exec_hi, 0xf               ; nodes 64..99
    ds_add_rtn_u32 v76, v74, v9 offset:{DH}
    s_mov_b64 exec, -1
    ds_read_b32 v77, v8 offset:{DH}
    s_waitcnt lgkmcnt(0)
{L}_SCAN:
    v_mov_b32 v70, v68
    v_mov_b32 v71, v69
    v_mov_b32 v72, v77
        """)
        wave_scan(a, [70, 71, 72])
        a(f"""
    v_mov_b32 v9, {LIST}
    v_readlane_b32 s24, v70, 63
    v_sub_u32 v70, v70, v68
    v_sub_u32 v71, v71, v69
    v_add_u32 v71, s24, v71
    v_lshl_add_u32 v80, v70, 3, v9
    v_lshl_add_u32 v4, v71, 3, v9
    s_cmp_eq_u32 s3, {wscan}
    s_cbranch_scc0 {L}_RANK
    ds_write_b32 v8, v80 offset:{POS}
    ds_write_b32 v8, v4 offset:{POS + 256}
    {f"ds_add_u32 v8, v68 offset:{DEGT}" if degt else ""}
    {f"ds_add_u32 v8, v69 offset:{DEGT + 256}" if degt else ""}
    s_branch {L}_SRDONE
{L}_RANK:
    v_sub_u32 v72, v72, v77
    ds_bpermute_b32 v73, v73, v72
    ds_bpermute_b32 v74, v74, v72
    v_mov_b32 v81, v68
    v_mul_u32_u24 v82, {ROWS}, v1
    v_add_u32 v82, {QH}, v82
    v_lshrrev_b32 v83, 16, v78
    v_mov_b32 v5, v69
    v_add_u32 v6, {64 * ROWS}, v82
    v_lshrrev_b32 v7, 16, v79
    s_waitcnt lgkmcnt(0)
    v_add_lshl_u32 v73, v73, v75, 4
    v_add_lshl_u32 v74, v74, v76, 4
    ds_write_b128 v73, v[80:83] offset:{INFO}
    s_mov_b32 exec_hi, 0xf
    ds_write_b128 v74, v[4:7] offset:{INFO}
    s_mov_b64 exec, -1
{L}_SRDONE:
        """)

    def fastrank(L, wrank):
        a(f"""
    s_cmp_lg_u32 s3, {wrank}
    s_cbranch_scc1 {L}_FRDONE
    s_setprio 3
    v_lshlrev_b32 v8, 2, v1
    ds_read_b32 v78, v8 offset:{CNT}
    ds_read_b32 v79, v8 offset:{CNT + 256}
    v_mov_b32 v9, 1
    v_mul_u32_u24 v80, {LROW}, v1
    v_add_u32 v80, {LIST}, v80
    v_add_u32 v4, {64 * LROW}, v80
    v_mul_u32_u24 v82, {ROWS}, v1
    v_add_u32 v82, {QH}, v82
    v_add_u32 v6, {64 * ROWS}, v82
    s_waitcnt lgkmcnt(0)
    v_and_b32 v81, 0xffff, v78
    v_and_b32 v5, 0xffff, v79
    v_min_u32 v73, 63, v81
    v_min_u32 v74, 63, v5
    v_sub_u32 v73, 63, v73
    v_sub_u32 v74, 63, v74
    v_lshlrev_b32 v73, 2, v73
    v_lshlrev_b32 v74, 2, v74
    ds_add_rtn_u32 v75, v73, v9 offset:{DH}
    s_mov_b32 exec_hi, 0xf               ; nodes 64..99
    ds_add_rtn_u32 v76, v74, v9 offset:{DH}
    s_mov_b64 exec, -1
    ds_read_b32 v77, v8 offset:{DH}
    ds_write_b32 v8, v81 offset:{DEGT}
    ds_write_b32 v8, v5 offset:{DEGT + 256}
    v_max_u32 v72, v81, v5
    v_cmp_lt_u32 vcc, {LCAP}, v72
    v_mov_b32 v71, 0
    s_mov_b64 exec, vcc
    ds_max_u32 v71, v72 offset:{MISC + 8}
    s_mov_b64 exec, -1
    v_lshrrev_b32 v83, 16, v78
    v_lshrrev_b32 v7, 16, v79
    s_waitcnt lgkmcnt(3)
    v_mov_b32 v72, v77
        """)
        wave_scan(a, [72])
        a(f"""
    v_sub_u32 v72, v72, v77
    ds_bpermute_b32 v73, v73, v72
    ds_bpermute_b32 v74, v74, v72
    s_waitcnt lgkmcnt(0)
    v_add_lshl_u32 v73, v73, v75, 4
    v_add_lshl_u32 v74, v74, v76, 4
    ds_write_b128 v73, v[80:83] offset:{INFO}
    s_mov_b32 exec_hi, 0xf
    ds_write_b128 v74, v[4:7] offset:{INFO}
    s_mov_b64 exec, -1
    s_setprio 0
{L}_FRDONE:
        """)

    def fastscatter(L):
        a(f"s_movk_i32 s24, {LROW // 4}")
        for k in range(6):
            m, o = k >> 1, k & 1
            r0 = vRec + 4 * m + 2 * o
            a(f"s_mov_b64 exec, s[{sM+2*k}:{sM+2*k+1}]")
            if k in (2, 4):
                a(f"s_cbranch_execz {L}_FSDONE")
            a(f"v_min_u16 v8, {LCAP - 1}, v{vRank+k}")
            a(f"v_mul_u32_u24 v9, s24, v{vPos+k}")
            a(f"v_mad_u32_u16 v9, v8, 8, v9")
            a(f"ds_write_b64 v9, v[{r0}:{r0+1}] offset:{LIST}")
        a(f"{L}_FSDONE:")
        a("s_mov_b64 exec, -1")

    def posread(L):
        for k in range(6):
            a(f"s_mov_b64 exec, s[{sM+2*k}:{sM+2*k+1}]")
            if k in (2, 4):
                a(f"s_cbranch_execz {L}_POSDONE")
            a(f"ds_read_b32 v{vPos+k}, v{vPos+k} offset:{POS}")
        a(f"{L}_POSDONE:")
        a("s_mov_b64 exec, -1")

    def scatter(L):
        for k in range(6):
            m, o = k >> 1, k & 1
            r0 = vRec + 4 * m + 2 * o
            a(f"s_mov_b64 exec, s[{sM+2*k}:{sM+2*k+1}]")
            if k in (2, 4):
                a(f"s_cbranch_execz {L}_SCATDONE")
            a(f"v_mad_u32_u16 v{vPos+k}, v{vRank+k}, 8, v{vPos+k}")
            a(f"ds_write_b64 v{vPos+k}, v[{r0}:{r0+1}]")
        a(f"{L}_SCATDONE:")
        a("s_mov_b64 exec, -1")

    hist("K2A")
    a("s_waitcnt lgkmcnt(0)")
    a("s_barrier")
    stamp(a, 10)
    diag(a, 5, "K1_DG5")
    assert U in (2, 4, 6, 8)
    U0 = min(U, 4)
    PB = [100, 104, 108, 112, 80, 84, 88, 92][:U]
    PR = [116, 118, 120, 122, 4, 6, 8, 10][:U]
    vE = 124
    vI = 52
    vAddr, vDeg, vH = vI, vI + 1, vI + 2
    vL16, vK1, vG16, vWT, vQI, vTmp = 56, 57, 58, 59, 60, 61
    vQ, vW, vT, vX, vN, vD = 20, 28, 36, 44, 64, 72
    sQ, sS, sD0, sD3, sSafe, sSl, sSEL = 27, 28, 29, 30, 31, 32, 33

    def main_consts(n=U):
        a(f"""
    v_lshlrev_b32 v{vL16}, 4, v2
    v_mov_b32 v{vG16}, {INFO}
    v_lshl_add_u32 v{vG16}, v3, 4, v{vG16}
    v_add_u32 v{vWT}, {WT}, v{vL16}
    s_mov_b32 s{sSEL}, 0x00003f80
    s_cmp_lt_u32 s3, {OPT['nw']}
    s_cselect_b32 s{sQ}, s3, 50
        """)
        for j in range(n):
            a(f"v_mov_b32 v{PR[j]+1}, v{vL16}")

    def item_loads(n=U):
        for j in range(n):
            a(f"ds_read_b32 v{PR[j]}, v{vAddr} offset:{8*j}")
        a(f"""
    ds_read_b32 v{vE}, v{vAddr} offset:4
    v_add3_u32 v{vH}, v{vH}, s25, v{vL16}
    v_readlane_b32 s{sD0}, v{vDeg}, 0
    v_readlane_b32 s{sD3}, v{vDeg}, 48
    v_readlane_b32 s35, v{vDeg}, 16
    v_readlane_b32 s71, v{vDeg}, 32
        """)

    def item_issue(extra, j0=0, j1=U):
        for j in range(j0, j1):
            a(f"s_waitcnt lgkmcnt({j1 - 1 - j + extra})")
            a(f"buffer_load_dwordx4 v[{PB[j]}:{PB[j]+3}], v[{PR[j]}:{PR[j]+1}], s[{sP}:{sP+3}], s{sSl} idxen offen {OPT['pld']}")
        if j1 == U:
            a(f"ds_read_b32 v{PR[0]}, v{vAddr} offset:{8*U}")

    fastrank("K2A", 9)
    fastscatter("K2A")
    poll("K2_PB", 15, 16, 84)
    srd(a, sP, 22, 23, N, stride=256)
    a(f"""
    v_mov_b32 v4, 0
    s_mov_b32 s{sNBATCH}, 1
    v_lshlrev_b32 v5, 4, v1
    s_mov_b32 s24, {PMAX_OFF}
    s_waitcnt lgkmcnt(0)
    s_barrier
    """)
    stamp(a, 7)
    cstamp(a, 0)
    diag(a, 2, "K2_DG1")
    a(f"""
    buffer_load_dwordx4 v[{vT}:{vT+3}], v5, s[{sWS}:{sWS+3}], s24 offen sc1
    ds_read_b128 v[8:11], v4 offset:{MISC}
    ds_read_b32 v12, v4 offset:{MISC + 20}
    s_lshl_b32 s24, s3, 6
    v_lshl_add_u32 v{vI}, v3, 4, s24
    ds_read_b128 v[{vI}:{vI+3}], v{vI} offset:{INFO}
    s_mov_b32 s25, 0
    s_mov_b32 s{sSl}, 0
    s_waitcnt lgkmcnt(1)
    v_or_b32 v6, v10, v11
    v_readfirstlane_b32 s28, v12
    v_readfirstlane_b32 s24, v6
    s_cmp_lg_u32 s28, 0
    s_cbranch_scc1 K2_END
    s_cmp_lg_u32 s24, 0
    s_cbranch_scc1 K2_SLOW0
    """)

    def pmax_reduce():
        a(f"v_max3_f32 v{vT}, v{vT}, v{vT+1}, v{vT+2}")
        a(f"v_max_f32 v{vT}, v{vT}, v{vT+3}")
        for st in ("row_shr:1 row_mask:0xf", "row_shr:2 row_mask:0xf", "row_shr:4 row_mask:0xf", "row_shr:8 row_mask:0xf",
                   "row_bcast:15 row_mask:0xa", "row_bcast:31 row_mask:0xc"):
            a("s_nop 1")
            a(f"v_max_f32_dpp v{vT}, v{vT}, v{vT} {st} bank_mask:0xf")
        a("s_nop 0")
        a(f"v_readlane_b32 s{sPM}, v{vT}, 63")

    main_consts()
    a(f"""
    s_waitcnt lgkmcnt(0)
    v_mov_b32 v{vK1}, v9
    ds_read_b128 v[{vW}:{vW+3}], v{vWT}
    ds_read_b128 v[{vW+4}:{vW+7}], v{vWT} offset:256
    """)
    item_loads()
    a(f"""
    ds_read_b128 v[{vQ}:{vQ+3}], v{vH}
    ds_read_b128 v[{vQ+4}:{vQ+7}], v{vH} offset:256
    """)
    item_issue(3)
    a(f"s_waitcnt vmcnt({U})")
    pmax_reduce()
    a(f"""
    s_nop 1
    v_add_f32 v{vK1}, s{sPM}, v{vK1}
    v_fma_f32 v{vK1}, v{vK1}, 4.0, 4.0
    {"s_cmp_ge_u32 s3, " + str(OPT['nw']) if OPT['nw'] < 16 else ""}
    {"s_cbranch_scc1 K2_DONE" if OPT['nw'] < 16 else ""}
    s_branch K2_GO
K2_SLOW0:
    s_waitcnt vmcnt(0)
    """)
    pmax_reduce()
    a(f"""
    v_lshrrev_b32 v6, 2, v0              ; chunk
    v_lshlrev_b32 v7, 10, v6
    s_lshl_b32 s24, s2, 2
    s_add_u32 s24, s24, {TAB_OFF}
    v_mul_u32_u24 v126, {CHS}, v6
    v_cmp_lt_u32 vcc, 24, v124
    s_mov_b32 s{sRECB}, {REC_OFF}
    s_mov_b64 exec, vcc
    buffer_load_dword v6, v7, s[{sWS}:{sWS+3}], s24 offen sc1
    s_waitcnt vmcnt(0)
    v_lshrrev_b32 v124, 16, v6
    v_and_b32 v6, 0xffff, v6
    v_add_u32 v6, v6, v127
    v_lshl_add_u32 v126, v6, 3, v126
    ds_max_u32 v4, v124 offset:{MISC + 12}
    s_mov_b64 exec, -1
    v_sub_u32 v127, v124, v127
    """)
    scanrank("K2S", 8, 9, degt=False)
    a("s_waitcnt lgkmcnt(0)")
    a("s_barrier")
    posread("K2S")
    a("s_waitcnt lgkmcnt(0)")
    scatter("K2S")
    a("""
    s_branch K2_MAIN
K2_BATCH:
    s_waitcnt vmcnt(0)
    """)
    hist("K2B")
    a("s_waitcnt lgkmcnt(0)")
    a("s_barrier")
    scanrank("K2B", 8, 9)
    a("s_waitcnt lgkmcnt(0)")
    a("s_barrier")
    posread("K2B")
    a("s_waitcnt lgkmcnt(0)")
    scatter("K2B")
    a(f"""
K2_MAIN:
    v_mov_b32 v4, 0
    s_waitcnt lgkmcnt(0)
    s_barrier
    ds_read_b128 v[{vI}:{vI+3}], v4 offset:{MISC}
    """)
    main_consts()
    a(f"""
    s_waitcnt lgkmcnt(0)
    v_readfirstlane_b32 s24, v{vI+3}
    v_add_f32 v{vK1}, s{sPM}, v{vI+1}
    v_fma_f32 v{vK1}, v{vK1}, 4.0, 4.0
    s_add_u32 s24, s24, 23
    s_mul_i32 s24, s24, 2731
    s_lshr_b32 s{sNBATCH}, s24, 16
    s_cmp_le_u32 s{sNBATCH}, 1
    s_cbranch_scc1 K2_ITEM
    v_mov_b32 v{vK1}, 0x7f800000         ; several batches: every item takes the plain path
K2_ITEM:
    s_cmp_ge_u32 s{sQ}, 50
    s_cbranch_scc1 K2_DONE
    s_cmp_ge_u32 s{sQ}, 25
    s_cselect_b32 s24, 25, 0
    s_cselect_b32 s25, 512, 0
    s_cselect_b32 s{sSl}, {PS}, 0
    s_sub_u32 s24, s{sQ}, s24
    s_lshl_b32 s24, s24, 6
    v_add_u32 v{vTmp}, s24, v{vG16}
    ds_read_b128 v[{vI}:{vI+3}], v{vTmp}
    v_add_u32 v{vTmp}, s25, v{vWT}
    ds_read_b128 v[{vW}:{vW+3}], v{vTmp}
    ds_read_b128 v[{vW+4}:{vW+7}], v{vTmp} offset:256
    s_mov_b32 s{sP+2}, {N}
    s_waitcnt lgkmcnt(2)
    """)
    item_loads()
    a(f"""
    ds_read_b128 v[{vQ}:{vQ+3}], v{vH}
    ds_read_b128 v[{vQ+4}:{vQ+7}], v{vH} offset:256
    """)
    item_issue(3)
    a(f"""
K2_GO:
    v_cvt_f32_u32 v{vTmp}, v{vDeg}
    v_cvt_f32_u32 v{vI+3}, v{vI+3}
    v_fma_f32 v{vTmp}, v{vTmp}, v{vK1}, v{vI+3}
    s_max_u32 s24, s{sD0}, s{sD3}
    s_min_u32 s{sD3}, s{sD0}, s{sD3}
    v_cmp_nge_f32 vcc, {BOUND:#x}, v{vTmp}
    s_max_u32 s{sD0}, s35, s71
    s_min_u32 s35, s35, s71
    s_max_u32 s{sD0}, s{sD0}, s24
    s_min_u32 s{sD3}, s{sD3}, s35
    s_min_u32 s{sD0}, s{sD0}, {LISTCAP}
    s_sub_u32 s{sSafe}, s{sD0}, {U}
    s_cmp_gt_i32 s{sSafe}, 0
    s_cselect_b32 s{sP+2}, {N}, 0
    s_mov_b32 s{sS}, 0
    {"s_setprio 0" if OPT["prio"] else ""}
    s_cbranch_vccnz K2_P_START
    s_cmp_lg_u32 s{sD3}, 0
    s_cbranch_scc1 K2_F_FIRST
    """)
    for r in range(8):
        a(f"v_mov_b32 v{vN+r}, 0")
        a(f"v_mov_b32 v{vD+r}, 1.0")
    a(f"""
    s_cmp_eq_u32 s{sD0}, 0
    s_cbranch_scc1 K2_F_FLUSH
    v_cmpx_lt_u32 vcc, 0, v{vDeg}
    """)

    def step(j, mode):
        P = PB[j]
        T = vN if mode == "first" else vT
        eh = j & 1
        jn = (j + 1) % U
        osel = "op_sel_hi:[1,0,1]" if eh == 0 else "op_sel:[0,1,0] op_sel_hi:[1,1,1]"
        a("s_waitcnt lgkmcnt(0)")
        for r in range(0, 8, 2):
            a(f"v_pk_fma_f32 v[{T+r}:{T+r+1}], v[{vW+r}:{vW+r+1}], v[{vE}:{vE+1}], v[{vQ+r}:{vQ+r+1}] {osel}")
        a(f"ds_read_b32 v{vE + (eh ^ 1)}, v{vAddr} offset:{8*(j+1)+4}")
        a(f"s_waitcnt vmcnt({U-1})")
        if mode != "plain":
            for p in range(4):
                a(f"v_dot2_f32_bf16 v{T+p}, v{P+p}, s{sSEL}, v{T+p}")
            a(f"v_pk_add_f32 v[{T+4}:{T+5}], v[{P}:{P+1}], v[{T+4}:{T+5}]")
            a(f"v_pk_add_f32 v[{T+6}:{T+7}], v[{P+2}:{P+3}], v[{T+6}:{T+7}]")
        else:
            for p in range(4):
                a(f"v_lshlrev_b32 v{vX+p}, 16, v{P+p}")
            a(f"v_pk_add_f32 v[{T+4}:{T+5}], v[{P}:{P+1}], v[{T+4}:{T+5}]")
            a(f"v_pk_add_f32 v[{T+6}:{T+7}], v[{P+2}:{P+3}], v[{T+6}:{T+7}]")
            a(f"v_pk_add_f32 v[{T}:{T+1}], v[{vX}:{vX+1}], v[{T}:{T+1}]")
            a(f"v_pk_add_f32 v[{T+2}:{T+3}], v[{vX+2}:{vX+3}], v[{T+2}:{T+3}]")
        a(f"buffer_load_dwordx4 v[{P}:{P+3}], v[{PR[j]}:{PR[j]+1}], s[{sP}:{sP+3}], s{sSl} idxen offen {OPT['pld']}")
        a(f"ds_read_b32 v{PR[jn]}, v{vAddr} offset:{8*(j+1+U)}")
        a(f"s_add_u32 s{sS}, s{sS}, 1")
        a(f"s_cmp_lt_i32 s{sS}, s{sSafe}")
        a(f"s_cselect_b32 s{sP+2}, {N}, 0")
        a(f"s_cmp_ge_u32 s{sS}, s{sD3}")
        for r in (4, 5, 6, 7, 0, 1, 2, 3):
            a(f"v_exp_f32 v{vX+r}, v{T+r}")
        order = (4, 6, 0, 2)
        if mode == "first":
            for r in order:
                a(f"v_pk_add_f32 v[{vD+r}:{vD+r+1}], v[{vX+r}:{vX+r+1}], 1.0 op_sel_hi:[1,0]")
        elif mode == "fast":
            for r in order:
                a(f"v_pk_fma_f32 v[{vN+r}:{vN+r+1}], v[{vN+r}:{vN+r+1}], v[{vX+r}:{vX+r+1}], v[{vN+r}:{vN+r+1}]")
            for r in order:
                a(f"v_pk_fma_f32 v[{vN+r}:{vN+r+1}], v[{T+r}:{T+r+1}], v[{vD+r}:{vD+r+1}], v[{vN+r}:{vN+r+1}]")
            for r in order:
                a(f"v_pk_fma_f32 v[{vD+r}:{vD+r+1}], v[{vD+r}:{vD+r+1}], v[{vX+r}:{vX+r+1}], v[{vD+r}:{vD+r+1}]")
        else:
            for r in order:
                a(f"v_pk_add_f32 v[{vX+r}:{vX+r+1}], v[{vX+r}:{vX+r+1}], 1.0 op_sel_hi:[1,0]")
            for r in (4, 5, 6, 7, 0, 1, 2, 3):
                a(f"v_rcp_f32 v{vX+r}, v{vX+r}")
            for r in order:
                a(f"v_pk_fma_f32 v[{vN+r}:{vN+r+1}], v[{T+r}:{T+r+1}], v[{vX+r}:{vX+r+1}], v[{vN+r}:{vN+r+1}]")
        if j == U - 1:
            a(f"v_add_u32 v{vAddr}, {8*U}, v{vAddr}")
        if j == U0 - 1 and OPT["prio"]:
            a("s_setprio 1")

    def loop(pfx, mode):
        tails = []
        if mode == "fast":
            a(f"{pfx}_FIRST:")
            step(0, "first")
            a(f"s_cbranch_scc1 {pfx}_T0")
            seq = list(range(1, U)) + [0]
        else:
            seq = list(range(U))
        for j in seq:
            a(f"{pfx}_S{j}:")
            step(j, mode)
            if j == seq[-1]:
                a(f"s_cbranch_scc0 {pfx}_S{seq[0]}")
            else:
                a(f"s_cbranch_scc1 {pfx}_T{j}")
        for j in [seq[-1]] + seq[:-1]:
            a(f"""
{pfx}_T{j}:
    {"s_setprio 2" if OPT["prio"] else ""}
    s_cmp_ge_u32 s{sS}, s{sD0}
    s_cbranch_scc1 {pfx}_FLUSH
    v_cmpx_lt_u32 vcc, s{sS}, v{vDeg}
    s_branch {pfx}_S{(j+1) % U}
            """)

    loop("K2_F", "fast")
    a(f"""
K2_F_FLUSH:
    s_mov_b64 exec, 1
    v_mov_b32 v{vQI}, 0
    v_mov_b32 v{vTmp}, 1
    ds_add_rtn_u32 v{vQI}, v{vQI}, v{vTmp} offset:{MISC + 16}
    s_mov_b64 exec, -1
    """)
    for r in range(8):
        a(f"v_rcp_f32 v{vX+r}, v{vD+r}")
    for r in range(0, 8, 2):
        a(f"v_pk_mul_f32 v[{vN+r}:{vN+r+1}], v[{vN+r}:{vN+r+1}], v[{vX+r}:{vX+r+1}]")
    a("K2_WRH:")
    for r in range(4):
        a(f"v_cvt_pk_bf16_f32 v{vX+r}, v{vN+2*r}, v{vN+2*r+1}")
    a(f"""
    ds_write_b128 v{vH}, v[{vX}:{vX+3}]
K2_NEXT:
    s_waitcnt lgkmcnt(0)
    v_readfirstlane_b32 s{sQ}, v{vQI}
    s_branch K2_ITEM
K2_P_START:
    """)
    for r in range(8):
        a(f"v_mov_b32 v{vN+r}, 0")
    a(f"""
    s_cmp_eq_u32 s{sD0}, 0
    s_cbranch_scc1 K2_P_FLUSH
    v_cmpx_lt_u32 vcc, 0, v{vDeg}
    """)
    loop("K2_P", "plain")
    a(f"""
K2_P_FLUSH:
    s_mov_b64 exec, 1
    v_mov_b32 v{vQI}, 0
    v_mov_b32 v{vTmp}, 1
    ds_add_rtn_u32 v{vQI}, v{vQI}, v{vTmp} offset:{MISC + 16}
    s_mov_b64 exec, -1
    s_cmp_le_u32 s{sNBATCH}, 1
    s_cbranch_scc1 K2_WRH
    """)
    a(f"""
    s_mul_i32 s24, s2, {SCR_STRIDE}
    s_add_u32 s24, s24, {SCR_OFF - QH}
    s_mov_b32 s{sSCR}, s22
    s_mov_b32 s{sSCR+1}, s23
    s_mov_b32 s{sSCR+2}, {WS_USED}
    s_mov_b32 s{sSCR+3}, 0x00020000
    v_add_u32 v{vH}, v{vH}, v{vL16}
    s_cmp_eq_u32 s{sBATCH}, 0
    s_cbranch_scc1 K2_P_ST
    buffer_load_dwordx4 v[{vX}:{vX+3}], v{vH}, s[{sSCR}:{sSCR+3}], s24 offen
    buffer_load_dwordx4 v[{vX+4}:{vX+7}], v{vH}, s[{sSCR}:{sSCR+3}], s24 offen offset:16
    s_waitcnt vmcnt(0)
    """)
    for r in range(0, 8, 2):
        a(f"v_pk_add_f32 v[{vN+r}:{vN+r+1}], v[{vN+r}:{vN+r+1}], v[{vX+r}:{vX+r+1}]")
    a(f"""
K2_P_ST:
    buffer_store_dwordx4 v[{vN}:{vN+3}], v{vH}, s[{sSCR}:{sSCR+3}], s24 offen
    buffer_store_dwordx4 v[{vN+4}:{vN+7}], v{vH}, s[{sSCR}:{sSCR+3}], s24 offen offset:16
    s_waitcnt vmcnt(0)
    s_branch K2_NEXT
    """)
    vF = 32
    a(f"""
K2_DONE:
    s_add_u32 s{sBATCH}, s{sBATCH}, 1
    s_cmp_ge_u32 s{sBATCH}, s{sNBATCH}
    s_cbranch_scc1 K2_FINAL
    s_waitcnt vmcnt(0)
    s_add_u32 s{sRECB}, s{sRECB}, 192
    v_subrev_u32 v127, 24, v127
    """)
    rec_loads()
    a(f"""
    s_barrier
    v_mov_b32 v4, 0
    v_lshlrev_b32 v5, 2, v0
    v_cmp_gt_u32 vcc, {(DEGT - CNT) // 4}, v0
    s_mov_b64 exec, vcc
    ds_write_b32 v5, v4 offset:{CNT}
    s_mov_b64 exec, 1
    v_mov_b32 v5, {MISC}
    v_mov_b32 v6, {OPT['nw']}
    ds_write_b32 v5, v6 offset:16
    s_mov_b64 exec, -1
    s_waitcnt lgkmcnt(0)
    s_barrier
    s_branch K2_BATCH
K2_FINAL:
    """)
    stamp(a, 8)
    cstamp(a, 1)
    a(f"""
    s_waitcnt vmcnt(0)
    s_and_b32 s24, s3, 3                 ; cp
    s_lshl_b32 s25, s24, 14
    s_add_u32 s25, s25, {W2F_OFF}
    v_lshlrev_b32 v4, 4, v1
    """)
    for f in range(16):
        if f and f % 4 == 0:
            a("s_add_u32 s25, s25, 4096")
        a(f"buffer_load_dwordx4 v[{vF+4*f}:{vF+4*f+3}], v4, s[{sWS}:{sWS+3}], s25 offen offset:{1024*(f%4)} sc1")
    srd(a, sB2, 18, 19, 256)
    srd(a, sOUT, 20, 21, N * 256)
    a(f"""
    s_lshl_b32 s24, s24, 6
    v_lshlrev_b32 v5, 4, v3              ; g*16
    buffer_load_dwordx4 v[8:11], v5, s[{sB2}:{sB2+3}], s24 offen
    s_lshr_b32 s27, s3, 2
    s_lshl_b32 s27, s27, 4               ; first row tile * 16
    v_add_u32 v6, s27, v2
    v_mul_u32_u24 v7, {ROWS}, v6
    v_add_u32 v7, v7, v5
    v_add_u32 v7, {QH}, v7
    v_lshlrev_b32 v20, 2, v6
    v_add_u32 v21, s{sROW0}, v6
    v_lshl_add_u32 v21, v21, 8, v5
    s_mov_b32 s34, {NLN2:#x}
    s_barrier
    s_cmp_le_u32 s{sNBATCH}, 1
    s_cbranch_scc1 K2_GEMM2
    s_mul_i32 s28, s2, {SCR_STRIDE}
    s_add_u32 s28, s28, {SCR_OFF}
    s_mov_b32 s{sSCR}, s22
    s_mov_b32 s{sSCR+1}, s23
    s_mov_b32 s{sSCR+2}, {WS_USED}
    s_mov_b32 s{sSCR+3}, 0x00020000
    v_and_b32 v22, 1, v3
    v_lshlrev_b32 v22, 9, v22
    v_lshl_add_u32 v22, v2, 4, v22       ; s*512 + l*16
    v_lshl_add_u32 v23, v2, 4, v22       ; s*512 + l*32
    s_mov_b32 s29, s3
K2_CONV:
    s_mul_i32 s30, s29, {ROWS}
    s_add_u32 s31, s30, s28
    buffer_load_dwordx4 v[100:103], v23, s[{sSCR}:{sSCR+3}], s31 offen
    buffer_load_dwordx4 v[104:107], v23, s[{sSCR}:{sSCR+3}], s31 offen offset:16
    s_add_u32 s30, s30, {QH}
    v_add_u32 v24, s30, v22
    s_waitcnt vmcnt(0)
    v_cvt_pk_bf16_f32 v100, v100, v101
    v_cvt_pk_bf16_f32 v101, v102, v103
    v_cvt_pk_bf16_f32 v102, v104, v105
    v_cvt_pk_bf16_f32 v103, v106, v107
    ds_write_b128 v24, v[100:103]
    s_add_u32 s29, s29, 16
    s_cmp_lt_u32 s29, {NB}
    s_cbranch_scc1 K2_CONV
    s_waitcnt lgkmcnt(0)
    s_barrier
K2_GEMM2:
    """)
    stamp(a, 9)
    diag(a, 3, "K2_DG3")
    vHB = 96
    vO = 24
    for rt in range(2):
        off = rt * 64 * ROWS
        if rt == 1:
            a("s_cmp_ge_u32 s3, 12")
            a("s_cbranch_scc1 K2_FIN")
            a(f"v_add_u32 v7, {off}, v7")
            a(f"v_add_u32 v21, {64 * 256}, v21")
        a(f"ds_read_b32 v22, v20 offset:{DEGT + rt * 256}")
        for ks in range(8):
            a(f"ds_read_b128 v[{vHB+4*ks}:{vHB+4*ks+3}], v7 offset:{(ks >> 2) * 512 + (ks & 3) * 64}")
        if rt == 0:
            a("s_waitcnt vmcnt(0)")
            for p in range(4):
                a(f"v_lshlrev_b32 v{12+2*p}, 16, v{8+p}")
                a(f"v_and_b32 v{13+2*p}, 0xffff0000, v{8+p}")
        for ks in range(8):
            a(f"s_waitcnt lgkmcnt({7-ks})")
            for aa in range(2):
                f = vF + 4 * (aa * 8 + ks)
                c = "0" if ks == 0 else f"v[{vO+4*aa}:{vO+4*aa+3}]"
                a(f"v_mfma_f32_16x16x32_bf16 v[{vO+4*aa}:{vO+4*aa+3}], v[{f}:{f+3}], v[{vHB+4*ks}:{vHB+4*ks+3}], {c}")
        a("v_cvt_f32_u32 v22, v22")
        a(f"v_cmp_gt_u32 vcc, {NB - 64 * rt}, v6")
        a("s_nop 5")
        for r in range(8):
            a(f"v_mul_f32 v{vO+r}, s34, v{vO+r}")
        for r in range(8):
            a(f"v_fmac_f32 v{vO+r}, v22, v{12+r}")
        for r in range(4):
            a(f"v_cvt_pk_bf16_f32 v{vHB+r}, v{vO+2*r}, v{vO+2*r+1}")
        a("s_mov_b64 exec, vcc")
        a(f"buffer_store_dwordx4 v[{vHB}:{vHB+3}], v21, s[{sOUT}:{sOUT+3}], s24 offen {OPT['ost']}")
        a("s_mov_b64 exec, -1")
        if rt == 0:
            a("s_nop 1")
    a("K2_FIN:")
    if OPT["stamps"]:
        a("s_waitcnt vmcnt(0)")
    stamp(a, 11)
    stamp_flush(a, 0)
    diag_flush(a)
    a("""
K2_END:
    s_endpgm
    """)
    return a.text(), 128, 102


HEADER = """; Kernarg layout for this problem (88 bytes, ptrs only, base s[0:1]):
"""


def kd(name, vgpr, sgpr):
    return f""".amdhsa_kernel {name}
  .amdhsa_next_free_vgpr {vgpr}
  .amdhsa_next_free_sgpr {sgpr}
  .amdhsa_accum_offset {(vgpr + 3) // 4 * 4}
  .amdhsa_group_segment_fixed_size 0
  .amdhsa_kernarg_size 88
  .amdhsa_user_sgpr_count 2
  .amdhsa_user_sgpr_kernarg_segment_ptr 1
  .amdhsa_system_sgpr_workgroup_id_x 1
.end_amdhsa_kernel
"""


def build():
    k2, v2, s2 = gen_k2()
    n2 = "gather_scatter__edge_featured_mpnn_mpnn__graph_kernel"
    out = HEADER
    ks = [(n2, k2, v2, s2)]
    if OPT["diag"] or OPT["list"]:
        out += f"; @launch kernel={n2} grid=(256,1,1) block=(1024,1,1) lds={K_LDS}\n"
    else:
        out += f"; @launch grid=(256,1,1) block=(1024,1,1) lds={K_LDS}\n"
    if OPT["diag"]:
        out += "; @launch kernel=diag_kernel grid=(1,1,1) block=(64,1,1) lds=0\n"
        ks.append(("diag_kernel",) + gen_diag())
    out += '.amdgcn_target "amdgcn-amd-amdhsa--gfx950"\n.text\n'
    for n, k, _, _ in ks:
        out += f".globl {n}\n.p2align 8\n.type {n},@function\n{n}:\n" + k
    out += '.section .rodata,"a"\n'
    for n, _, v, sg in ks:
        out += ".p2align 6\n" + kd(n, v, sg)
    return out


if __name__ == "__main__":
    path = sys.argv[1] if len(sys.argv) > 1 else "gather_scatter__edge_featured_mpnn_mpnn__graph.s"
    for kv in sys.argv[2:]:
        k, v = kv.split("=")
        OPT[k] = int(v) if v.lstrip('-').isdigit() else v.replace('+', ' ')
    open(path, "w").write(build())
    print("wrote", path, "LDS", K_LDS)
```

```python
import sys

N = 25000; E = 400000
NB = 98
CH = 1564
CHS = 12544
PS = N * 256
P_OFF = 0
CELL_OFF = 0x0C40000
REC_OFF = 0x1C40000
TAB_OFF = 0x1F50000
W2F_OFF = 0x1F90000
PMAX_OFF = 0x1FA0000
FLAG_OFF = 0x1FB0000
SCR_OFF = 0x2000000
SCR_STRIDE = 104448
WS_USED = SCR_OFF + 256 * SCR_STRIDE
assert 2 * PS <= CELL_OFF and REC_OFF + 256 * CHS <= TAB_OFF
NLOG2E = 0xbfb8aa3b
NLN2 = 0xbf317218
BOUND = 0x43e00000

STAMP_OFF = 0x3c00000
OPT = dict(U=4, stamps=False, pst="", rst="", prio=1, warm=1, reclate=0, tlb=0, diag=0, ost="sc1", pld="sc1", nw=16, sleep=2, list=0)


class A:
    def __init__(self):
        self.l = []

    def __call__(self, s):
        for x in s.strip("\n").split("\n"):
            x = x.rstrip()
            if not x.strip():
                continue
            if x.strip().endswith(":") and not x.strip().startswith(";"):
                self.l.append(x.strip())
            else:
                self.l.append("    " + x.strip())

    def text(self):
        return "\n".join(self.l) + "\n"


def stamp(a, i):
    if OPT["stamps"]:
        a(f"""
        s_memrealtime s[98:99]
        s_waitcnt lgkmcnt(0)
        s_mov_b32 s{84+i}, s98
        """)


DIAG_OFF = 0x3b00000


def diag(a, slot, lab, cyc=False):
    if OPT["diag"]:
        a(f"""
        s_cmp_lg_u32 s3, 0
        s_cbranch_scc1 {lab}
        {"s_memtime" if cyc else "s_memrealtime"} s[98:99]
        s_waitcnt lgkmcnt(0)
        s_mov_b32 s{84 + slot}, s98
{lab}:
        """)


def diag_flush(a):
    if OPT["diag"]:
        a(f"""
        s_cmp_lg_u32 s3, 0
        s_cbranch_scc1 K2_END
        s_lshl_b32 s96, s2, 5
        s_add_u32 s96, s96, {DIAG_OFF}
        s_add_u32 s96, s22, s96
        s_addc_u32 s97, s23, 0
        v_mov_b32 v0, 0
        """)
        for i in range(8):
            a(f"v_mov_b32 v1, s{84 + i}")
            a(f"global_store_dword v0, v1, s[96:97] offset:{4 * i}")


def gen_diag():
    a = A()
    m = OPT["diag"] - 100
    op = "v_max_u32" if m // 10 == 0 else "v_min_u32"
    slot = m % 10
    a(f"""
    s_cmp_lg_u32 s2, 0
    s_cbranch_scc1 DG_END
    s_load_dwordx2 s[22:23], s[0:1], 80
    s_memrealtime s[10:11]
    v_lshlrev_b32 v1, 5, v0
    s_waitcnt lgkmcnt(0)
    s_add_u32 s22, s22, {DIAG_OFF}
    s_addc_u32 s23, s23, 0
    """)
    for k in range(4):
        a(f"global_load_dword v{2+k}, v1, s[22:23]")
        a(f"global_load_dword v{6+k}, v1, s[22:23] offset:{4*slot}")
        a("v_add_u32 v1, 2048, v1")
    a("s_waitcnt vmcnt(0)")
    for k in range(1, 4):
        a(f"v_min_u32 v2, v2, v{2+k}")
        a(f"{op} v6, v6, v{6+k}")
    for st in ("row_shr:1 row_mask:0xf", "row_shr:2 row_mask:0xf", "row_shr:4 row_mask:0xf", "row_shr:8 row_mask:0xf",
               "row_bcast:15 row_mask:0xa", "row_bcast:31 row_mask:0xc"):
        a("s_nop 1")
        a(f"v_min_u32_dpp v2, v2, v2 {st} bank_mask:0xf")
        a(f"{op}_dpp v6, v6, v6 {st} bank_mask:0xf")
    a("""
    s_nop 1
    v_readlane_b32 s12, v6, 63
    v_readlane_b32 s13, v2, 63
    s_sub_u32 s12, s12, s13
    s_lshl_b32 s12, s12, 2
    s_min_u32 s12, s12, 30000
DG_SPIN:
    s_memrealtime s[14:15]
    s_waitcnt lgkmcnt(0)
    s_sub_u32 s14, s14, s10
    s_cmp_lt_u32 s14, s12
    s_cbranch_scc1 DG_SPIN
DG_END:
    s_endpgm
    """)
    return a.text(), 16, 40


def cstamp(a, i):
    if OPT["stamps"]:
        a(f"""
        s_memtime s[98:99]
        s_waitcnt lgkmcnt(0)
        s_mov_b32 s{96+i}, s98
        """)


def stamp_init(a):
    if OPT["stamps"]:
        for i in range(14):
            a(f"s_mov_b32 s{84+i}, 0")


def stamp_flush(a, kern):
    if OPT["stamps"]:
        a(f"""
        s_mov_b64 exec, -1
        s_mov_b32 s4, s22
        s_mov_b32 s5, s23
        s_mov_b32 s6, 0x8000000
        s_mov_b32 s7, 0x00020000
        s_lshl_b32 s8, s2, 4
        s_add_u32 s8, s8, s3
        s_lshl_b32 s8, s8, 6
        s_add_u32 s8, s8, {STAMP_OFF + kern * 256 * 16 * 64}
        v_mov_b32 v0, 0
        s_mov_b64 exec, 1
        """)
        for i in range(14):
            a(f"v_mov_b32 v1, s{84+i}")
            a(f"buffer_store_dword v1, v0, s[4:7], s8 offen offset:{4*i}")


def srd(a, d, lo, hi, size, stride=0):
    a(f"s_mov_b32 s{d}, s{lo}")
    if stride:
        a(f"s_and_b32 s{d+1}, s{hi}, 0xffff")
        a(f"s_or_b32 s{d+1}, s{d+1}, {stride << 16:#x}")
    else:
        a(f"s_mov_b32 s{d+1}, s{hi}")
    a(f"s_mov_b32 s{d+2}, {size}")
    a(f"s_mov_b32 s{d+3}, 0x00020000")


def wave_scan(a, regs):
    steps = ["row_shr:1 row_mask:0xf", "row_shr:2 row_mask:0xf", "row_shr:4 row_mask:0xf", "row_shr:8 row_mask:0xf",
             "row_bcast:15 row_mask:0xa", "row_bcast:31 row_mask:0xc"]
    for st in steps:
        a("s_nop 1" if len(regs) == 1 else "s_nop 0")
        for r in regs:
            a(f"v_add_u32_dpp v{r}, v{r}, v{r} {st} bank_mask:0xf")


def row_max(a, r):
    for sh in (1, 2, 4, 8):
        a("s_nop 1")
        a(f"v_max_f32_dpp v{r}, v{r}, v{r} row_shr:{sh} row_mask:0xf bank_mask:0xf")


def common_ids(a):
    a("""
    v_lshrrev_b32 v1, 6, v0
    v_and_b32 v2, 15, v0               ; l16
    v_readfirstlane_b32 s3, v1         ; wave
    v_and_b32 v1, 63, v0               ; lane
    v_lshrrev_b32 v3, 4, v1            ; g
    """)


def dma_w_setup(a, vdst, vt, st):
    a(f"""
    s_and_b32 s{st}, s3, 1
    s_lshl_b32 s{st}, s{st}, 7
    v_lshrrev_b32 v{vt}, 5, v1           ; L>>5
    v_mul_u32_u24 v{vt}, 544, v{vt}      ; (L>>5)*512 + (L>>5)<<5
    v_and_b32 v{vdst}, 31, v1
    v_lshlrev_b32 v{vdst}, 4, v{vdst}    ; j*16
    v_xor_b32 v{vdst}, v{vt}, v{vdst}
    v_xor_b32 v{vdst}, s{st}, v{vdst}
    v_xor_b32 v{vdst+1}, 64, v{vdst}
    s_lshl_b32 s{st}, s3, 12
    """)


def dma_w_issue(a, vsrc, srdw, st, st2, goff, wb):
    a(f"s_add_u32 m0, s{st}, {wb}")
    a(f"s_add_u32 s{st2}, s{st}, {goff}")
    for i in range(4):
        a(f"buffer_load_dwordx4 v{vsrc + (i & 1)}, s[{srdw}:{srdw+3}], s{st2} offen offset:{1024 * i} lds")


def dma_x(a, srdx, srow0, vo, vt, st, xb):
    a(f"""
    s_and_b32 s{st}, s3, 1
    s_lshl_b32 s{st}, s{st}, 3
    v_add_u32 v{vt}, s{st}, v3           ; 8*(w&1)+g
    v_xor_b32 v{vt}, v2, v{vt}
    s_lshl_b32 s{st}, s3, 3
    s_add_u32 s{st}, s{st}, s{srow0}
    v_add_u32 v{vo}, s{st}, v3           ; row
    v_lshlrev_b32 v{vo}, 8, v{vo}
    v_lshl_add_u32 v{vo}, v{vt}, 4, v{vo}
    s_lshl_b32 s{st}, s3, 11
    s_add_u32 m0, s{st}, {xb}
    v_xor_b32 v{vt}, 64, v{vo}
    buffer_load_dwordx4 v{vo}, s[{srdx}:{srdx+3}], 0 offen lds
    buffer_load_dwordx4 v{vt}, s[{srdx}:{srdx+3}], 0 offen offset:1024 lds
    """)


def gemm_addr(a, vb, vxa, vt, st, wb, xb):
    a(f"""
    v_lshrrev_b32 v{vt}, 2, v2           ; r
    v_mul_u32_u24 v{vb}, 544, v{vt}      ; r*512 + r*32
    v_lshl_add_u32 v{vb}, v3, 12, v{vb}  ; + g*8*512
    v_and_b32 v{vt}, 1, v3
    v_lshl_add_u32 v{vb}, v{vt}, 7, v{vb} ; + (g&1)<<2<<5
    v_and_b32 v{vt}, 3, v2
    v_lshl_add_u32 v{vb}, v{vt}, 3, v{vb} ; + c*8
    s_and_b32 s{st}, s3, 7
    s_lshl_b32 s{st}, s{st}, 6
    v_xor_b32 v{vb}, s{st}, v{vb}
    v_add_u32 v{vb}, {wb}, v{vb}
    v_xor_b32 v{vb+1}, 32, v{vb}
    v_xor_b32 v{vt}, v2, v3
    v_lshlrev_b32 v{vt}, 4, v{vt}
    v_lshl_add_u32 v{vxa}, v2, 8, v{vt}
    s_lshr_b32 s{st}, s3, 3
    s_lshl_b32 s{st}, s{st}, 14
    s_add_u32 s{st}, s{st}, {xb}
    v_add_u32 v{vxa}, s{st}, v{vxa}
    v_xor_b32 v{vxa+1}, 64, v{vxa}
    v_xor_b32 v{vxa+2}, 0x80, v{vxa}
    v_xor_b32 v{vxa+3}, 0xc0, v{vxa}
    """)


def gemm_parts(a, vW, vX, vAcc, vb, vxa, cinit, acc2=False):
    def wreads():
        for ks in range(4):
            for aa in range(2):
                for h in range(2):
                    r = vW + 16 * aa + 4 * ks + 2 * h
                    a(f"ds_read_b64_tr_b16 v[{r}:{r+1}], v{vb+aa} offset:{ks * 16384 + h * 2048}")

    def xreads(i):
        for ks in range(4):
            r = vX + 16 * (i & 1) + 4 * ks
            a(f"ds_read_b128 v[{r}:{r+3}], v{vxa+ks} offset:{4096 * i}")

    def mf(i):
        for ks in range(4):
            for aa in range(2):
                acc = vAcc + 8 * ((i & 1) if acc2 else i) + 4 * aa
                c = cinit(aa) if ks == 0 else f"v[{acc}:{acc+3}]"
                w = vW + 16 * aa + 4 * ks
                x = vX + 16 * (i & 1) + 4 * ks
                a(f"v_mfma_f32_16x16x32_bf16 v[{acc}:{acc+3}], v[{w}:{w+3}], v[{x}:{x+3}], {c}")
    return wreads, xreads, mf


ROWS = 1040
CNT = 0
DH = CNT + 512
DEGT = DH + 256
HIST = DEGT + 512
POS = HIST + 1024
INFO = POS + 512
MISC = INFO + 1600
WT = MISC + 64
START = WT + 1024
LIST = (START + 1024 + 255) // 256 * 256
LISTCAP = 6144
LCAP = 60
LROW = LCAP * 8
QH = (LIST + LISTCAP * 8 + 128 + 255) // 256 * 256
K_LDS = QH + 100 * ROWS
XB = LIST
STAGE = LIST + 32768
CST = QH + 65536
assert K_LDS <= 163840 and STAGE + CHS <= QH and CST + 32768 <= K_LDS
assert MISC % 16 == 0 and INFO % 16 == 0 and WT % 16 == 0
QCAP = 585
SPIN = 40000


def gen_k2():
    U = OPT["U"]
    a = A()
    vW, vX, vAcc = 20, 52, 84
    vRec, vRank, vPos = 100, 112, 118
    vb, vxa, vB1 = 4, 6, 10
    sX, sW1, sB1, sWS, sP, sOUT, sB2, sSCR = 36, 40, 44, 48, 52, 56, 60, 64
    sDST, sSRC, sE, sW2 = 52, 56, 60, 64
    sROW0 = 26
    sBATCH = 68; sNBATCH = 69; sRECB = 70
    sM = 72
    sDBG = 100; sPM = 34
    sFL = 60
    a(f"""
    s_cmp_ge_u32 s2, 256
    s_cbranch_scc1 K2_END
    s_load_dwordx16 s[4:19], s[0:1], 0
    s_load_dwordx2 s[20:21], s[0:1], 64
    s_load_dwordx2 s[22:23], s[0:1], 80
    s_load_dwordx2 s[{sDBG}:{sDBG+1}], s[0:1], 72
    """)
    stamp_init(a)
    stamp(a, 0)
    common_ids(a)
    a(f"""
    s_mul_i32 s29, s2, {CH}
    s_sub_u32 s30, {E}, s29
    s_min_u32 s30, s30, {CH}
    s_lshr_b32 s30, s30, 1
    v_lshl_add_u32 v6, v0, 1, s29        ; first edge index
    v_lshlrev_b32 v7, 1, v6
    v_lshlrev_b32 v6, 2, v6
    v_cmp_gt_u32 s[32:33], s30, v0
    v_mov_b32 v11, 0
    v_lshlrev_b32 v12, 2, v0
    v_cmp_gt_u32 vcc, {(POS - CNT) // 4}, v0
    s_mov_b64 exec, vcc
    ds_write_b32 v12, v11 offset:{CNT}
    s_mov_b64 exec, 0xff
    v_cmp_eq_u32 vcc, 4, v1
    v_lshlrev_b32 v12, 2, v1
    s_mul_i32 s{sROW0}, s2, {NB}
    v_cndmask_b32 v11, 0, {OPT['nw']}, vcc
    ds_write_b32 v12, v11 offset:{MISC}
    s_mov_b64 exec, -1
    v_lshlrev_b32 v13, 3, v1
    s_mov_b32 s68, {256 * 512}
    s_waitcnt lgkmcnt(0)
    """)
    diag(a, 0, "K1_DG0")
    srd(a, sDST, 10, 11, E * 4)
    srd(a, sE, 6, 7, E * 2)
    srd(a, sSRC, 8, 9, E * 4)
    srd(a, sW1, 12, 13, 257 * 512)
    a(f"""
    s_mov_b64 exec, s[32:33]
    buffer_load_dwordx2 v[118:119], v6, s[{sDST}:{sDST+3}], 0 offen
    buffer_load_dword v10, v7, s[{sE}:{sE+3}], 0 offen
    buffer_load_dwordx2 v[8:9], v6, s[{sSRC}:{sSRC+3}], 0 offen
    s_mov_b64 exec, -1
    buffer_load_dwordx2 v[14:15], v13, s[{sW1}:{sW1+3}], s68 offen
    """)
    a("""
    s_cmp_lg_u32 s3, 14
    s_cbranch_scc1 K1_NOW2L
    """)
    srd(a, sW2, 16, 17, 65536)
    a(f"""
    s_lshr_b32 s68, s2, 2                ; F = G>>6
    s_and_b32 s69, s2, 3                 ; g' = (G&63)>>4
    s_and_b32 s24, s68, 7
    s_lshl_b32 s24, s24, 5
    s_lshl_b32 s69, s69, 2
    s_add_u32 s24, s24, s69
    s_lshl_b32 s24, s24, 8               ; *256 bytes
    s_lshr_b32 s69, s68, 4               ; cp
    s_lshl_b32 s69, s69, 5
    s_bfe_u32 s68, s68, 0x10003          ; a
    s_lshl_b32 s68, s68, 2
    s_add_u32 s68, s68, s69              ; 32cp + 4a
    v_lshrrev_b32 v28, 2, v2
    v_lshlrev_b32 v28, 3, v28            ; 8*(m>>2)
    v_and_b32 v29, 3, v2
    v_add3_u32 v28, v28, v29, s68        ; col
    v_lshlrev_b32 v28, 1, v28
    s_mov_b64 exec, 0xffff
    """)
    for t in range(8):
        if t == 4:
            a("s_add_u32 s24, s24, 4096")
        r = vW + (t >> 1) + 4 * (t & 1)
        a(f"buffer_load_ushort v{r}, v28, s[{sW2}:{sW2+3}], s24 offen offset:{256 * (t & 3)}")
    a(f"""
    s_mov_b64 exec, -1
K1_NOW2L:
    s_cmp_lg_u32 s3, 13
    s_cbranch_scc1 K1_NOWARM
    s_lshr_b32 s24, s2, 3
    s_lshl_b32 s24, s24, 11
    s_add_u32 s24, s24, {128 * 512}
    v_lshlrev_b32 v28, 5, v1
    buffer_load_dword v29, v28, s[{sW1}:{sW1+3}], s24 offen
K1_NOWARM:
    """)
    dma_w_setup(a, 16, 5, 27)
    srd(a, sX, 4, 5, N * 256)
    srd(a, sWS, 22, 23, SCR_OFF)
    srd(a, sB1, 14, 15, 512)
    a("s_barrier")
    a("s_cmp_ge_u32 s3, 14")
    a("s_cbranch_scc1 K1_NOX")
    dma_x(a, sX, sROW0, 5, 6, 24, XB)
    a("K1_NOX:")
    dma_w_issue(a, 16, sW1, 27, 24, 0, QH)
    a(f"""
    s_and_b32 s24, s3, 7
    s_lshl_b32 s24, s24, 6
    v_lshlrev_b32 v5, 3, v3
    buffer_load_dwordx2 v[112:113], v5, s[{sB1}:{sB1+3}], s24 offen
    buffer_load_dwordx2 v[114:115], v5, s[{sB1}:{sB1+3}], s24 offen offset:32
    s_mov_b32 s71, 42800
    s_mov_b32 s34, {NLOG2E:#x}
    s_lshl_b32 s31, s2, 8
    s_add_u32 s31, s31, {CELL_OFF}
    s_cmp_ge_u32 s3, 13
    s_cbranch_scc1 K1_AUX
    s_waitcnt vmcnt(8)
    """)
    a(f"""
    ; 4*log2e*max|w1[256,:]|
    v_and_b32 v14, 0x7fff7fff, v14
    v_and_b32 v15, 0x7fff7fff, v15
    v_pk_max_u16 v14, v14, v15
    s_mov_b64 exec, s[32:33]
    v_mul_u32_u24 v116, s71, v118
    v_mul_u32_u24 v117, s71, v119
    v_lshrrev_b32 v116, 22, v116         ; bucket
    v_lshrrev_b32 v117, 22, v117
    v_mul_u32_u24 v125, {NB}, v116
    v_mul_u32_u24 v126, {NB}, v117
    v_lshlrev_b32 v116, 2, v116
    v_lshlrev_b32 v117, 2, v117
    v_sub_u32 v125, v118, v125           ; dloc
    v_sub_u32 v126, v119, v126
    v_mov_b32 v127, 1
    ds_add_rtn_u32 v118, v116, v127 offset:{HIST}
    ds_add_rtn_u32 v119, v117, v127 offset:{HIST}
    s_mov_b64 exec, -1
    v_lshlrev_b32 v15, 16, v14
    v_and_b32 v14, 0xffff0000, v14
    v_max_u32 v14, v14, v15
    """)
    for st in ("row_shr:1 row_mask:0xf", "row_shr:2 row_mask:0xf", "row_shr:4 row_mask:0xf", "row_shr:8 row_mask:0xf",
               "row_bcast:15 row_mask:0xa", "row_bcast:31 row_mask:0xc"):
        a("s_nop 1")
        a(f"v_max_u32_dpp v14, v14, v14 {st} bank_mask:0xf")
    a(f"""
    v_mul_f32 v14, 0x40b8aa3b, v14       ; 4*log2(e)
    v_lshlrev_b32 v121, 16, v10
    v_readlane_b32 s67, v14, 63
    v_and_b32 v123, 0xffff0000, v10
    s_mov_b64 exec, s[32:33]
    v_fma_f32 v120, |v121|, s67, 1.0
    v_fma_f32 v122, |v123|, s67, 1.0
    v_lshl_or_b32 v121, v125, 2, v121    ; e<<16 | dloc*4
    v_lshl_or_b32 v123, v126, 2, v123
    v_cvt_u32_f32 v120, v120
    v_cvt_u32_f32 v122, v122
    v_min_u32 v120, {QCAP}, v120
    v_min_u32 v122, {QCAP}, v122
    v_lshl_or_b32 v120, v120, 16, v8     ; src | q<<16
    v_lshl_or_b32 v122, v122, 16, v9
    v_lshlrev_b32 v125, 5, v116          ; bucket*128
    v_lshlrev_b32 v126, 5, v117
    v_add_u32 v125, {CST}, v125
    v_add_u32 v126, {CST}, v126
    s_waitcnt lgkmcnt(0)
    v_lshl_add_u32 v125, v118, 3, v125
    v_lshl_add_u32 v126, v119, 3, v126
    v_cmp_gt_u32 s[72:73], 16, v118
    v_cmp_gt_u32 s[74:75], 16, v119
    v_max_u32 v124, v118, v119
    s_mov_b64 exec, s[72:73]
    ds_write_b64 v125, v[120:121]
    s_mov_b64 exec, s[74:75]
    ds_write_b64 v126, v[122:123]
    s_and_b64 s[76:77], s[72:73], s[74:75]
    s_andn2_b64 exec, s[32:33], s[76:77]
    s_cbranch_execz K1_BAR1
    v_lshlrev_b32 v125, 14, v116
    v_lshlrev_b32 v126, 14, v117
    v_lshl_add_u32 v125, v118, 3, v125
    v_lshl_add_u32 v126, v119, 3, v126
    v_cmp_gt_u32 s[76:77], 24, v118
    v_cmp_gt_u32 s[78:79], 24, v119
    v_cmp_le_u32 vcc, 24, v124
    v_mov_b32 v127, 0
    s_andn2_b64 exec, s[76:77], s[72:73]
    buffer_store_dwordx2 v[120:121], v125, s[{sWS}:{sWS+3}], s31 offen sc1
    s_andn2_b64 exec, s[78:79], s[74:75]
    buffer_store_dwordx2 v[122:123], v126, s[{sWS}:{sWS+3}], s31 offen sc1
    s_mov_b64 exec, vcc
    ds_max_u32 v127, v124 offset:{MISC + 24}
    s_branch K1_BAR1
K1_AUX:
    s_cmp_lg_u32 s3, 15
    s_cbranch_scc1 K1_BAR1
    s_and_b32 s{sFL+4}, s2, 31
    s_lshl_b32 s{sFL+4}, s{sFL+4}, 7
    s_add_u32 s{sFL+4}, s{sFL+4}, {FLAG_OFF}
    v_mov_b32 v30, 0
    buffer_load_dwordx4 v[26:29], v30, s[{sWS}:{sWS+3}], s{sFL+4} offen sc1
    s_waitcnt vmcnt(7)
    v_lshlrev_b32 v20, 16, v14
    v_and_b32 v21, 0xffff0000, v14
    v_lshlrev_b32 v22, 16, v15
    v_and_b32 v23, 0xffff0000, v15
    v_mul_f32 v20, s34, v20
    v_mul_f32 v21, s34, v21
    v_mul_f32 v22, s34, v22
    v_mul_f32 v23, s34, v23
    v_and_b32 v24, 3, v1
    v_lshlrev_b32 v24, 4, v24            ; ((h>>2)&3)*16
    v_bfe_u32 v25, v1, 3, 2
    v_lshl_add_u32 v24, v25, 6, v24      ; + ((h>>5)&3)*64
    v_bfe_u32 v25, v1, 2, 1
    v_lshl_add_u32 v24, v25, 8, v24      ; + half*256
    v_lshrrev_b32 v25, 5, v1
    v_lshl_add_u32 v24, v25, 9, v24      ; + s*512
    ds_write_b128 v24, v[20:23] offset:{WT}
K1_BAR1:
    s_mov_b64 exec, -1
    v_lshrrev_b32 v6, 2, v0
    v_and_b32 v7, 3, v0
    v_lshlrev_b32 v127, 1, v7            ; 2j
    v_lshlrev_b32 v7, 4, v7
    v_lshl_add_u32 v5, v6, 7, v7
    v_add_u32 v5, {CST}, v5
    v_lshl_add_u32 v126, v6, 8, v7
    v_lshl_add_u32 v7, v6, 16, v7
    v_and_b32 v6, 0x3fc, v0
    v_mov_b32 v4, 0
    s_waitcnt lgkmcnt(0)
    s_barrier
    """)
    stamp(a, 1)
    a(f"""
    ds_read_b32 v108, v6 offset:{HIST}
    ds_read_b128 v[100:103], v5
    ds_read_b128 v[104:107], v5 offset:64
    ds_read_b32 v109, v4 offset:{MISC + 24}
    s_mov_b32 s24, 0x11111111
    s_mov_b32 s25, 0x11111111
    s_movk_i32 s28, 0x3e00
    s_waitcnt lgkmcnt(3)
    v_sub_u32 v110, v108, v127
    v_min_u32 v108, 31, v108
    v_lshlrev_b32 v108, 9, v108
    v_cmp_lt_i32 vcc, 0, v110
    v_cmp_lt_i32 s[72:73], 8, v110
    s_waitcnt lgkmcnt(0)
    v_readfirstlane_b32 s29, v109
    s_mov_b64 exec, s[24:25]
    v_bfi_b32 v101, s28, v108, v101
    s_or_b64 exec, vcc, s[24:25]
    buffer_store_dwordx4 v[100:103], v7, s[{sWS}:{sWS+3}], s31 offen sc1
    s_mov_b64 exec, s[72:73]
    buffer_store_dwordx4 v[104:107], v7, s[{sWS}:{sWS+3}], s31 offen offset:64 sc1
    s_mov_b64 exec, -1
    s_cmp_eq_u32 s29, 0
    s_cbranch_scc1 K1_NOPACK
    s_cmp_lg_u32 s3, 15
    s_cbranch_scc1 K1_NOSCAN
    v_lshlrev_b32 v6, 4, v1
    ds_read_b128 v[52:55], v6 offset:{HIST}
    s_lshl_b32 s24, s2, 10
    s_add_u32 s24, s24, {TAB_OFF}
    s_waitcnt lgkmcnt(0)
    v_add_u32 v57, v52, v53              ; p2
    v_add_u32 v58, v57, v54              ; p3
    v_add_u32 v59, v58, v55              ; tot
    v_mov_b32 v60, v59
    """)
    wave_scan(a, [60])
    a(f"""
    v_sub_u32 v60, v60, v59              ; base
    v_add_u32 v61, v60, v52
    v_add_u32 v62, v60, v57
    v_add_u32 v63, v60, v58
    v_lshlrev_b32 v64, 3, v60
    v_lshlrev_b32 v65, 3, v61
    v_lshlrev_b32 v66, 3, v62
    v_lshlrev_b32 v67, 3, v63
    ds_write_b128 v6, v[64:67] offset:{START}
    v_lshl_or_b32 v60, v52, 16, v60
    v_lshl_or_b32 v61, v53, 16, v61
    v_lshl_or_b32 v62, v54, 16, v62
    v_lshl_or_b32 v63, v55, 16, v63
    buffer_store_dwordx4 v[60:63], v6, s[{sWS}:{sWS+3}], s24 offen sc1
    s_waitcnt lgkmcnt(0)
K1_NOSCAN:
    s_barrier
    s_mov_b64 exec, s[32:33]
    ds_read_b32 v116, v116 offset:{START}
    ds_read_b32 v117, v117 offset:{START}
    s_waitcnt lgkmcnt(0)
    v_lshl_add_u32 v116, v118, 3, v116
    v_lshl_add_u32 v117, v119, 3, v117
    ds_write_b64 v116, v[120:121] offset:{STAGE}
    ds_write_b64 v117, v[122:123] offset:{STAGE}
    s_mov_b64 exec, -1
    v_lshlrev_b32 v6, 4, v0
    v_cmp_gt_u32 vcc, {CHS // 16}, v0
    s_mul_i32 s24, s2, {CHS}
    s_add_u32 s24, s24, {REC_OFF}
    s_waitcnt lgkmcnt(0)
    s_barrier
    s_mov_b64 exec, vcc
    ds_read_b128 v[52:55], v6 offset:{STAGE}
    s_waitcnt lgkmcnt(0)
    buffer_store_dwordx4 v[52:55], v6, s[{sWS}:{sWS+3}], s24 offen sc1
    s_mov_b64 exec, -1
    s_waitcnt vmcnt(0)
K1_NOPACK:
K1_ADDR:
    """)
    gemm_addr(a, vb, vxa, 11, 24, QH, XB)
    a(f"""
    s_mov_b32 s65, 0x07060100
    s_mov_b32 s66, 0x07060302
    s_lshr_b32 s29, s3, 3
    s_lshl_b32 s30, s29, 6               ; 64*rh
    s_sub_u32 s28, {N}, s{sROW0}
    s_min_u32 s28, s28, {NB}
    s_sub_u32 s28, s28, s30              ; valid rows from this wave's first row
    s_add_u32 s30, s30, s{sROW0}
    v_add_u32 v119, s30, v2
    v_lshlrev_b32 v119, 8, v119
    s_and_b32 s24, s3, 3
    s_lshl_b32 s24, s24, 6
    v_lshl_add_u32 v18, v3, 4, s24       ; (4*(cp&3)+g)*16
    v_add_u32 v119, v119, v18
    s_bfe_u32 s30, s3, 0x10002
    s_mul_i32 s25, s30, {PS}
    s_mul_i32 s29, s29, {64 * ROWS}
    s_lshl_b32 s30, s30, 9
    s_add_u32 s29, s29, s30
    s_add_u32 s29, s29, {QH}
    v_mul_u32_u24 v19, {ROWS}, v2
    v_add3_u32 v18, v18, v19, s29
    v_mov_b32 v118, 0                    ; max|P'|
    v_mov_b32 v19, 0                     ; max|Q'|
    s_waitcnt vmcnt(2)
    s_cmp_lg_u32 s3, 14
    s_cbranch_scc1 K1_NOW2S
    """)
    a(f"""
    s_lshl_b32 s68, s2, 8
    s_add_u32 s68, s68, {W2F_OFF}
    v_lshlrev_b32 v13, 4, v2
    s_mov_b64 exec, 0xffff
    v_lshl_or_b32 v{vAcc}, v{vW+4}, 16, v{vW}
    v_lshl_or_b32 v{vAcc+1}, v{vW+5}, 16, v{vW+1}
    v_lshl_or_b32 v{vAcc+2}, v{vW+6}, 16, v{vW+2}
    v_lshl_or_b32 v{vAcc+3}, v{vW+7}, 16, v{vW+3}
    buffer_store_dwordx4 v[{vAcc}:{vAcc+3}], v13, s[{sWS}:{sWS+3}], s68 offen sc1
    s_mov_b64 exec, -1
K1_NOW2S:
    s_cmp_lg_u32 s3, 15
    s_cbranch_scc1 K1_NOFL
    v_readfirstlane_b32 s{sFL}, v26
    v_readfirstlane_b32 s{sFL+1}, v27
    v_readfirstlane_b32 s{sFL+2}, v28
    v_readfirstlane_b32 s{sFL+3}, v29
K1_NOFL:
    """)
    a("v_mov_b32 v120, v16")
    a("v_mov_b32 v121, v17")
    a("s_barrier")
    diag(a, 7, "K1_DG7")
    stamp(a, 2)
    wreads, xreads, mfp = gemm_parts(a, vW, vX, vAcc, vb, vxa, lambda aa: "0", acc2=True)
    _, _, mf = gemm_parts(a, vW, vX, vAcc, vb, vxa, lambda aa: f"v[{vB1+4*aa}:{vB1+4*aa+3}]", acc2=True)

    def epp(i):
        lo = vAcc + 8 * (i & 1); hi = lo + 4
        for r in range(8):
            a(f"v_fma_f32 v{lo+r}, v{lo+r}, s34, 0")
        a(f"v_cvt_pk_bf16_f32 v116, v{lo}, v{lo+1}")
        a(f"v_cvt_pk_bf16_f32 v117, v{lo+2}, v{lo+3}")
        for r in range(0, 8, 2):
            a(f"v_max3_f32 v118, |v{lo+r}|, |v{lo+r+1}|, v118")
        for r in range(4):
            a(f"v_add_u32 v{hi+r}, 0x8000, v{hi+r}")
        for r in range(4):
            a(f"v_sub_u32_sdwa v{hi+r}, v{hi+r}, v{116+(r>>1)} clamp dst_sel:DWORD dst_unused:UNUSED_PAD src0_sel:DWORD src1_sel:WORD_{r&1}")
        for r in range(4):
            a(f"v_perm_b32 v{lo+r}, v{hi+r}, v{116+(r>>1)}, s{65+(r&1)}")
        a(f"v_cmp_gt_i32 vcc, s28, v2")
        a(f"s_mov_b64 exec, vcc")
        a(f"buffer_store_dwordx4 v[{lo}:{lo+3}], v119, s[{sWS}:{sWS+3}], s25 offen sc1")
        a(f"s_mov_b64 exec, -1")
        a("s_sub_u32 s28, s28, 16")
        a("s_add_u32 s25, s25, 4096")

    def epi(i, last=False):
        o = vAcc + 8 * (i & 1)
        for r in range(8):
            a(f"v_mul_f32 v{o+r}, s34, v{o+r}")
        for r in range(0, 8, 2):
            a(f"v_max3_f32 v19, |v{o+r}|, |v{o+r+1}|, v19")
        if last:
            a("s_mov_b32 exec_lo, 0x00030003")
            a("s_mov_b32 exec_hi, 0x00030003")
        a(f"ds_write_b128 v18, v[{o}:{o+3}] offset:{i * 16 * ROWS}")
        a(f"ds_write_b128 v18, v[{o+4}:{o+7}] offset:{i * 16 * ROWS + 256}")
        if last:
            a("s_mov_b64 exec, -1")

    def signal(val, L):
        a(f"""
    s_cmp_lg_u32 s3, 15
    s_cbranch_scc1 {L}
    s_and_b32 s24, s2, 1
    s_lshl_b32 s24, s24, 7
    v_mov_b32 v124, s24
    v_mov_b32 v125, {val}
    s_mov_b64 exec, 1
    global_atomic_add v125, v124, v125, s[{sDBG}:{sDBG+1}] sc0 sc1
    s_mov_b64 exec, -1
{L}:
        """)

    def release(L, shift, word, younger):
        a(f"""
    s_cmp_lg_u32 s3, 15
    s_cbranch_scc1 {L}
    s_waitcnt vmcnt({younger})
    v_readfirstlane_b32 s24, v125
    s_bfe_u32 s24, s24, {(16 << 16) | shift:#x}
    s_cmp_lg_u32 s24, 127
    s_cbranch_scc1 {L}
    s_and_b32 s24, s2, 1
    s_lshl_b32 s24, s24, 2
    s_add_u32 s24, s24, {FLAG_OFF + 8 * word}
    v_lshlrev_b32 v124, 7, v1
    v_mov_b32 v125, 1
    s_mov_b32 exec_hi, 0
    buffer_atomic_add v125, v124, s[{sWS}:{sWS+3}], s24 offen sc1
    s_mov_b64 exec, -1
    s_waitcnt vmcnt(0)
{L}:
        """)

    def poll(L, word, t):
        a(f"""
    s_cmp_lg_u32 s3, 15
    s_cbranch_scc1 {L}_OK
    v_mov_b32 v{t+2}, 0
    s_mov_b64 exec, 1
    s_mov_b32 s24, {SPIN}
{L}_SPIN:
    buffer_load_dwordx2 v[{t}:{t+1}], v{t+2}, s[{sWS}:{sWS+3}], s{sFL+4} offen offset:{8 * word} sc1
    s_sub_u32 s24, s24, 1
    s_waitcnt vmcnt(0)
    v_cmp_eq_u32 vcc, s{sFL + 2 * word}, v{t}
    v_cmp_eq_u32 s[28:29], s{sFL + 2 * word + 1}, v{t+1}
    s_or_b64 vcc, vcc, s[28:29]
    s_cbranch_vccz {L}_DONE
    s_sleep {OPT["sleep"]}
    s_cmp_lg_u32 s24, 0
    s_cbranch_scc1 {L}_SPIN
    v_mov_b32 v{t}, 1
    ds_write_b32 v{t+2}, v{t} offset:{MISC + 20}
    s_waitcnt lgkmcnt(0)
{L}_DONE:
    s_mov_b64 exec, -1
{L}_OK:
        """)

    wreads(); xreads(0); xreads(1)
    for p in range(4):
        a(f"v_lshlrev_b32 v{vB1+2*p}, 16, v{112+p}")
        a(f"v_and_b32 v{vB1+2*p+1}, 0xffff0000, v{112+p}")
    a("s_waitcnt lgkmcnt(8)")
    a("s_barrier")
    dma_w_issue(a, 120, sW1, 27, 24, 128 * 512, QH)
    a("s_waitcnt lgkmcnt(4)")
    mfp(0)
    xreads(2)
    a("s_waitcnt vmcnt(4)")
    a("s_barrier")
    signal(1, "K1_SIGA")
    diag(a, 1, "K1_DG1")
    stamp(a, 3)
    a("s_waitcnt lgkmcnt(4)")
    mfp(1)
    xreads(3)
    epp(0)
    release("K1_RELA", 0, 0, 1)
    a("s_waitcnt lgkmcnt(4)")
    mfp(2)
    epp(1)
    a("""
    s_cmp_ge_u32 s3, 8
    s_cbranch_scc1 K1_RH1
    s_waitcnt lgkmcnt(0)
    """)
    mfp(3)
    epp(2)
    epp(3)
    a("""
    s_waitcnt vmcnt(4)
    s_branch K1_GD
K1_RH1:
    """)
    epp(2)
    a("s_waitcnt vmcnt(3)")
    a("K1_GD:")
    row_max(a, 118)
    a(f"""
    v_mov_b32 v116, 0
    s_mov_b32 exec_lo, 0x80008000
    s_mov_b32 exec_hi, 0x80008000
    ds_max_u32 v116, v118 offset:{MISC}
    s_mov_b64 exec, -1
    s_waitcnt lgkmcnt(0)
    """)
    stamp(a, 4)
    a(f"""
    s_barrier
    """)
    diag(a, 4, "K1_DG4")
    a(f"""
    s_cmp_lg_u32 s3, 1
    s_cbranch_scc1 K1_NOPM
    ds_read_b32 v118, v116 offset:{MISC}
    s_lshl_b32 s24, s2, 2
    s_add_u32 s24, s24, {PMAX_OFF}
    s_mov_b64 exec, 1
    s_waitcnt lgkmcnt(0)
    buffer_store_dword v118, v116, s[{sWS}:{sWS+3}], s24 offen sc1
    s_mov_b64 exec, -1
K1_NOPM:
    """)
    wreads(); xreads(0); xreads(1)
    poll("K2_PA", 0, 108)
    stamp(a, 5)
    a(f"""
    s_lshl_b32 s24, s2, 16
    s_add_u32 s{sRECB}, s24, {CELL_OFF}
    s_waitcnt vmcnt(0) lgkmcnt(8)
    s_barrier
    """)
    signal(0x10000, "K1_SIGB")
    a(f"""
    buffer_load_dwordx4 v[{vRec}:{vRec+3}], v126, s[{sWS}:{sWS+3}], s{sRECB} offen sc1
    buffer_load_dwordx4 v[{vRec+4}:{vRec+7}], v126, s[{sWS}:{sWS+3}], s{sRECB} offen offset:64 sc1
    """)
    diag(a, 6, "K1_DG6")
    stamp(a, 6)
    a("s_waitcnt lgkmcnt(4)")
    mf(0)
    xreads(2)
    a("s_waitcnt lgkmcnt(4)")
    mf(1)
    a("s_cmp_ge_u32 s3, 8")
    a("s_cbranch_scc1 K2_NOX3")
    xreads(3)
    a("K2_NOX3:")
    release("K1_RELB", 16, 1, 2)
    epi(0)
    a("s_waitcnt lgkmcnt(2)")
    mf(2)
    epi(1)
    a("s_cmp_ge_u32 s3, 8")
    a(f"s_cbranch_scc1 K2_E2")
    mf(3)
    epi(2)
    epi(3)
    a(f"s_branch K2_GD")
    a(f"K2_E2:")
    epi(2, last=True)
    a(f"K2_GD:")
    row_max(a, 19)
    a(f"""
    v_mov_b32 v4, 0
    s_mov_b32 exec_lo, 0x80008000
    s_mov_b32 exec_hi, 0x80008000
    ds_max_u32 v4, v19 offset:{MISC + 4}
    s_mov_b64 exec, -1
    s_mov_b32 s{sBATCH}, 0
    s_waitcnt vmcnt(0)
    v_bfe_u32 v124, v{vRec+1}, 9, 5
    s_nop 1
    v_mov_b32_dpp v124, v124 quad_perm:[0,0,0,0] row_mask:0xf bank_mask:0xf
    v_sub_u32 v125, v124, v127
    """)
    for k in range(6):
        a(f"v_cmp_lt_i32 s[{sM+2*k}:{sM+2*k+1}], {8*(k>>1)+(k&1)}, v125")
    a(f"""
    s_mov_b64 exec, s[{sM+8}:{sM+9}]
    s_cbranch_execz K2_NOM2
    buffer_load_dwordx4 v[{vRec+8}:{vRec+11}], v126, s[{sWS}:{sWS+3}], s{sRECB} offen offset:128 sc1
    v_cmp_lt_u32 vcc, 24, v124
    s_mov_b64 exec, vcc
    ds_max_u32 v4, v124 offset:{MISC + 12}
    s_waitcnt vmcnt(0)
K2_NOM2:
    s_mov_b64 exec, -1
    """)

    def rec_loads():
        for k in range(6):
            a(f"v_cmp_lt_i32 s[{sM+2*k}:{sM+2*k+1}], {8*(k>>1)+(k&1)}, v127")
        for m in range(3):
            a(f"s_mov_b64 exec, s[{sM+4*m}:{sM+4*m+1}]")
            a(f"buffer_load_dwordx4 v[{vRec+4*m}:{vRec+4*m+3}], v126, s[{sWS}:{sWS+3}], s{sRECB} offen offset:{64*m} sc1")
        a("s_mov_b64 exec, -1")

    def hist(L):
        a("s_mov_b32 s35, 0xffff0000")
        for k in range(6):
            m, o = k >> 1, k & 1
            r0 = vRec + 4 * m + 2 * o
            a(f"s_mov_b64 exec, s[{sM+2*k}:{sM+2*k+1}]")
            if k in (2, 4):
                a(f"s_cbranch_execz {L}_HISTDONE")
            a(f"v_and_b32 v{vPos+k}, 0x1fc, v{r0+1}")
            a(f"v_and_or_b32 v8, v{r0}, s35, 1")
            a(f"ds_add_rtn_u32 v{vRank+k}, v{vPos+k}, v8 offset:{CNT}")
            a(f"v_and_b32 v{r0}, 0xffff, v{r0}")
            a(f"v_and_b32 v{r0+1}, s35, v{r0+1}")
        a(f"{L}_HISTDONE:")
        a("s_mov_b64 exec, -1")

    def scanrank(L, wscan, wrank, degt=True):
        a(f"""
    s_sub_u32 s24, s3, {wscan}
    s_cmp_ge_u32 s24, 2
    s_cbranch_scc1 {L}_SRDONE
    v_lshlrev_b32 v8, 2, v1
    ds_read_b32 v78, v8 offset:{CNT}
    ds_read_b32 v79, v8 offset:{CNT + 256}
    v_mov_b32 v9, 1
    s_waitcnt lgkmcnt(0)
    v_and_b32 v68, 0xffff, v78
    v_and_b32 v69, 0xffff, v79
    s_cmp_eq_u32 s3, {wscan}
    s_cbranch_scc1 {L}_SCAN
    v_mov_b32 v77, 0
    ds_write_b32 v8, v77 offset:{DH}
    v_min_u32 v73, 63, v68
    v_min_u32 v74, 63, v69
    v_sub_u32 v73, 63, v73
    v_sub_u32 v74, 63, v74
    v_lshlrev_b32 v73, 2, v73
    v_lshlrev_b32 v74, 2, v74
    ds_add_rtn_u32 v75, v73, v9 offset:{DH}
    s_mov_b32 exec_hi, 0xf               ; nodes 64..99
    ds_add_rtn_u32 v76, v74, v9 offset:{DH}
    s_mov_b64 exec, -1
    ds_read_b32 v77, v8 offset:{DH}
    s_waitcnt lgkmcnt(0)
{L}_SCAN:
    v_mov_b32 v70, v68
    v_mov_b32 v71, v69
    v_mov_b32 v72, v77
        """)
        wave_scan(a, [70, 71, 72])
        a(f"""
    v_mov_b32 v9, {LIST}
    v_readlane_b32 s24, v70, 63
    v_sub_u32 v70, v70, v68
    v_sub_u32 v71, v71, v69
    v_add_u32 v71, s24, v71
    v_lshl_add_u32 v80, v70, 3, v9
    v_lshl_add_u32 v4, v71, 3, v9
    s_cmp_eq_u32 s3, {wscan}
    s_cbranch_scc0 {L}_RANK
    ds_write_b32 v8, v80 offset:{POS}
    ds_write_b32 v8, v4 offset:{POS + 256}
    {f"ds_add_u32 v8, v68 offset:{DEGT}" if degt else ""}
    {f"ds_add_u32 v8, v69 offset:{DEGT + 256}" if degt else ""}
    s_branch {L}_SRDONE
{L}_RANK:
    v_sub_u32 v72, v72, v77
    ds_bpermute_b32 v73, v73, v72
    ds_bpermute_b32 v74, v74, v72
    v_mov_b32 v81, v68
    v_mul_u32_u24 v82, {ROWS}, v1
    v_add_u32 v82, {QH}, v82
    v_lshrrev_b32 v83, 16, v78
    v_mov_b32 v5, v69
    v_add_u32 v6, {64 * ROWS}, v82
    v_lshrrev_b32 v7, 16, v79
    s_waitcnt lgkmcnt(0)
    v_add_lshl_u32 v73, v73, v75, 4
    v_add_lshl_u32 v74, v74, v76, 4
    ds_write_b128 v73, v[80:83] offset:{INFO}
    s_mov_b32 exec_hi, 0xf
    ds_write_b128 v74, v[4:7] offset:{INFO}
    s_mov_b64 exec, -1
{L}_SRDONE:
        """)

    def fastrank(L, wrank):
        a(f"""
    s_cmp_lg_u32 s3, {wrank}
    s_cbranch_scc1 {L}_FRDONE
    s_setprio 3
    v_lshlrev_b32 v8, 2, v1
    ds_read_b32 v78, v8 offset:{CNT}
    ds_read_b32 v79, v8 offset:{CNT + 256}
    v_mov_b32 v9, 1
    v_mul_u32_u24 v80, {LROW}, v1
    v_add_u32 v80, {LIST}, v80
    v_add_u32 v4, {64 * LROW}, v80
    v_mul_u32_u24 v82, {ROWS}, v1
    v_add_u32 v82, {QH}, v82
    v_add_u32 v6, {64 * ROWS}, v82
    s_waitcnt lgkmcnt(0)
    v_and_b32 v81, 0xffff, v78
    v_and_b32 v5, 0xffff, v79
    v_min_u32 v73, 63, v81
    v_min_u32 v74, 63, v5
    v_sub_u32 v73, 63, v73
    v_sub_u32 v74, 63, v74
    v_lshlrev_b32 v73, 2, v73
    v_lshlrev_b32 v74, 2, v74
    ds_add_rtn_u32 v75, v73, v9 offset:{DH}
    s_mov_b32 exec_hi, 0xf               ; nodes 64..99
    ds_add_rtn_u32 v76, v74, v9 offset:{DH}
    s_mov_b64 exec, -1
    ds_read_b32 v77, v8 offset:{DH}
    ds_write_b32 v8, v81 offset:{DEGT}
    ds_write_b32 v8, v5 offset:{DEGT + 256}
    v_max_u32 v72, v81, v5
    v_cmp_lt_u32 vcc, {LCAP}, v72
    v_mov_b32 v71, 0
    s_mov_b64 exec, vcc
    ds_max_u32 v71, v72 offset:{MISC + 8}
    s_mov_b64 exec, -1
    v_lshrrev_b32 v83, 16, v78
    v_lshrrev_b32 v7, 16, v79
    s_waitcnt lgkmcnt(3)
    v_mov_b32 v72, v77
        """)
        wave_scan(a, [72])
        a(f"""
    v_sub_u32 v72, v72, v77
    ds_bpermute_b32 v73, v73, v72
    ds_bpermute_b32 v74, v74, v72
    s_waitcnt lgkmcnt(0)
    v_add_lshl_u32 v73, v73, v75, 4
    v_add_lshl_u32 v74, v74, v76, 4
    ds_write_b128 v73, v[80:83] offset:{INFO}
    s_mov_b32 exec_hi, 0xf
    ds_write_b128 v74, v[4:7] offset:{INFO}
    s_mov_b64 exec, -1
    s_setprio 0
{L}_FRDONE:
        """)

    def fastscatter(L):
        a(f"s_movk_i32 s24, {LROW // 4}")
        for k in range(6):
            m, o = k >> 1, k & 1
            r0 = vRec + 4 * m + 2 * o
            a(f"s_mov_b64 exec, s[{sM+2*k}:{sM+2*k+1}]")
            if k in (2, 4):
                a(f"s_cbranch_execz {L}_FSDONE")
            a(f"v_min_u16 v8, {LCAP - 1}, v{vRank+k}")
            a(f"v_mul_u32_u24 v9, s24, v{vPos+k}")
            a(f"v_mad_u32_u16 v9, v8, 8, v9")
            a(f"ds_write_b64 v9, v[{r0}:{r0+1}] offset:{LIST}")
        a(f"{L}_FSDONE:")
        a("s_mov_b64 exec, -1")

    def posread(L):
        for k in range(6):
            a(f"s_mov_b64 exec, s[{sM+2*k}:{sM+2*k+1}]")
            if k in (2, 4):
                a(f"s_cbranch_execz {L}_POSDONE")
            a(f"ds_read_b32 v{vPos+k}, v{vPos+k} offset:{POS}")
        a(f"{L}_POSDONE:")
        a("s_mov_b64 exec, -1")

    def scatter(L):
        for k in range(6):
            m, o = k >> 1, k & 1
            r0 = vRec + 4 * m + 2 * o
            a(f"s_mov_b64 exec, s[{sM+2*k}:{sM+2*k+1}]")
            if k in (2, 4):
                a(f"s_cbranch_execz {L}_SCATDONE")
            a(f"v_mad_u32_u16 v{vPos+k}, v{vRank+k}, 8, v{vPos+k}")
            a(f"ds_write_b64 v{vPos+k}, v[{r0}:{r0+1}]")
        a(f"{L}_SCATDONE:")
        a("s_mov_b64 exec, -1")

    hist("K2A")
    a("s_waitcnt lgkmcnt(0)")
    a("s_barrier")
    stamp(a, 10)
    diag(a, 5, "K1_DG5")
    assert U in (2, 4, 6, 8)
    U0 = min(U, 4)
    PB = [100, 104, 108, 112, 80, 84, 88, 92][:U]
    PR = [116, 118, 120, 122, 4, 6, 8, 10][:U]
    vE = 124
    vI = 52
    vAddr, vDeg, vH = vI, vI + 1, vI + 2
    vL16, vK1, vG16, vWT, vQI, vTmp = 56, 57, 58, 59, 60, 61
    vQ, vW, vT, vX, vN, vD = 20, 28, 36, 44, 64, 72
    sQ, sS, sD0, sD3, sSafe, sSl, sSEL = 27, 28, 29, 30, 31, 32, 33

    def main_consts(n=U):
        a(f"""
    v_lshlrev_b32 v{vL16}, 4, v2
    v_mov_b32 v{vG16}, {INFO}
    v_lshl_add_u32 v{vG16}, v3, 4, v{vG16}
    v_add_u32 v{vWT}, {WT}, v{vL16}
    s_mov_b32 s{sSEL}, 0x00003f80
    s_cmp_lt_u32 s3, {OPT['nw']}
    s_cselect_b32 s{sQ}, s3, 50
        """)
        for j in range(n):
            a(f"v_mov_b32 v{PR[j]+1}, v{vL16}")

    def item_loads(n=U):
        for j in range(n):
            a(f"ds_read_b32 v{PR[j]}, v{vAddr} offset:{8*j}")
        a(f"""
    ds_read_b32 v{vE}, v{vAddr} offset:4
    v_add3_u32 v{vH}, v{vH}, s25, v{vL16}
    v_readlane_b32 s{sD0}, v{vDeg}, 0
    v_readlane_b32 s{sD3}, v{vDeg}, 48
    v_readlane_b32 s35, v{vDeg}, 16
    v_readlane_b32 s71, v{vDeg}, 32
        """)

    def item_issue(extra, j0=0, j1=U):
        for j in range(j0, j1):
            a(f"s_waitcnt lgkmcnt({j1 - 1 - j + extra})")
            a(f"buffer_load_dwordx4 v[{PB[j]}:{PB[j]+3}], v[{PR[j]}:{PR[j]+1}], s[{sP}:{sP+3}], s{sSl} idxen offen {OPT['pld']}")
        if j1 == U:
            a(f"ds_read_b32 v{PR[0]}, v{vAddr} offset:{8*U}")

    fastrank("K2A", 9)
    fastscatter("K2A")
    poll("K2_PB", 1, 84)
    srd(a, sP, 22, 23, N, stride=256)
    a(f"""
    v_mov_b32 v4, 0
    s_mov_b32 s{sNBATCH}, 1
    v_lshlrev_b32 v5, 4, v1
    s_mov_b32 s24, {PMAX_OFF}
    s_waitcnt lgkmcnt(0)
    s_barrier
    """)
    stamp(a, 7)
    cstamp(a, 0)
    diag(a, 2, "K2_DG1")
    a(f"""
    buffer_load_dwordx4 v[{vT}:{vT+3}], v5, s[{sWS}:{sWS+3}], s24 offen sc1
    ds_read_b128 v[8:11], v4 offset:{MISC}
    ds_read_b32 v12, v4 offset:{MISC + 20}
    s_lshl_b32 s24, s3, 6
    v_lshl_add_u32 v{vI}, v3, 4, s24
    ds_read_b128 v[{vI}:{vI+3}], v{vI} offset:{INFO}
    s_mov_b32 s25, 0
    s_mov_b32 s{sSl}, 0
    s_waitcnt lgkmcnt(1)
    v_or_b32 v6, v10, v11
    v_readfirstlane_b32 s28, v12
    v_readfirstlane_b32 s24, v6
    s_cmp_lg_u32 s28, 0
    s_cbranch_scc1 K2_END
    s_cmp_lg_u32 s24, 0
    s_cbranch_scc1 K2_SLOW0
    """)

    def pmax_reduce():
        a(f"v_max3_f32 v{vT}, v{vT}, v{vT+1}, v{vT+2}")
        a(f"v_max_f32 v{vT}, v{vT}, v{vT+3}")
        for st in ("row_shr:1 row_mask:0xf", "row_shr:2 row_mask:0xf", "row_shr:4 row_mask:0xf", "row_shr:8 row_mask:0xf",
                   "row_bcast:15 row_mask:0xa", "row_bcast:31 row_mask:0xc"):
            a("s_nop 1")
            a(f"v_max_f32_dpp v{vT}, v{vT}, v{vT} {st} bank_mask:0xf")
        a("s_nop 0")
        a(f"v_readlane_b32 s{sPM}, v{vT}, 63")

    main_consts()
    a(f"""
    s_waitcnt lgkmcnt(0)
    v_mov_b32 v{vK1}, v9
    ds_read_b128 v[{vW}:{vW+3}], v{vWT}
    ds_read_b128 v[{vW+4}:{vW+7}], v{vWT} offset:256
    """)
    item_loads()
    a(f"""
    ds_read_b128 v[{vQ}:{vQ+3}], v{vH}
    ds_read_b128 v[{vQ+4}:{vQ+7}], v{vH} offset:256
    """)
    item_issue(3)
    a(f"s_waitcnt vmcnt({U})")
    pmax_reduce()
    a(f"""
    s_nop 1
    v_add_f32 v{vK1}, s{sPM}, v{vK1}
    v_fma_f32 v{vK1}, v{vK1}, 4.0, 4.0
    {"s_cmp_ge_u32 s3, " + str(OPT['nw']) if OPT['nw'] < 16 else ""}
    {"s_cbranch_scc1 K2_DONE" if OPT['nw'] < 16 else ""}
    s_branch K2_GO
K2_SLOW0:
    s_waitcnt vmcnt(0)
    """)
    pmax_reduce()
    a(f"""
    v_lshrrev_b32 v6, 2, v0              ; chunk
    v_lshlrev_b32 v7, 10, v6
    s_lshl_b32 s24, s2, 2
    s_add_u32 s24, s24, {TAB_OFF}
    v_mul_u32_u24 v126, {CHS}, v6
    v_cmp_lt_u32 vcc, 24, v124
    s_mov_b32 s{sRECB}, {REC_OFF}
    s_mov_b64 exec, vcc
    buffer_load_dword v6, v7, s[{sWS}:{sWS+3}], s24 offen sc1
    s_waitcnt vmcnt(0)
    v_lshrrev_b32 v124, 16, v6
    v_and_b32 v6, 0xffff, v6
    v_add_u32 v6, v6, v127
    v_lshl_add_u32 v126, v6, 3, v126
    ds_max_u32 v4, v124 offset:{MISC + 12}
    s_mov_b64 exec, -1
    v_sub_u32 v127, v124, v127
    """)
    scanrank("K2S", 8, 9, degt=False)
    a("s_waitcnt lgkmcnt(0)")
    a("s_barrier")
    posread("K2S")
    a("s_waitcnt lgkmcnt(0)")
    scatter("K2S")
    a("""
    s_branch K2_MAIN
K2_BATCH:
    s_waitcnt vmcnt(0)
    """)
    hist("K2B")
    a("s_waitcnt lgkmcnt(0)")
    a("s_barrier")
    scanrank("K2B", 8, 9)
    a("s_waitcnt lgkmcnt(0)")
    a("s_barrier")
    posread("K2B")
    a("s_waitcnt lgkmcnt(0)")
    scatter("K2B")
    a(f"""
K2_MAIN:
    v_mov_b32 v4, 0
    s_waitcnt lgkmcnt(0)
    s_barrier
    ds_read_b128 v[{vI}:{vI+3}], v4 offset:{MISC}
    """)
    main_consts()
    a(f"""
    s_waitcnt lgkmcnt(0)
    v_readfirstlane_b32 s24, v{vI+3}
    v_add_f32 v{vK1}, s{sPM}, v{vI+1}
    v_fma_f32 v{vK1}, v{vK1}, 4.0, 4.0
    s_add_u32 s24, s24, 23
    s_mul_i32 s24, s24, 2731
    s_lshr_b32 s{sNBATCH}, s24, 16
    s_cmp_le_u32 s{sNBATCH}, 1
    s_cbranch_scc1 K2_ITEM
    v_mov_b32 v{vK1}, 0x7f800000         ; several batches: every item takes the plain path
K2_ITEM:
    s_cmp_ge_u32 s{sQ}, 50
    s_cbranch_scc1 K2_DONE
    s_cmp_ge_u32 s{sQ}, 25
    s_cselect_b32 s24, 25, 0
    s_cselect_b32 s25, 512, 0
    s_cselect_b32 s{sSl}, {PS}, 0
    s_sub_u32 s24, s{sQ}, s24
    s_lshl_b32 s24, s24, 6
    v_add_u32 v{vTmp}, s24, v{vG16}
    ds_read_b128 v[{vI}:{vI+3}], v{vTmp}
    v_add_u32 v{vTmp}, s25, v{vWT}
    ds_read_b128 v[{vW}:{vW+3}], v{vTmp}
    ds_read_b128 v[{vW+4}:{vW+7}], v{vTmp} offset:256
    s_mov_b32 s{sP+2}, {N}
    s_waitcnt lgkmcnt(2)
    """)
    item_loads()
    a(f"""
    ds_read_b128 v[{vQ}:{vQ+3}], v{vH}
    ds_read_b128 v[{vQ+4}:{vQ+7}], v{vH} offset:256
    """)
    item_issue(3)
    a(f"""
K2_GO:
    v_cvt_f32_u32 v{vTmp}, v{vDeg}
    v_cvt_f32_u32 v{vI+3}, v{vI+3}
    v_fma_f32 v{vTmp}, v{vTmp}, v{vK1}, v{vI+3}
    s_max_u32 s24, s{sD0}, s{sD3}
    s_min_u32 s{sD3}, s{sD0}, s{sD3}
    v_cmp_nge_f32 vcc, {BOUND:#x}, v{vTmp}
    s_max_u32 s{sD0}, s35, s71
    s_min_u32 s35, s35, s71
    s_max_u32 s{sD0}, s{sD0}, s24
    s_min_u32 s{sD3}, s{sD3}, s35
    s_min_u32 s{sD0}, s{sD0}, {LISTCAP}
    s_sub_u32 s{sSafe}, s{sD0}, {U}
    s_cmp_gt_i32 s{sSafe}, 0
    s_cselect_b32 s{sP+2}, {N}, 0
    s_mov_b32 s{sS}, 0
    {"s_setprio 0" if OPT["prio"] else ""}
    s_cbranch_vccnz K2_P_START
    s_cmp_lg_u32 s{sD3}, 0
    s_cbranch_scc1 K2_F_FIRST
    """)
    for r in range(8):
        a(f"v_mov_b32 v{vN+r}, 0")
        a(f"v_mov_b32 v{vD+r}, 1.0")
    a(f"""
    s_cmp_eq_u32 s{sD0}, 0
    s_cbranch_scc1 K2_F_FLUSH
    v_cmpx_lt_u32 vcc, 0, v{vDeg}
    """)

    def step(j, mode):
        P = PB[j]
        T = vN if mode == "first" else vT
        eh = j & 1
        jn = (j + 1) % U
        osel = "op_sel_hi:[1,0,1]" if eh == 0 else "op_sel:[0,1,0] op_sel_hi:[1,1,1]"
        a("s_waitcnt lgkmcnt(0)")
        for r in range(0, 8, 2):
            a(f"v_pk_fma_f32 v[{T+r}:{T+r+1}], v[{vW+r}:{vW+r+1}], v[{vE}:{vE+1}], v[{vQ+r}:{vQ+r+1}] {osel}")
        a(f"ds_read_b32 v{vE + (eh ^ 1)}, v{vAddr} offset:{8*(j+1)+4}")
        a(f"s_waitcnt vmcnt({U-1})")
        if mode != "plain":
            for p in range(4):
                a(f"v_dot2_f32_bf16 v{T+p}, v{P+p}, s{sSEL}, v{T+p}")
            a(f"v_pk_add_f32 v[{T+4}:{T+5}], v[{P}:{P+1}], v[{T+4}:{T+5}]")
            a(f"v_pk_add_f32 v[{T+6}:{T+7}], v[{P+2}:{P+3}], v[{T+6}:{T+7}]")
        else:
            for p in range(4):
                a(f"v_lshlrev_b32 v{vX+p}, 16, v{P+p}")
            a(f"v_pk_add_f32 v[{T+4}:{T+5}], v[{P}:{P+1}], v[{T+4}:{T+5}]")
            a(f"v_pk_add_f32 v[{T+6}:{T+7}], v[{P+2}:{P+3}], v[{T+6}:{T+7}]")
            a(f"v_pk_add_f32 v[{T}:{T+1}], v[{vX}:{vX+1}], v[{T}:{T+1}]")
            a(f"v_pk_add_f32 v[{T+2}:{T+3}], v[{vX+2}:{vX+3}], v[{T+2}:{T+3}]")
        a(f"buffer_load_dwordx4 v[{P}:{P+3}], v[{PR[j]}:{PR[j]+1}], s[{sP}:{sP+3}], s{sSl} idxen offen {OPT['pld']}")
        a(f"ds_read_b32 v{PR[jn]}, v{vAddr} offset:{8*(j+1+U)}")
        a(f"s_add_u32 s{sS}, s{sS}, 1")
        a(f"s_cmp_lt_i32 s{sS}, s{sSafe}")
        a(f"s_cselect_b32 s{sP+2}, {N}, 0")
        a(f"s_cmp_ge_u32 s{sS}, s{sD3}")
        for r in (4, 5, 6, 7, 0, 1, 2, 3):
            a(f"v_exp_f32 v{vX+r}, v{T+r}")
        order = (4, 6, 0, 2)
        if mode == "first":
            for r in order:
                a(f"v_pk_add_f32 v[{vD+r}:{vD+r+1}], v[{vX+r}:{vX+r+1}], 1.0 op_sel_hi:[1,0]")
        elif mode == "fast":
            for r in order:
                a(f"v_pk_fma_f32 v[{vN+r}:{vN+r+1}], v[{vN+r}:{vN+r+1}], v[{vX+r}:{vX+r+1}], v[{vN+r}:{vN+r+1}]")
            for r in order:
                a(f"v_pk_fma_f32 v[{vN+r}:{vN+r+1}], v[{T+r}:{T+r+1}], v[{vD+r}:{vD+r+1}], v[{vN+r}:{vN+r+1}]")
            for r in order:
                a(f"v_pk_fma_f32 v[{vD+r}:{vD+r+1}], v[{vD+r}:{vD+r+1}], v[{vX+r}:{vX+r+1}], v[{vD+r}:{vD+r+1}]")
        else:
            for r in order:
                a(f"v_pk_add_f32 v[{vX+r}:{vX+r+1}], v[{vX+r}:{vX+r+1}], 1.0 op_sel_hi:[1,0]")
            for r in (4, 5, 6, 7, 0, 1, 2, 3):
                a(f"v_rcp_f32 v{vX+r}, v{vX+r}")
            for r in order:
                a(f"v_pk_fma_f32 v[{vN+r}:{vN+r+1}], v[{T+r}:{T+r+1}], v[{vX+r}:{vX+r+1}], v[{vN+r}:{vN+r+1}]")
        if j == U - 1:
            a(f"v_add_u32 v{vAddr}, {8*U}, v{vAddr}")
        if j == U0 - 1 and OPT["prio"]:
            a("s_setprio 1")

    def loop(pfx, mode):
        tails = []
        if mode == "fast":
            a(f"{pfx}_FIRST:")
            step(0, "first")
            a(f"s_cbranch_scc1 {pfx}_T0")
            seq = list(range(1, U)) + [0]
        else:
            seq = list(range(U))
        for j in seq:
            a(f"{pfx}_S{j}:")
            step(j, mode)
            if j == seq[-1]:
                a(f"s_cbranch_scc0 {pfx}_S{seq[0]}")
            else:
                a(f"s_cbranch_scc1 {pfx}_T{j}")
        for j in [seq[-1]] + seq[:-1]:
            a(f"""
{pfx}_T{j}:
    {"s_setprio 2" if OPT["prio"] else ""}
    s_cmp_ge_u32 s{sS}, s{sD0}
    s_cbranch_scc1 {pfx}_FLUSH
    v_cmpx_lt_u32 vcc, s{sS}, v{vDeg}
    s_branch {pfx}_S{(j+1) % U}
            """)

    loop("K2_F", "fast")
    a(f"""
K2_F_FLUSH:
    s_mov_b64 exec, 1
    v_mov_b32 v{vQI}, 0
    v_mov_b32 v{vTmp}, 1
    ds_add_rtn_u32 v{vQI}, v{vQI}, v{vTmp} offset:{MISC + 16}
    s_mov_b64 exec, -1
    """)
    for r in range(8):
        a(f"v_rcp_f32 v{vX+r}, v{vD+r}")
    for r in range(0, 8, 2):
        a(f"v_pk_mul_f32 v[{vN+r}:{vN+r+1}], v[{vN+r}:{vN+r+1}], v[{vX+r}:{vX+r+1}]")
    a("K2_WRH:")
    for r in range(4):
        a(f"v_cvt_pk_bf16_f32 v{vX+r}, v{vN+2*r}, v{vN+2*r+1}")
    a(f"""
    ds_write_b128 v{vH}, v[{vX}:{vX+3}]
K2_NEXT:
    s_waitcnt lgkmcnt(0)
    v_readfirstlane_b32 s{sQ}, v{vQI}
    s_branch K2_ITEM
K2_P_START:
    """)
    for r in range(8):
        a(f"v_mov_b32 v{vN+r}, 0")
    a(f"""
    s_cmp_eq_u32 s{sD0}, 0
    s_cbranch_scc1 K2_P_FLUSH
    v_cmpx_lt_u32 vcc, 0, v{vDeg}
    """)
    loop("K2_P", "plain")
    a(f"""
K2_P_FLUSH:
    s_mov_b64 exec, 1
    v_mov_b32 v{vQI}, 0
    v_mov_b32 v{vTmp}, 1
    ds_add_rtn_u32 v{vQI}, v{vQI}, v{vTmp} offset:{MISC + 16}
    s_mov_b64 exec, -1
    s_cmp_le_u32 s{sNBATCH}, 1
    s_cbranch_scc1 K2_WRH
    """)
    a(f"""
    s_mul_i32 s24, s2, {SCR_STRIDE}
    s_add_u32 s24, s24, {SCR_OFF - QH}
    s_mov_b32 s{sSCR}, s22
    s_mov_b32 s{sSCR+1}, s23
    s_mov_b32 s{sSCR+2}, {WS_USED}
    s_mov_b32 s{sSCR+3}, 0x00020000
    v_add_u32 v{vH}, v{vH}, v{vL16}
    s_cmp_eq_u32 s{sBATCH}, 0
    s_cbranch_scc1 K2_P_ST
    buffer_load_dwordx4 v[{vX}:{vX+3}], v{vH}, s[{sSCR}:{sSCR+3}], s24 offen
    buffer_load_dwordx4 v[{vX+4}:{vX+7}], v{vH}, s[{sSCR}:{sSCR+3}], s24 offen offset:16
    s_waitcnt vmcnt(0)
    """)
    for r in range(0, 8, 2):
        a(f"v_pk_add_f32 v[{vN+r}:{vN+r+1}], v[{vN+r}:{vN+r+1}], v[{vX+r}:{vX+r+1}]")
    a(f"""
K2_P_ST:
    buffer_store_dwordx4 v[{vN}:{vN+3}], v{vH}, s[{sSCR}:{sSCR+3}], s24 offen
    buffer_store_dwordx4 v[{vN+4}:{vN+7}], v{vH}, s[{sSCR}:{sSCR+3}], s24 offen offset:16
    s_waitcnt vmcnt(0)
    s_branch K2_NEXT
    """)
    vF = 32
    a(f"""
K2_DONE:
    s_add_u32 s{sBATCH}, s{sBATCH}, 1
    s_cmp_ge_u32 s{sBATCH}, s{sNBATCH}
    s_cbranch_scc1 K2_FINAL
    s_waitcnt vmcnt(0)
    s_add_u32 s{sRECB}, s{sRECB}, 192
    v_subrev_u32 v127, 24, v127
    """)
    rec_loads()
    a(f"""
    s_barrier
    v_mov_b32 v4, 0
    v_lshlrev_b32 v5, 2, v0
    v_cmp_gt_u32 vcc, {(DEGT - CNT) // 4}, v0
    s_mov_b64 exec, vcc
    ds_write_b32 v5, v4 offset:{CNT}
    s_mov_b64 exec, 1
    v_mov_b32 v5, {MISC}
    v_mov_b32 v6, {OPT['nw']}
    ds_write_b32 v5, v6 offset:16
    s_mov_b64 exec, -1
    s_waitcnt lgkmcnt(0)
    s_barrier
    s_branch K2_BATCH
K2_FINAL:
    """)
    stamp(a, 8)
    cstamp(a, 1)
    a(f"""
    s_waitcnt vmcnt(0)
    s_and_b32 s24, s3, 3                 ; cp
    s_lshl_b32 s25, s24, 14
    s_add_u32 s25, s25, {W2F_OFF}
    v_lshlrev_b32 v4, 4, v1
    """)
    for f in range(16):
        if f and f % 4 == 0:
            a("s_add_u32 s25, s25, 4096")
        a(f"buffer_load_dwordx4 v[{vF+4*f}:{vF+4*f+3}], v4, s[{sWS}:{sWS+3}], s25 offen offset:{1024*(f%4)} sc1")
    srd(a, sB2, 18, 19, 256)
    srd(a, sOUT, 20, 21, N * 256)
    a(f"""
    s_lshl_b32 s24, s24, 6
    v_lshlrev_b32 v5, 4, v3              ; g*16
    buffer_load_dwordx4 v[8:11], v5, s[{sB2}:{sB2+3}], s24 offen
    s_lshr_b32 s27, s3, 2
    s_lshl_b32 s27, s27, 4               ; first row tile * 16
    v_add_u32 v6, s27, v2
    v_mul_u32_u24 v7, {ROWS}, v6
    v_add_u32 v7, v7, v5
    v_add_u32 v7, {QH}, v7
    v_lshlrev_b32 v20, 2, v6
    v_add_u32 v21, s{sROW0}, v6
    v_lshl_add_u32 v21, v21, 8, v5
    s_mov_b32 s34, {NLN2:#x}
    s_barrier
    s_cmp_le_u32 s{sNBATCH}, 1
    s_cbranch_scc1 K2_GEMM2
    s_mul_i32 s28, s2, {SCR_STRIDE}
    s_add_u32 s28, s28, {SCR_OFF}
    s_mov_b32 s{sSCR}, s22
    s_mov_b32 s{sSCR+1}, s23
    s_mov_b32 s{sSCR+2}, {WS_USED}
    s_mov_b32 s{sSCR+3}, 0x00020000
    v_and_b32 v22, 1, v3
    v_lshlrev_b32 v22, 9, v22
    v_lshl_add_u32 v22, v2, 4, v22       ; s*512 + l*16
    v_lshl_add_u32 v23, v2, 4, v22       ; s*512 + l*32
    s_mov_b32 s29, s3
K2_CONV:
    s_mul_i32 s30, s29, {ROWS}
    s_add_u32 s31, s30, s28
    buffer_load_dwordx4 v[100:103], v23, s[{sSCR}:{sSCR+3}], s31 offen
    buffer_load_dwordx4 v[104:107], v23, s[{sSCR}:{sSCR+3}], s31 offen offset:16
    s_add_u32 s30, s30, {QH}
    v_add_u32 v24, s30, v22
    s_waitcnt vmcnt(0)
    v_cvt_pk_bf16_f32 v100, v100, v101
    v_cvt_pk_bf16_f32 v101, v102, v103
    v_cvt_pk_bf16_f32 v102, v104, v105
    v_cvt_pk_bf16_f32 v103, v106, v107
    ds_write_b128 v24, v[100:103]
    s_add_u32 s29, s29, 16
    s_cmp_lt_u32 s29, {NB}
    s_cbranch_scc1 K2_CONV
    s_waitcnt lgkmcnt(0)
    s_barrier
K2_GEMM2:
    """)
    stamp(a, 9)
    diag(a, 3, "K2_DG3")
    vHB = 96
    vO = 24
    for rt in range(2):
        off = rt * 64 * ROWS
        if rt == 1:
            a("s_cmp_ge_u32 s3, 12")
            a("s_cbranch_scc1 K2_FIN")
            a(f"v_add_u32 v7, {off}, v7")
            a(f"v_add_u32 v21, {64 * 256}, v21")
        a(f"ds_read_b32 v22, v20 offset:{DEGT + rt * 256}")
        for ks in range(8):
            a(f"ds_read_b128 v[{vHB+4*ks}:{vHB+4*ks+3}], v7 offset:{(ks >> 2) * 512 + (ks & 3) * 64}")
        if rt == 0:
            a("s_waitcnt vmcnt(0)")
            for p in range(4):
                a(f"v_lshlrev_b32 v{12+2*p}, 16, v{8+p}")
                a(f"v_and_b32 v{13+2*p}, 0xffff0000, v{8+p}")
        for ks in range(8):
            a(f"s_waitcnt lgkmcnt({7-ks})")
            for aa in range(2):
                f = vF + 4 * (aa * 8 + ks)
                c = "0" if ks == 0 else f"v[{vO+4*aa}:{vO+4*aa+3}]"
                a(f"v_mfma_f32_16x16x32_bf16 v[{vO+4*aa}:{vO+4*aa+3}], v[{f}:{f+3}], v[{vHB+4*ks}:{vHB+4*ks+3}], {c}")
        a("v_cvt_f32_u32 v22, v22")
        a(f"v_cmp_gt_u32 vcc, {NB - 64 * rt}, v6")
        a("s_nop 5")
        for r in range(8):
            a(f"v_mul_f32 v{vO+r}, s34, v{vO+r}")
        for r in range(8):
            a(f"v_fmac_f32 v{vO+r}, v22, v{12+r}")
        for r in range(4):
            a(f"v_cvt_pk_bf16_f32 v{vHB+r}, v{vO+2*r}, v{vO+2*r+1}")
        a("s_mov_b64 exec, vcc")
        a(f"buffer_store_dwordx4 v[{vHB}:{vHB+3}], v21, s[{sOUT}:{sOUT+3}], s24 offen {OPT['ost']}")
        a("s_mov_b64 exec, -1")
        if rt == 0:
            a("s_nop 1")
    a("K2_FIN:")
    if OPT["stamps"]:
        a("s_waitcnt vmcnt(0)")
    stamp(a, 11)
    stamp_flush(a, 0)
    diag_flush(a)
    a("""
K2_END:
    s_endpgm
    """)
    return a.text(), 128, 102


HEADER = """; Kernarg layout for this problem (88 bytes, ptrs only, base s[0:1]):
"""


def kd(name, vgpr, sgpr):
    return f""".amdhsa_kernel {name}
  .amdhsa_next_free_vgpr {vgpr}
  .amdhsa_next_free_sgpr {sgpr}
  .amdhsa_accum_offset {(vgpr + 3) // 4 * 4}
  .amdhsa_group_segment_fixed_size 0
  .amdhsa_kernarg_size 88
  .amdhsa_user_sgpr_count 2
  .amdhsa_user_sgpr_kernarg_segment_ptr 1
  .amdhsa_system_sgpr_workgroup_id_x 1
.end_amdhsa_kernel
"""


def build():
    k2, v2, s2 = gen_k2()
    n2 = "gather_scatter__edge_featured_mpnn_mpnn__graph_kernel"
    out = HEADER
    ks = [(n2, k2, v2, s2)]
    if OPT["diag"] or OPT["list"]:
        out += f"; @launch kernel={n2} grid=(256,1,1) block=(1024,1,1) lds={K_LDS}\n"
    else:
        out += f"; @launch grid=(256,1,1) block=(1024,1,1) lds={K_LDS}\n"
    if OPT["diag"]:
        out += "; @launch kernel=diag_kernel grid=(1,1,1) block=(64,1,1) lds=0\n"
        ks.append(("diag_kernel",) + gen_diag())
    out += '.amdgcn_target "amdgcn-amd-amdhsa--gfx950"\n.text\n'
    for n, k, _, _ in ks:
        out += f".globl {n}\n.p2align 8\n.type {n},@function\n{n}:\n" + k
    out += '.section .rodata,"a"\n'
    for n, _, v, sg in ks:
        out += ".p2align 6\n" + kd(n, v, sg)
    return out


if __name__ == "__main__":
    path = sys.argv[1] if len(sys.argv) > 1 else "gather_scatter__edge_featured_mpnn_mpnn__graph.s"
    for kv in sys.argv[2:]:
        k, v = kv.split("=")
        OPT[k] = int(v) if v.lstrip('-').isdigit() else v.replace('+', ' ')
    open(path, "w").write(build())
    print("wrote", path, "LDS", K_LDS)
```
